```python
import torch

def _softmax(x, axis=-1):
    return torch.softmax(x, dim=axis)
def _gelu(x):
    return torch.nn.functional.gelu(x, approximate="tanh")
def _silu(x):
    return torch.nn.functional.silu(x)
def _sigmoid(x):
    return torch.sigmoid(x)
def _layernorm(x, axis=-1, eps=1e-5):
    m = x.mean(dim=axis, keepdim=True)
    v = x.var(dim=axis, keepdim=True, unbiased=False)
    return (x - m) / torch.sqrt(v + eps)
def _scatter_add(tgt, idx, src, axis=0):
    return tgt.clone().index_add_(axis, idx, src)
def _segment_sum(src, seg, n):
    out = torch.zeros((n,) + src.shape[1:], dtype=src.dtype)
    return out.index_add_(0, seg, src)
def _pad(x, pw):
    flat = tuple(v for pair in reversed(pw) for v in pair)
    return torch.nn.functional.pad(x, flat)

kernel_name = 'parallel_sum__sliding_block__glu_gated_glu__prompt'

def setup_inputs():

    _w = (lambda a: (lambda t: t.to(torch.bfloat16) if t.is_floating_point() else t)(torch.as_tensor(a)))
    def _A_setup():
        B, S, D = 1, 2048, 640
        return {
            "x": _w((lambda *s: torch.randn(*s, dtype=torch.bfloat16) * 0.05)(B, S, D)),
            "wqkv": _w((lambda *s: torch.randn(*s, dtype=torch.bfloat16) * 0.05)(D, 3 * D)),
            "wo": _w((lambda *s: torch.randn(*s, dtype=torch.bfloat16) * 0.05)(D, D)),
        }
    _A_in = _A_setup()

    def _B_setup():
        B, S, D, F = 1, 2048, 640, 1728
        return {
            "x": _w((lambda *s: torch.randn(*s, dtype=torch.bfloat16) * 0.05)(B, S, D)),
            "w_gate": _w((lambda *s: torch.randn(*s, dtype=torch.bfloat16) * 0.05)(D, F)),
            "w_up": _w((lambda *s: torch.randn(*s, dtype=torch.bfloat16) * 0.05)(D, F)),
            "w_down": _w((lambda *s: torch.randn(*s, dtype=torch.bfloat16) * 0.05)(F, D)),
        }
    _B_in = _B_setup()

    return {
        "A_x": _A_in["x"],
        "A_wqkv": _A_in["wqkv"],
        "A_wo": _A_in["wo"],
        "B_x": _B_in["x"],
        "B_w_gate": _B_in["w_gate"],
        "B_w_up": _B_in["w_up"],
        "B_w_down": _B_in["w_down"],
    }

def reference(A_x, A_wqkv, A_wo, B_x, B_w_gate, B_w_up, B_w_down):
    def _A_ref(x, wqkv, wo):
        B, S, D = x.shape
        H = 32; Dh = D // H; W = 256
        qkv = (lambda x, *d: x.permute(*d))((x @ wqkv).reshape(B, S, 3, H, Dh), 2, 0, 3, 1, 4)
        q, k, v = qkv[0], qkv[1], qkv[2]
        scores = torch.einsum("bhqd,bhkd->bhqk", q, k) * (Dh ** -0.5)
        idx = torch.arange(S)
        mask = (idx[:, None] - idx[None, :] >= 0) & (idx[:, None] - idx[None, :] < W)
        scores = torch.where(mask[None, None], scores, -1e9)
        p = _softmax(scores, axis=-1)
        o = torch.einsum("bhqk,bhkd->bhqd", p, v)
        return (lambda x, *d: x.permute(*d))(o, 0, 2, 1, 3).reshape(B, S, D) @ wo

    def _B_ref(x, w_gate, w_up, w_down):
        g = torch.einsum("bsd,df->bsf", x, w_gate)
        u = torch.einsum("bsd,df->bsf", x, w_up)
        h = _sigmoid(g) * u
        return torch.einsum("bsf,fd->bsd", h, w_down)

    x = A_x
    xn = _layernorm(x, axis=-1)
    return x + _A_ref(xn, A_wqkv, A_wo) + _B_ref(xn, B_w_gate, B_w_up, B_w_down)
```

```python
import re

REG_RE = re.compile(r'^(-|\|)?([vas])(\d+)\|?$')
RNG_RE = re.compile(r'^(-)?([vas])\[(\d+):(\d+)\]$')

def parse_reg(tok):
    tok = tok.strip()
    m = REG_RE.match(tok)
    if m: return [(m.group(2), int(m.group(3)))]
    m = RNG_RE.match(tok)
    if m: return [(m.group(2), i) for i in range(int(m.group(3)), int(m.group(4)) + 1)]
    if tok == 'vcc': return [('x', 'vcc')]
    if tok in ('vcc_lo', 'vcc_hi'): return [('x', 'vcc')]
    if tok in ('exec', 'exec_lo', 'exec_hi'): return [('x', 'exec')]
    if tok == 'm0': return [('x', 'm0')]
    return []

TRANS = ('v_exp_f32', 'v_log_f32', 'v_rcp_f32', 'v_rsq_f32', 'v_sqrt_f32', 'v_sin_f32', 'v_cos_f32', 'v_rcp_iflag_f32')

class Ins:
    __slots__ = ('text', 'op', 'kind', 'dst', 'src', 'tag', 'passes', 'srcC', 'srcAB', 'is_lds_dma', 'nbytes')
    def __init__(self, text, tag=None):
        self.text = text; self.tag = tag
        t = text.split(';')[0].split('//')[0].strip()
        self.passes = 0; self.srcC = []; self.srcAB = []; self.is_lds_dma = False
        if t.endswith(':') or t == '' or t.startswith('.'):
            self.op = 'label' if t.endswith(':') else 'dir'; self.kind = 'label'; self.dst = []; self.src = []; return
        parts = t.split(None, 1)
        op = parts[0]; self.op = op
        rest = parts[1] if len(parts) > 1 else ''
        toks = [x.strip() for x in rest.split(',')] if rest else []
        mods = []
        if toks:
            l = toks[-1].split()
            toks[-1] = l[0] if l else ''
            mods = l[1:]
        regs = [parse_reg(x) for x in toks]
        flat = lambda a: [r for x in a for r in x]
        dst, src = [], []
        if op.startswith('v_mfma'):
            self.kind = 'mfma'
            dst = regs[0]; src = flat(regs[1:]); self.srcC = regs[3]; self.srcAB = regs[1] + regs[2]
            self.passes = 8 if '32x32' in op else (4 if '16x16' in op else 2)
        elif op.startswith('v_'):
            self.kind = 'valu'
            if op.startswith('v_cmp'):
                dst = regs[0]; src = flat(regs[1:])
                if op.startswith('v_cmpx'): dst = dst + [('x', 'exec')]
            elif op.startswith('v_permlane32_swap') or op.startswith('v_permlane16_swap') or op.startswith('v_swap'):
                dst = regs[0] + regs[1]; src = dst
            elif op.startswith('v_cndmask'):
                dst = regs[0]; src = flat(regs[1:])
                if len(toks) == 3: src = src + [('x', 'vcc')]
            elif op.startswith(('v_add_co', 'v_sub_co', 'v_addc_co', 'v_subb_co')):
                dst = regs[0] + regs[1]; src = flat(regs[2:])
            elif op.startswith(('v_fmac', 'v_mac', 'v_fmaak')) and op.startswith(('v_fmac', 'v_mac')):
                dst = regs[0]; src = flat(regs)
            else:
                dst = regs[0]; src = flat(regs[1:])
            if 'dpp' in op or any(m.startswith(('quad_perm', 'row_', 'wave_', 'bank_mask')) for m in mods):
                src = src + regs[0]
        elif op.startswith('ds_'):
            self.kind = 'ds'
            if op.startswith(('ds_read', 'ds_bpermute', 'ds_permute', 'ds_swizzle')):
                dst = regs[0]; src = flat(regs[1:])
            else:
                src = flat(regs)
        elif op.startswith(('buffer_', 'global_')):
            self.kind = 'vmem'
            lds = 'lds' in mods
            self.is_lds_dma = lds
            if op.startswith(('buffer_load', 'global_load')) and not lds:
                dst = regs[0]; src = flat(regs[1:])
            elif 'atomic' in op and 'sc0' in mods:
                dst = regs[0]; src = flat(regs)
            else:
                src = flat(regs)
            if lds: src = src + [('x', 'm0')]
        elif op.startswith('s_'):
            if op.startswith(('s_load', 's_memrealtime', 's_memtime', 's_buffer_load')):
                self.kind = 'smem'; dst = regs[0]; src = flat(regs[1:])
            else:
                self.kind = 'salu'
                if op.startswith(('s_cmp', 's_waitcnt', 's_barrier', 's_nop', 's_branch', 's_cbranch', 's_setprio', 's_endpgm', 's_sleep', 's_bitcmp', 's_setreg')):
                    src = flat(regs)
                else:
                    dst = regs[0] if regs else []; src = flat(regs[1:])
                    if op.startswith(('s_addk', 's_mulk', 's_cmovk', 's_cmov')) : src = src + dst
                    if 'saveexec' in op: dst = dst + [('x', 'exec')]; src = src + [('x', 'exec')]
        else:
            raise ValueError('unknown op ' + text)
        if tag == 'pf' and self.kind == 'vmem': dst = []
        self.dst = dst; self.src = src

class Prog:
    def __init__(self):
        self.ins = []
    def __call__(self, text, tag=None):
        for line in text.strip('\n').split('\n'):
            line = line.strip()
            if not line or line.startswith(';'): continue
            self.ins.append(Ins(line, tag))
    def add(self, ins): self.ins.append(ins)
    def waitvm(self, tag):
        self.ins.append(('waitvm', tag))
    def waitlg(self, tag):
        self.ins.append(('waitlg', tag))
    def flush(self):
        self.ins.append(('flush',))
    def save(self, name): self.ins.append(('save', name))
    def restore(self, name): self.ins.append(('restore', name))
    def reset(self):
        self.ins.append(('reset',))

    def finalize(self, stats=None):
        out = []
        vmq = []
        lgq = []
        smem = []
        hist = []
        state = 0
        nnop = 0; nwait = 0; saved = {}
        def emit_raw(text, ins=None):
            nonlocal state
            out.append(text)
        def do_wait(vm=None, lg=None):
            nonlocal state, nwait, vmq, lgq, smem
            parts = []
            if vm is not None and vm < len(vmq):
                parts.append(f'vmcnt({min(vm,63)})'); vmq = vmq[len(vmq) - vm:] if vm > 0 else []
            if lg is not None and (lg < len(lgq) or (lg == 0 and smem)):
                if smem: lg = 0
                lg = min(lg, 15)
                parts.append(f'lgkmcnt({lg})'); lgq = lgq[len(lgq) - lg:] if lg > 0 else []
                if lg == 0: smem = []
            if parts:
                out.append('s_waitcnt ' + ' '.join(parts)); state += 1; nwait += 1
        for it in self.ins:
            if isinstance(it, tuple):
                if it[0] == 'waitvm':
                    idx = [i for i, x in enumerate(vmq) if x.tag == it[1]]
                    if idx: do_wait(vm=len(vmq) - 1 - idx[-1])
                elif it[0] == 'waitlg':
                    idx = [i for i, x in enumerate(lgq) if x.tag == it[1]]
                    if idx: do_wait(lg=len(lgq) - 1 - idx[-1])
                elif it[0] == 'flush':
                    out.append('s_waitcnt vmcnt(0) lgkmcnt(0)'); vmq = []; lgq = []; smem = []
                    out.append('s_nop 15'); state += 17; hist = []
                elif it[0] == 'save':
                    saved[it[1]] = (list(vmq), list(lgq), list(smem), list(hist), state)
                elif it[0] == 'restore':
                    vmq, lgq, smem, hist, state = [list(z) if isinstance(z, list) else z for z in saved[it[1]]]
                elif it[0] == 'reset':
                    vmq = []; lgq = []; smem = []
                continue
            x = it
            if x.kind == 'label':
                out.append(x.text); continue
            if x.op == 's_waitcnt':
                m = re.search(r'vmcnt\((\d+)\)', x.text)
                if m:
                    n = int(m.group(1)); vmq = vmq[len(vmq) - n:] if 0 < n < len(vmq) else ([] if n == 0 else vmq)
                m = re.search(r'lgkmcnt\((\d+)\)', x.text)
                if m:
                    n = int(m.group(1))
                    lgq = lgq[len(lgq) - n:] if 0 < n < len(lgq) else ([] if n == 0 else lgq)
                    if n == 0: smem = []
                out.append(x.text); state += 1; continue
            touched = set(x.src) | set(x.dst)
            needvm = None; needlg = None
            for i, y in enumerate(vmq):
                if y.dst and touched & set(y.dst):
                    n = len(vmq) - 1 - i
                    needvm = n if needvm is None else min(needvm, n)
            for i, y in enumerate(lgq):
                if y.dst and touched & set(y.dst):
                    n = len(lgq) - 1 - i
                    needlg = n if needlg is None else min(needlg, n)
            for y in smem:
                if touched & set(y.dst): needlg = 0
            if x.kind == 'ds' and len(lgq) >= 15 and needlg is None:
                pass
            if needlg is not None and needlg > 15: needlg = 15
            if needvm is not None or needlg is not None: do_wait(needvm, needlg)
            if x.kind == 'vmem' and len(vmq) >= 63:
                do_wait(vm=62)
            need = 0
            srcs = set(x.src); dsts = set(x.dst)
            for (y, st) in hist:
                d = state - st - 1
                if d >= 20: continue
                yd = set(y.dst); req = 0
                if y.kind == 'valu':
                    vw = {r for r in yd if r[0] in 'va'}
                    sw = {r for r in yd if r[0] == 's' or r == ('x', 'vcc')}
                    if x.kind == 'mfma' and vw & srcs: req = max(req, 2)
                    if x.kind == 'mfma' and ('x', 'exec') in yd: req = max(req, 4)
                    if y.op.startswith(TRANS) and x.kind in ('valu', 'mfma') and vw & srcs: req = max(req, 1 if x.kind == 'valu' else 2)
                    if y.op.startswith(TRANS) and x.kind in ('vmem', 'ds') and vw & srcs: req = max(req, 1)
                    if x.kind == 'valu' and sw & srcs: req = max(req, 4 if x.op.startswith(('v_readlane', 'v_writelane')) else 2)
                    if x.kind == 'vmem' and sw & srcs: req = max(req, 5)
                    if x.op.startswith(('v_readfirstlane', 'v_readlane')) and vw & srcs: req = max(req, 1)
                    if x.op.startswith('v_permlane') and vw & srcs: req = max(req, 2)
                    if x.kind == 'valu' and ('dpp' in x.text or 'row_' in x.text or 'quad_perm' in x.text) and vw & srcs: req = max(req, 2)
                    if x.kind == 'salu' and sw & srcs: req = max(req, 1)
                elif y.kind == 'mfma':
                    p = y.passes
                    rd = {2: 5, 4: 8, 8: 12}[p]
                    if x.kind == 'mfma':
                        if yd & set(x.srcAB): req = max(req, rd)
                        if yd & set(x.srcC):
                            if not (x.srcC == y.dst and x.passes == p): req = max(req, {2: 4, 4: 6, 8: 10}[p])
                            elif p == 2: req = max(req, 2)
                        elif yd & dsts and not (x.dst == y.dst and x.passes == p): req = max(req, rd)
                    elif x.kind in ('valu', 'vmem', 'ds'):
                        if yd & (srcs | dsts): req = max(req, rd)
                        if x.kind == 'valu' and set(y.srcC) & dsts: req = max(req, {2: 1, 4: 3, 8: 7}[p])
                elif y.kind == 'vmem':
                    if y.op.startswith(('buffer_store_dwordx4', 'buffer_store_dwordx3', 'global_store_dwordx4', 'global_store_dwordx3')):
                        data = set(parse_reg(y.text.split(None, 1)[1].split(',')[0] if y.op.startswith('buffer') else y.text.split(None, 1)[1].split(',')[1]))
                        if data & dsts and x.kind in ('valu', 'mfma', 'ds', 'vmem'): req = max(req, 2)
                elif y.kind == 'salu':
                    if ('x', 'm0') in yd and x.is_lds_dma: req = max(req, 1)
                need = max(need, req - d)
            while need > 0:
                n = min(need, 16)
                out.append(f's_nop {n-1}'); state += n; need -= n; nnop += n
            out.append(x.text)
            hist.append((x, state)); state += 1
            hist = [h for h in hist if state - h[1] <= 21]
            if x.kind == 'vmem':
                if x.tag != 'nc': vmq.append(x)
            elif x.kind == 'ds': lgq.append(x)
            elif x.kind == 'smem': smem.append(x)
        if stats is not None:
            stats['nop'] = nnop; stats['wait'] = nwait
        return '\n'.join(out) + '\n'
```

```python
from asmlib import Prog, Ins

WS_QKV = 0
WS_H   = 8 << 20
WS_O   = 16 << 20
WS_OT  = 18 << 20
WS_FLAG = 19 << 20
WS_PROF = (19 << 20) + (512 << 10)
WS_SIZE = 20 << 20

S_G = 3456
S_Q = 3840
XB = 96 * 1024
SLOT = 24 * 1024
NSLOT = 4

def srd(p, s, lo, hi, nbytes):
    p(f"""
    s_mov_b32 s{s}, s{lo}
    s_and_b32 s{s+1}, s{hi}, 0xffff
    s_mov_b32 s{s+2}, {nbytes}
    s_mov_b32 s{s+3}, 0x20000
    """)

def gen_k1(cfg):
    D = cfg.get('D', 5); RING = cfg.get('RING', 8); BUD = cfg.get('BUD', 4)
    p = Prog()
    SX, SQ, SG, SU, SW, SA, SB = 4, 8, 12, 16, 20, 24, 28
    sW, sMi, sNi, sVar = 32, 33, 34, 35
    sXoff = 36
    sP = [37, 38, 39]
    sP2 = [40, 41]; sK2 = 42
    sP3 = [43, 44, 45]
    sW6, sW4 = 46, 47
    sMask = 48; sT = 49; sT2 = 50; sT3 = 51
    sHoff = [52, 53, 54, 55]
    sQoff = [56, 57, 58, 59, 60]
    sXl = 61
    sNL2E = 62
    sM = [64, 66, 68, 70, 72]
    vLane, vXe, vXo = 1, 2, 3
    vXA = [4, 5, 6, 7]
    vTR = 8
    vTR2 = 9
    vWg, vWq, vW2 = 10, 11, 12
    vL16, vQst = 13, 14
    vRstd, vNmr = 15, 16
    vT = list(range(18, 44))
    vSum = 44
    ACC3 = 48
    X0 = 96
    WR0 = 128
    xr = lambda s: f"v[{X0+4*s}:{X0+4*s+3}]"

    prof = cfg.get('prof', 0)
    SP = [88, 90, 92, 94, 96, 98, 100, 74, 76, 78, 80, 82, 84, 86]
    nst = [0]
    def stamp(name=None):
        if not prof: return
        i = nst[0]; nst[0] += 1
        p(f's_memtime s[{SP[i]}:{SP[i]+1}]' if i else 's_memrealtime s[88:89]')
        if name: cfg.setdefault('_names', []).append(name)
    stamp()
    stamp()
    p(f"""
    s_cmp_ge_u32 s2, 256
    s_cbranch_scc1 K1_END
    s_load_dwordx4 s[76:79], s[0:1], 0
    s_load_dwordx4 s[80:83], s[0:1], 32
    s_load_dwordx2 s[84:85], s[0:1], 72
    v_and_b32 v{vLane}, 63, v0
    v_lshrrev_b32 v{vT[0]}, 6, v0
    s_nop 0
    v_readfirstlane_b32 s{sW}, v{vT[0]}
    """)
    if cfg.get('map', 0) == 0:
        p(f"""
        s_and_b32 s{sT}, s2, 3
        s_lshl_b32 s{sT}, s{sT}, 2
        s_bfe_u32 s{sT2}, s2, 0x20003
        s_add_u32 s{sMi}, s{sT}, s{sT2}
        s_bfe_u32 s{sT}, s2, 0x10002
        s_lshl_b32 s{sT}, s{sT}, 3
        s_lshr_b32 s{sT2}, s2, 5
        s_add_u32 s{sNi}, s{sT}, s{sT2}
        """)
    else:
        p(f"""
        s_and_b32 s{sT}, s2, 1
        s_lshl_b32 s{sT}, s{sT}, 3
        s_bfe_u32 s{sT2}, s2, 0x30003
        s_add_u32 s{sMi}, s{sT}, s{sT2}
        s_bfe_u32 s{sT}, s2, 0x20001
        s_lshl_b32 s{sT}, s{sT}, 2
        s_lshr_b32 s{sT2}, s2, 6
        s_add_u32 s{sNi}, s{sT}, s{sT2}
        """)
    p(f"""
    s_lshr_b32 s{sVar}, s{sNi}, 3
    s_lshl_b32 s{sT}, s{sMi}, 2
    s_add_u32 s{sT}, s{sT}, s{sW}
    s_mul_i32 s{sXoff}, s{sT}, {32*1280}
    s_lshl_b32 s{sXl}, s{sW}, 14
    s_add_u32 s{sXl}, s{sXl}, {XB}
    s_mul_i32 s{sW6}, s{sW}, 6144
    s_lshl_b32 s{sW4}, s{sW}, 12
    s_mov_b32 s{sMask}, 0xffff0000
    s_mov_b32 s{sNL2E}, 0xbfb8aa3b
    """)
    p(f"""
    v_lshrrev_b32 v{vT[0]}, 3, v{vLane}
    v_mul_u32_u24 v{vT[0]}, 1280, v{vT[0]}
    v_lshrrev_b32 v{vT[1]}, 4, v{vLane}
    v_and_b32 v{vT[2]}, 7, v{vLane}
    v_xor_b32 v{vT[3]}, v{vT[2]}, v{vT[1]}
    v_xor_b32 v{vT[4]}, 4, v{vT[3]}
    v_lshl_add_u32 v{vXe}, v{vT[3]}, 4, v{vT[0]}
    v_lshl_add_u32 v{vXo}, v{vT[4]}, 4, v{vT[0]}
    s_waitcnt lgkmcnt(0)
    """)
    srd(p, SX, 76, 77, 2048 * 1280)
    XPL = cfg.get('xpl', 1)
    if XPL:
        xplace = [('W', 0), ('W', SLOT), ('X', 0), ('X', 4096), ('X', 8192), ('X', 12288), ('W', 2*SLOT), ('W', 3*SLOT), ('X', 0), ('X', 4096)]
        nfirst = 8
    else:
        xplace = [('X', (c % 4) * 4096) for c in range(10)]
        nfirst = 4
    def xdma(c):
        kind, off = xplace[c]
        out = []
        for i in range(4):
            out.append(f"s_add_u32 m0, s{sXl if kind == 'X' else sW6}, {off + i*1024}")
            out.append(f"s_add_u32 s{sT}, s{sXoff}, {8*i*1280 + 128*c}")
            out.append(f"buffer_load_dwordx4 v{vXe if i%2==0 else vXo}, s[{SX}:{SX+3}], s{sT} offen lds")
        return out
    for c in range(nfirst):
        for l in xdma(c): p(l, tag=f'x{c}')
    stamp('x issued')
    srd(p, SQ, 78, 79, 640 * S_Q)
    srd(p, SG, 80, 81, 640 * S_G)
    srd(p, SU, 82, 83, 640 * S_G)
    srd(p, SW, 84, 85, WS_SIZE)
    if cfg.get('pf', 1):
        p(f"""
        s_getpc_b64 s[86:87]
        v_lshlrev_b32 v{vT[5]}, 7, v0
        v_mov_b32 v{vT[6]}, 0
        s_and_b32 s86, s86, 0xffffff00
        global_load_dword v{vT[7]}, v{vT[5]}, s[86:87]
        """, tag='pf')
        if cfg.get('pf', 1) > 1:
            p(f"global_load_dword v{vT[8]}, v{vT[5]}, s[86:87] offset:64", tag='pf')
    p(f"""
    s_lshl_b32 s{sT}, s{sNi}, 2
    s_mul_i32 s{sT2}, s{sNi}, 3
    s_add_u32 s{sT2}, s{sT2}, 8
    s_cmp_eq_u32 s{sVar}, 0
    s_cselect_b32 s{sT}, s{sT}, s{sT2}
    """)
    p(f"s_lshl_b32 s{sT3}, s{sMi}, 2\ns_add_u32 s{sT3}, s{sT3}, s{sW}\ns_mul_i32 s{sT3}, s{sT3}, {54*2048}\ns_add_u32 s{sT3}, s{sT3}, {WS_H}")
    for j in range(4):
        p(f"""
        s_add_u32 s{sT2}, s{sT}, {j}
        s_min_u32 s{sT2}, s{sT2}, 53
        s_lshl_b32 s{sHoff[j]}, s{sT2}, 11
        s_add_u32 s{sHoff[j]}, s{sHoff[j]}, s{sT3}
        """)
        if j < 3:
            p(f"s_lshl_b32 s{sP[j]}, s{sT2}, 6\ns_mul_i32 s{sT2}, s{sW}, {16*S_G}\ns_add_u32 s{sP[j]}, s{sP[j]}, s{sT2}")
        else:
            p(f"s_lshl_b32 s{sP2[0]}, s{sT2}, 6\ns_mov_b32 s{sP2[1]}, s{sP2[0]}")
    p(f"""
    s_mul_i32 s{sT}, s{sNi}, 3
    s_mul_i32 s{sT2}, s{sNi}, 5
    s_sub_u32 s{sT2}, s{sT2}, 14
    s_cmp_eq_u32 s{sVar}, 0
    s_cselect_b32 s{sT}, s{sT}, s{sT2}
    """)
    tok8 = 63
    p(f"s_lshl_b32 s{tok8}, s{sMi}, 2\ns_add_u32 s{tok8}, s{tok8}, s{sW}\ns_lshl_b32 s{tok8}, s{tok8}, 8\ns_add_u32 s{tok8}, s{tok8}, {WS_QKV}")
    for j in range(5):
        p(f"""
        s_add_u32 s{sT2}, s{sT}, {j}
        s_sub_u32 s{sT2}, s{sT2}, 2
        s_max_i32 s{sT2}, s{sT2}, 0
        s_min_u32 s{sT2}, s{sT2}, 59
        s_lshl_b32 s{sQoff[j]}, s{sT2}, 17
        s_add_u32 s{sQoff[j]}, s{sQoff[j]}, s{tok8}
        """)
        if j >= 2:
            p(f"s_lshl_b32 s{sP3[j-2]}, s{sT2}, 6\ns_mul_i32 s{sT2}, s{sW}, {2*16*S_Q}\ns_add_u32 s{sP3[j-2]}, s{sP3[j-2]}, s{sT2}")
        else:
            p(f"s_lshl_b32 s{sT2}, s{sT2}, 6\ns_cmp_eq_u32 s{sVar}, 0\ns_cselect_b32 s{sP2[j]}, s{sP2[j]}, s{sT2}")
    p(f"""
    s_cmp_eq_u32 s{sVar}, 0
    s_cselect_b32 s{SA}, s{SG}, s{SQ}
    s_cselect_b32 s{SA+1}, s{SG+1}, s{SQ+1}
    s_cselect_b32 s{SA+2}, s{SG+2}, s{SQ+2}
    s_mov_b32 s{SA+3}, 0x20000
    s_cselect_b32 s{SB}, s{SU}, s{SQ}
    s_cselect_b32 s{SB+1}, s{SU+1}, s{SQ+1}
    s_cselect_b32 s{SB+2}, s{SU+2}, s{SQ+2}
    s_mov_b32 s{SB+3}, 0x20000
    s_mov_b32 s{sK2}, {16*S_Q}
    s_cselect_b32 s{sK2}, {16*S_G}, s{sK2}
    s_lshl_b32 s{sT}, s{sK2}, 1
    s_mul_i32 s{sT}, s{sT}, s{sW}
    s_add_u32 s{sP2[0]}, s{sP2[0]}, s{sT}
    s_add_u32 s{sP2[1]}, s{sP2[1]}, s{sT}
    """)
    p(f"""
    v_lshrrev_b32 v{vT[0]}, 2, v{vLane}
    v_and_b32 v{vT[1]}, 3, v{vLane}
    v_lshlrev_b32 v{vT[1]}, 4, v{vT[1]}
    v_mul_u32_u24 v{vWg}, {S_G}, v{vT[0]}
    v_add_u32 v{vWg}, v{vWg}, v{vT[1]}
    v_mul_u32_u24 v{vWq}, {S_Q}, v{vT[0]}
    v_add_u32 v{vWq}, v{vWq}, v{vT[1]}
    s_cmp_eq_u32 s{sVar}, 0
    s_cselect_b64 vcc, -1, 0
    v_cndmask_b32 v{vW2}, v{vWq}, v{vWg}, vcc
    v_lshrrev_b32 v{vT[0]}, 5, v{vLane}
    v_bfe_u32 v{vT[1]}, v{vLane}, 2, 2
    v_lshl_add_u32 v{vT[1]}, v{vT[0]}, 3, v{vT[1]}
    v_lshlrev_b32 v{vT[1]}, 6, v{vT[1]}
    v_bfe_u32 v{vT[2]}, v{vLane}, 4, 1
    v_lshl_add_u32 v{vT[1]}, v{vT[2]}, 5, v{vT[1]}
    v_and_b32 v{vT[2]}, 3, v{vLane}
    v_lshl_add_u32 v{vTR}, v{vT[2]}, 3, v{vT[1]}
    v_add_u32 v{vTR2}, 0x10000, v{vTR}
    v_lshlrev_b32 v{vL16}, 4, v{vLane}
    v_and_b32 v{vT[1]}, 31, v{vLane}
    v_lshlrev_b32 v{vT[2]}, 3, v{vT[1]}
    v_lshl_add_u32 v{vQst}, v{vT[0]}, 14, v{vT[2]}
    """)
    vXB = [44, 45, 46, 47]
    vXB = [36, 37, 38, 39]
    p(f"""
    v_bfe_u32 v{vT[2]}, v{vLane}, 1, 3
    v_lshlrev_b32 v{vT[3]}, 7, v{vT[1]}
    """)
    for jj in range(4):
        p(f"""
        v_add_u32 v{vT[4]}, {2*jj}, v{vT[0]}
        v_xor_b32 v{vT[4]}, v{vT[4]}, v{vT[2]}
        v_lshl_add_u32 v{vT[4]}, v{vT[4]}, 4, v{vT[3]}
        v_add_u32 v{vXA[jj]}, s{sXl}, v{vT[4]}
        v_add_u32 v{vXB[jj]}, s{sW6}, v{vT[4]}
        """)
    vOne = 40
    p(f"""
    v_and_b32 v{vT[4]}, 15, v{vLane}
    v_lshrrev_b32 v{vT[5]}, 4, v{vLane}
    v_and_b32 v{vT[5]}, 1, v{vT[5]}
    v_lshlrev_b32 v{vT[5]}, 2, v{vT[5]}
    v_and_b32 v{vT[4]}, 7, v{vT[4]}
    v_cmp_eq_u32 vcc, v{vT[4]}, v{vT[5]}
    v_mov_b32 v{vT[6]}, 0x3f803f80
    v_cndmask_b32 v{vOne}, 0, v{vT[6]}, vcc
    v_mov_b32 v{vOne+1}, v{vOne}
    v_mov_b32 v{vOne+2}, v{vOne}
    v_mov_b32 v{vOne+3}, v{vOne}
    """)
    GR = ACC3 + 32
    p(f"""
    v_mov_b32 v{vT[8]}, 0
    v_mov_b32 v{vT[9]}, 0
    v_mov_b32 v{vT[10]}, 0
    v_mov_b32 v{vT[11]}, 0
    v_mov_b32 v{vT[12]}, 0
    s_lshl_b32 s{sT}, s2, 4
    s_add_u32 s{sT}, s{sT}, {WS_FLAG}
    s_mov_b64 exec, 1
    buffer_store_dwordx4 v[{vT[8]}:{vT[11]}], v{vT[12]}, s[{SW}:{SW+3}], s{sT} offen sc1
    s_mov_b64 exec, -1
    """, tag='flagz')

    frags = []
    chunks = []
    def add_chunks(pas, units, ks_per_chunk):
        s = 0
        while s < 40:
            n = min(ks_per_chunk, 40 - s)
            c = len(chunks)
            chunks.append(dict(first=len(frags), pas=pas, s0=s, n=n, nu=len(units)))
            base = (c % NSLOT) * SLOT
            for sl in range(n):
                for ui, u in enumerate(units):
                    frags.append((pas, u, s + sl, c, base + (sl * len(units) + ui) * 1024))
            s += n
    add_chunks(1, [0, 1, 2, 3, 4, 5], 4)
    add_chunks(2, [6, 7], 8)
    add_chunks(3, [8, 9, 10], 8)
    NF = len(frags)
    def wdma(c):
        ch = chunks[c]; base = (c % NSLOT) * SLOT
        out = []
        if ch['pas'] == 1:
            for j in range(3):
                for g in range(2):
                    out.append(f"s_add_u32 m0, s{sW6}, {base + (2*j+g)*1024}")
                    out.append(f"buffer_load_dwordx4 v{vWg}, s[{SG if g==0 else SU}:{(SG if g==0 else SU)+3}], s{sP[j]} offen lds")
                out.append(f"s_add_u32 s{sP[j]}, s{sP[j]}, {4*16*S_G}")
        elif ch['pas'] == 2:
            for i in range(2):
                for g in range(2):
                    out.append(f"s_add_u32 m0, s{sW4}, {base + (2*i+g)*1024}")
                    out.append(f"buffer_load_dwordx4 v{vW2}, s[{SA if g==0 else SB}:{(SA if g==0 else SB)+3}], s{sP2[g]} offen lds")
                    out.append(f"s_add_u32 s{sP2[g]}, s{sP2[g]}, s{sK2}")
            out.append(f"s_mul_i32 s{sT}, s{sK2}, 6")
            out.append(f"s_add_u32 s{sP2[0]}, s{sP2[0]}, s{sT}")
            out.append(f"s_add_u32 s{sP2[1]}, s{sP2[1]}, s{sT}")
        else:
            for i in range(2):
                for j in range(3):
                    out.append(f"s_add_u32 m0, s{sW6}, {base + (3*i+j)*1024}")
                    out.append(f"buffer_load_dwordx4 v{vWq}, s[{SQ}:{SQ+3}], s{sP3[j]} offen lds")
                    out.append(f"s_add_u32 s{sP3[j]}, s{sP3[j]}, {16*S_Q if i==0 else 7*16*S_Q}")
        return out
    def emit_stream(lines, tag=None):
        for l in lines: p(l, tag=tag)

    def stats_mfma(s, first):
        c0 = "0" if first else f"v[{GR}:{GR+15}]"
        c1 = "0" if first else f"v[{vSum}:{vSum+3}]"
        p(f"v_mfma_f32_32x32x16_bf16 v[{GR}:{GR+15}], {xr(s)}, {xr(s)}, {c0}")
        p(f"v_mfma_f32_16x16x32_bf16 v[{vSum}:{vSum+3}], v[{vOne}:{vOne+3}], {xr(s)}, {c1}")
    for c in range(10):
        p.waitvm(f'x{c}')
        if c == 0: stamp('x0 arrived')
        if c == 4: stamp('x4 arrived')
        kind, off = xplace[c]
        for jj in range(4):
            if kind == 'X': p(f"ds_read_b128 {xr(4*c+jj)}, v{vXA[jj]} offset:{off}", tag=f'xr{c}')
            elif off < 65536: p(f"ds_read_b128 {xr(4*c+jj)}, v{vXB[jj]} offset:{off}", tag=f'xr{c}')
            else:
                p(f"v_add_u32 v{vXB[jj]}, {off}, v{vXB[jj]}")
                p(f"ds_read_b128 {xr(4*c+jj)}, v{vXB[jj]}", tag=f'xr{c}')
        if c > 0:
            for jj in range(4): stats_mfma(4*(c-1)+jj, c == 1 and jj == 0)
        p.waitlg(f'xr{c}')
        if XPL:
            if c == 2: emit_stream(xdma(8), tag='x8')
            if c == 3:
                emit_stream(xdma(9), tag='x9')
                emit_stream(wdma(0), tag='w0')
                emit_stream(wdma(1), tag='w1')
        else:
            if c + 4 < 10: emit_stream(xdma(c + 4), tag=f'x{c+4}')
            if c == 5: emit_stream(wdma(0), tag='w0')
            if c == 6: emit_stream(wdma(1), tag='w1')
    for jj in range(4): stats_mfma(36 + jj, False)
    stamp('x+stats')
    for b, bit in enumerate((0, 1, 3, 4, 2)):
        p(f"v_bfe_u32 v{vT[0]}, v{vLane}, {bit}, 1\nv_cmp_eq_u32 s[{sM[b]}:{sM[b]+1}], 1, v{vT[0]}")
    G = lambda r: f"v{GR+r}"
    for i in range(8):
        p(f"v_cndmask_b32 v{vT[i]}, {G(2*i)}, {G(2*i+1)}, s[{sM[0]}:{sM[0]+1}]")
    for i in range(4):
        p(f"v_cndmask_b32 v{vT[i]}, v{vT[2*i]}, v{vT[2*i+1]}, s[{sM[1]}:{sM[1]+1}]")
    for i in range(2):
        p(f"v_cndmask_b32 v{vT[i]}, v{vT[2*i]}, v{vT[2*i+1]}, s[{sM[2]}:{sM[2]+1}]")
    p(f"v_cndmask_b32 v{vT[0]}, v{vT[0]}, v{vT[1]}, s[{sM[3]}:{sM[3]+1}]")
    p(f"""
    v_mov_b32 v{vT[1]}, v{vT[0]}
    v_permlane32_swap_b32 v{vT[0]}, v{vT[1]}
    v_cndmask_b32 v{vT[0]}, v{vT[0]}, v{vT[1]}, s[{sM[4]}:{sM[4]+1}]
    v_mul_f32 v{vT[2]}, {1.0/640!r}, v{vSum}
    v_mul_f32 v{vT[0]}, {1.0/640!r}, v{vT[0]}
    v_fma_f32 v{vT[0]}, -v{vT[2]}, v{vT[2]}, v{vT[0]}
    v_max_f32 v{vT[0]}, 0, v{vT[0]}
    v_add_f32 v{vT[0]}, 0x3727c5ac, v{vT[0]}
    v_rsq_f32 v{vRstd}, v{vT[0]}
    v_mul_f32 v{vNmr}, v{vT[2]}, v{vRstd}
    v_mul_f32 v{vNmr}, -1.0, v{vNmr}
    """)
    def norm_stream(s):
        out = []
        regs = [X0 + 4*s + i for i in range(4)]
        t = vT[0:8]
        for h in range(2):
            a, b = regs[2*h], regs[2*h+1]
            t0, t1, t2, t3 = t[4*h:4*h+4]
            out += [f"v_lshlrev_b32 v{t0}, 16, v{a}", f"v_and_b32 v{t1}, s{sMask}, v{a}",
                    f"v_lshlrev_b32 v{t2}, 16, v{b}", f"v_and_b32 v{t3}, s{sMask}, v{b}",
                    f"v_fma_f32 v{t0}, v{t0}, v{vRstd}, v{vNmr}", f"v_fma_f32 v{t1}, v{t1}, v{vRstd}, v{vNmr}",
                    f"v_fma_f32 v{t2}, v{t2}, v{vRstd}, v{vNmr}", f"v_fma_f32 v{t3}, v{t3}, v{vRstd}, v{vNmr}",
                    f"v_cvt_pk_bf16_f32 v{a}, v{t0}, v{t1}", f"v_cvt_pk_bf16_f32 v{b}, v{t2}, v{t3}"]
        return out
    accA = lambda u: 16 * u
    def glu_stream(ug, uu, soff):
        out = []
        for j in range(2):
            pk = vT[16 + 4*j: 20 + 4*j]
            for q in range(2):
                r0 = 8*j + 4*q
                g = vT[8:12]; u = vT[12:16]
                out += [f"v_accvgpr_read_b32 v{g[i]}, a{accA(ug)+r0+i}" for i in range(4)]
                out += [f"v_mul_f32 v{g[i]}, s{sNL2E}, v{g[i]}" for i in range(4)]
                out += [f"v_exp_f32 v{g[i]}, v{g[i]}" for i in range(4)]
                out += [f"v_accvgpr_read_b32 v{u[i]}, a{accA(uu)+r0+i}" for i in range(4)]
                out += [f"v_add_f32 v{g[i]}, 1.0, v{g[i]}" for i in range(4)]
                out += [f"v_rcp_f32 v{g[i]}, v{g[i]}" for i in range(4)]
                out += [f"v_mul_f32 v{g[i]}, v{g[i]}, v{u[i]}" for i in range(4)]
                out += [f"v_cvt_pk_bf16_f32 v{pk[2*q]}, v{g[0]}, v{g[1]}", f"v_cvt_pk_bf16_f32 v{pk[2*q+1]}, v{g[2]}, v{g[3]}"]
            out.append(f"buffer_store_dwordx4 v[{pk[0]}:{pk[3]}], v{vL16}, s[{SW}:{SW+3}], s{soff} offen offset:{1024*j} sc1")
        return out
    def qkv_stream(accbase, isA, soff):
        out = []
        for a in range(4):
            pk = vT[16 + 2*(a%2): 18 + 2*(a%2)] if isA else None
            if isA:
                g = vT[8 + 4*(a%2): 12 + 4*(a%2)]
                out += [f"v_accvgpr_read_b32 v{g[i]}, a{accbase+4*a+i}" for i in range(4)]
                src = g; pk = vT[16 + 2*a: 18 + 2*a]
            else:
                src = [accbase + 4*a + i for i in range(4)]; pk = [accbase + 4*a, accbase + 4*a + 1]
            out += [f"v_cvt_pk_bf16_f32 v{pk[0]}, v{src[0]}, v{src[1]}", f"v_cvt_pk_bf16_f32 v{pk[1]}, v{src[2]}, v{src[3]}"]
            out.append(f"s_add_u32 s{sT2}, s{soff}, {a*32768}")
            out.append(f"buffer_store_dwordx2 v[{pk[0]}:{pk[1]}], v{vQst}, s[{SW}:{SW+3}], s{sT2} offen sc1")
        return out
    if cfg.get('nofill'):
        norm_stream = lambda s: []
        glu_stream = lambda a, b, c: []
    cost = lambda l: 2 if l.startswith(('v_exp', 'v_rcp')) else 1
    def wreg(i): return f"a[{WR0+4*(i%RING)}:{WR0+4*(i%RING)+3}]"
    def tr_reads(i):
        (pas, u, s, c, off) = frags[i]
        b = WR0 + 4 * (i % RING)
        va = vTR if off < 65536 - 256 else vTR2
        o = off if off < 65536 - 256 else off - 65536
        return [f"ds_read_b64_tr_b16 a[{b}:{b+1}], v{va} offset:{o}", f"ds_read_b64_tr_b16 a[{b+2}:{b+3}], v{va} offset:{o+256}"]
    def acc(u): return f"a[{accA(u)}:{accA(u)+15}]" if u < 8 else f"v[{ACC3+16*(u-8)}:{ACC3+16*(u-8)+15}]"

    def last_m0():
        x = p.ins[-1]
        return (not isinstance(x, tuple)) and ('x', 'm0') in x.dst
    def main(i0, i1, queues, var):
        for i in range(i0, i1):
            (pas, u, s, c, off) = frags[i]
            cin = "0" if s == 0 else acc(u)
            if pas == 1 and u == 0:
                while queues['norm'] and queues['norm'][0][0] <= s:
                    p(queues['norm'].pop(0)[1])
            p(f"v_mfma_f32_32x32x16_bf16 {acc(u)}, {wreg(i)}, {xr(s)}, {cin}")
            j = i + D
            if j < NF:
                cj = frags[j][3]
                if j == chunks[cj]['first']:
                    if not cfg.get('nowait'): p.waitvm(f'w{cj}')
                    if not cfg.get('nobar'): p("s_barrier")
                    if cj + 2 < len(chunks) and cj >= 0 and not cfg.get('nodma'):
                        queues['dma'] += [(l, f'w{cj+2}') for l in wdma(cj + 2)]
                emit_stream(tr_reads(j))
            bud = BUD
            if pas == 1 and u == 0 and s + 1 < 40:
                queues['norm'] += [(s + 1, l) for l in norm_stream(s + 1)]
            while bud > 0:
                if queues['dma']:
                    l, tg = queues['dma'].pop(0); p(l, tag=tg); bud -= 1 if not l.startswith('buffer') else 1
                elif queues['norm']:
                    p(queues['norm'].pop(0)[1]); bud -= 1
                elif queues['epi'] and queues['epi'][0][0] <= i:
                    l = queues['epi'].pop(0)[1]; p(l); bud -= cost(l)
                else: break
                if last_m0():
                    if queues['norm']: p(queues['norm'].pop(0)[1]); bud -= 1
                    elif queues['epi'] and queues['epi'][0][0] <= i and not queues['epi'][0][1].startswith('buffer'):
                        l = queues['epi'].pop(0)[1]; p(l); bud -= cost(l)
    emit_stream(norm_stream(0))
    p.waitvm('w0')
    p("s_barrier")
    q = dict(dma=[(l, 'w2') for l in wdma(2)], norm=[], epi=[])
    for j in range(D): emit_stream(tr_reads(j))
    n1 = 240; n2 = 320
    stamp('main start')
    main(0, n1, q, None)
    stamp('pass1 end')
    q['epi'] += [(n1 + 1, l) for l in glu_stream(0, 1, sHoff[0])]
    q['epi'] += [(n1 + 1, l) for l in glu_stream(2, 3, sHoff[1])]
    q['epi'] += [(n1 + 1, l) for l in glu_stream(4, 5, sHoff[2])]
    main(n1, n2, q, None)
    stamp('pass2 end')
    import copy
    p(f"s_cmp_lg_u32 s{sVar}, 0\ns_cbranch_scc1 K1_VARB")
    p.save('fork')
    for var in (0, 1):
        qq = copy.deepcopy(q)
        if var == 1:
            p("K1_VARB:")
            p.restore('fork')
            qq['epi'] += [(n2 + 1, l) for l in qkv_stream(accA(6), True, sQoff[0])]
            qq['epi'] += [(n2 + 1, l) for l in qkv_stream(accA(7), True, sQoff[1])]
        else:
            qq['epi'] += [(n2 + 1, l) for l in glu_stream(6, 7, sHoff[3])]
        main(n2, NF, qq, var)
        assert not qq['dma'] and not qq['norm']
        left = [l for (_, l) in qq['epi']]
        if cfg.get('verbose'): print(f"; variant {var}: {len(left)} epilogue instrs left after main loop")
        emit_stream(left)
        for j in range(3):
            emit_stream(qkv_stream(ACC3 + 16*j, False, sQoff[2 + j]))
        if prof:
            n0 = nst[0]
            stamp('issued' if var == 0 else None)
            p("s_waitcnt vmcnt(0) lgkmcnt(0)")
            stamp('drained' if var == 0 else None)
            p(f"s_memrealtime s[{SP[nst[0]]}:{SP[nst[0]]+1}]\ns_waitcnt lgkmcnt(0)")
            vals = [SP[nst[0]]] + SP[:nst[0]]
            for n in range(16): p(f"v_mov_b32 v{100+n}, s{vals[n]}" if n < len(vals) else f"v_mov_b32 v{100+n}, 0")
            p(f"s_lshl_b32 s{sT}, s2, 2\ns_add_u32 s{sT}, s{sT}, s{sW}\ns_lshl_b32 s{sT}, s{sT}, 6\ns_add_u32 s{sT}, s{sT}, {WS_PROF}\nv_mov_b32 v116, 0\ns_mov_b64 exec, 1")
            for n in range(4): p(f"buffer_store_dwordx4 v[{100+4*n}:{103+4*n}], v116, s[{SW}:{SW+3}], s{sT} offen offset:{16*n}")
            nst[0] = n0
        p("s_endpgm")
    p("K1_END:")
    return p
```

```python
from asmlib import Prog
from k1 import srd, WS_QKV, WS_H, WS_O, WS_OT, WS_FLAG, WS_SIZE, WS_PROF

GR_SLOT = 5120; GR_N = 4
G_LDS = GR_SLOT * GR_N + 256
T_BASE = 4 * G_LDS
PS = 4096 + 32
KP = T_BASE
VP = KP + 6 * PS
K2_LDS = VP + 6 * PS + 64
WS_PROF2 = (19 << 20) + (640 << 10)
NEG = 0xc7000000
C_SC = 1.4426950408889634 / (20 ** 0.5)

def gen_k2(cfg):
    p = Prog()
    prof = cfg.get('prof', 0)
    SXS, SWD, SWO, SWS, SOUT = 4, 8, 12, 16, 20
    sW, sMt, sNt, sHd, sM = 32, 33, 34, 35, 36
    sT, sT2, sT3 = 37, 38, 39
    SP = [88, 90, 92, 94, 96, 98, 100, 74, 76, 78, 80, 82, 84, 86]
    nst = [0]
    names = cfg.setdefault('_names2', [])
    def stamp(name=None):
        if not prof: return
        i = nst[0]; nst[0] += 1
        p(f's_memtime s[{SP[i]}:{SP[i]+1}]' if i else 's_memrealtime s[88:89]')
        if name: names.append(name)
    def prof_end(role):
        if not prof: return
        p("s_waitcnt vmcnt(0) lgkmcnt(0)")
        stamp('drained' if role == 'G' else None)
        k = nst[0]
        p(f"s_memrealtime s[{SP[k]}:{SP[k]+1}]\ns_waitcnt lgkmcnt(0)")
        vals = [SP[k]] + SP[:k]
        for n in range(16): p(f"v_mov_b32 v{100+n}, s{vals[n]}" if n < len(vals) else f"v_mov_b32 v{100+n}, 0")
        off = WS_PROF2 + (65536 if role == 'T' else 0)
        p(f"s_lshl_b32 s{sT}, s2, 2\ns_and_b32 s{sT2}, s{sW}, 3\ns_add_u32 s{sT}, s{sT}, s{sT2}\ns_lshl_b32 s{sT}, s{sT}, 6\ns_add_u32 s{sT}, s{sT}, {off}\nv_mov_b32 v116, 0\ns_mov_b64 exec, 1")
        for n in range(4): p(f"buffer_store_dwordx4 v[{100+4*n}:{103+4*n}], v116, s[{SWS}:{SWS+3}], s{sT} offen offset:{16*n}")
    vLane = 1
    stamp(); stamp()
    p(f"""
    s_cmp_ge_u32 s2, 256
    s_cbranch_scc1 K2_END
    s_load_dwordx2 s[62:63], s[0:1], 0
    s_load_dwordx2 s[64:65], s[0:1], 16
    s_load_dwordx4 s[68:71], s[0:1], 48
    s_load_dwordx2 s[66:67], s[0:1], 72
    v_and_b32 v{vLane}, 63, v0
    v_lshrrev_b32 v2, 6, v0
    s_nop 0
    v_readfirstlane_b32 s{sW}, v2
    s_and_b32 s{sT}, s2, 7
    s_lshr_b32 s{sT2}, s2, 3
    s_mov_b32 s{sM}, s{sT}
    s_mov_b32 s{sHd}, s{sT2}
    s_lshl_b32 s{sMt}, s{sT}, 2
    s_and_b32 s{sT3}, s{sT2}, 3
    s_add_u32 s{sMt}, s{sMt}, s{sT3}
    s_lshr_b32 s{sNt}, s{sT2}, 2
    s_waitcnt lgkmcnt(0)
    """)
    srd(p, SWS, 66, 67, WS_SIZE)
    p(f"s_cmp_ge_u32 s{sW}, 4\ns_cbranch_scc1 K2_T")
    p.save('fork')
    srd(p, SWD, 68, 69, 1728 * 1280)
    srd(p, SWO, 64, 65, 640 * 1280)
    srd(p, SXS, 62, 63, 2048 * 1280)
    srd(p, SOUT, 70, 71, 2048 * 1280)
    vTab = [2, 3, 4, 5, 6]; vTRa = 7; vL16 = 8; vOT = 9; vXo = 10
    vT = list(range(12, 28)); vX = 28
    ACT0 = 48; NACT = 6
    ACC = 96
    sLds, sWoff, sAct0, sAct1, sFlag = 40, 41, 42, 43, 44
    def table(kind):
        for i in range(5):
            t0, t1, t2, t3, t4 = vT[0:5]
            p(f"""
            v_add_u32 v{t0}, {64*i}, v{vLane}
            v_mul_u32_u24 v{t1}, 6554, v{t0}
            v_lshrrev_b32 v{t1}, 16, v{t1}
            v_mul_u32_u24 v{t2}, 10, v{t1}
            v_sub_u32 v{t0}, v{t0}, v{t2}
            v_bfe_u32 v{t2}, v{t1}, 1, 2
            """)
            if kind in ('h', 'o'):
                p(f"""
                v_bfe_u32 v{t3}, v{t1}, 3, 1
                v_lshl_add_u32 v{t2}, v{t3}, 3, v{t2}
                v_and_b32 v{t3}, 1, v{t1}
                v_lshl_add_u32 v{t2}, v{t3}, 2, v{t2}
                v_lshrrev_b32 v{t3}, 4, v{t1}
                v_mad_u32_u24 v{t2}, v{t3}, {16 if kind == 'h' else 20}, v{t2}
                """)
            else:
                p(f"""
                v_lshrrev_b32 v{t3}, 3, v{t1}
                v_lshlrev_b32 v{t3}, 1, v{t3}
                v_and_b32 v{t4}, 1, v{t1}
                v_add_u32 v{t3}, v{t3}, v{t4}
                v_mad_u32_u24 v{t2}, v{t3}, 20, v{t2}
                v_add_u32 v{t2}, 16, v{t2}
                """)
            p(f"v_mul_u32_u24 v{t2}, 1280, v{t2}\nv_lshl_add_u32 v{vTab[i]}, v{t0}, 4, v{t2}")
    table('h')
    p(f"""
    s_mul_i32 s{sLds}, s{sW}, {G_LDS}
    s_mul_i32 s{sWoff}, s{sW}, {27*16*1280}
    s_mul_i32 s{sT}, s{sNt}, 160
    s_add_u32 s{sWoff}, s{sWoff}, s{sT}
    s_lshl_b32 s{sT}, s{sMt}, 1
    s_mul_i32 s{sAct0}, s{sT}, {108*1024}
    s_mul_i32 s{sT2}, s{sW}, {27*1024}
    s_add_u32 s{sAct0}, s{sAct0}, s{sT2}
    s_add_u32 s{sAct0}, s{sAct0}, {WS_H}
    s_add_u32 s{sAct1}, s{sAct0}, {108*1024}
    v_lshlrev_b32 v{vL16}, 4, v{vLane}
    """)
    groups = [('h', g) for g in range(14)] + [('o', g) for g in range(4)] + [('b', 0)]
    ksteps = []
    for gi, (kind, g) in enumerate(groups):
        for kk in range(2):
            if kind == 'h' and 2*g + kk >= 27: continue
            ksteps.append((gi, kind, g, kk))
    NK = len(ksteps)
    def wdma(gi):
        kind, g = groups[gi]
        out = []
        if kind == 'o' and g == 0:
            out.append(('tab', 'o'))
        if kind == 'b':
            out.append(('tab', 'b'))
        S = SWD if kind == 'h' else SWO
        n = 5 if not (kind == 'h' and g == 13) else 3
        for i in range(n):
            out.append(f"s_add_u32 m0, s{sLds}, {(gi % GR_N)*GR_SLOT + i*1024}")
            out.append(f"buffer_load_dwordx4 v{vTab[i]}, s[{S}:{S+3}], s{sWoff} offen lds")
        if kind == 'h': out.append(f"s_add_u32 s{sWoff}, s{sWoff}, {32*1280}")
        elif kind == 'o' and g < 3: out.append(f"s_add_u32 s{sWoff}, s{sWoff}, {40*1280}")
        elif kind == 'o': out.append(f"s_sub_u32 s{sWoff}, s{sWoff}, {120*1280}")
        return out
    def emit_wdma(gi):
        for l in wdma(gi):
            if isinstance(l, tuple):
                if l[1] == 'o':
                    p(f"s_mul_i32 s{sWoff}, s{sW}, {160*1280}\ns_mul_i32 s{sT}, s{sNt}, 160\ns_add_u32 s{sWoff}, s{sWoff}, s{sT}")
                table(l[1])
            else: p(l, tag=f'gw{gi}')
    osc = ' sc1' if cfg.get('osc1', 1) else ''
    def act_loads(ki):
        gi, kind, g, kk = ksteps[ki]
        r = ACT0 + 8 * (ki % NACT)
        if kind == 'h':
            ks = 2*g + kk
            for tb in range(2):
                p(f"s_add_u32 s{sT}, s{sAct0 if tb == 0 else sAct1}, {ks*1024}")
                p(f"buffer_load_dwordx4 v[{r+4*tb}:{r+4*tb+3}], v{vL16}, s[{SWS}:{SWS+3}], s{sT} offen")
        elif kind == 'o':
            hd = 2*g + kk
            for tb in range(2):
                p(f"s_add_u32 s{sT}, s{sAct0}, {tb*32*1024 + hd*1024}")
                p(f"buffer_load_dwordx4 v[{r+4*tb}:{r+4*tb+3}], v{vL16}, s[{SWS}:{SWS+3}], s{sT} offen{osc}")
        else:
            for tb in range(2):
                for e in range(2):
                    p(f"s_add_u32 s{sT}, s{sAct1}, {tb*32*256 + (4*kk + 2*e)*256}")
                    p(f"buffer_load_dwordx2 v[{r+4*tb+2*e}:{r+4*tb+2*e+1}], v{vOT}, s[{SWS}:{SWS+3}], s{sT} offen{osc}")
    def poll():
        p(f"""
        s_lshl_b32 s{sFlag}, s{sMt}, 7
        s_lshl_b32 s{sT}, s{sW}, 5
        s_add_u32 s{sFlag}, s{sFlag}, s{sT}
        s_add_u32 s{sFlag}, s{sFlag}, {WS_FLAG}
        v_and_b32 v{vT[0]}, 7, v{vLane}
        v_lshlrev_b32 v{vT[0]}, 2, v{vT[0]}
        s_mov_b32 s{sT3}, 200000
        """)
        p("G_POLL:")
        p(f"""
        buffer_load_dword v{vT[1]}, v{vT[0]}, s[{SWS}:{SWS+3}], s{sFlag} offen sc1
        s_sub_u32 s{sT3}, s{sT3}, 1
        s_waitcnt vmcnt(0)
        v_cmp_ne_u32 vcc, 1, v{vT[1]}
        s_cmp_eq_u32 s{sT3}, 0
        s_cbranch_scc1 G_POLLED
        s_cbranch_vccnz G_POLL
        """)
        p("G_POLLED:")
        p(f"""
        s_lshl_b32 s{sT}, s{sMt}, 6
        s_lshl_b32 s{sT2}, s{sW}, 3
        s_add_u32 s{sT}, s{sT}, s{sT2}
        s_lshl_b32 s{sAct0}, s{sT}, 10
        s_add_u32 s{sAct0}, s{sAct0}, {WS_O}
        s_lshl_b32 s{sAct1}, s{sT}, 8
        s_add_u32 s{sAct1}, s{sAct1}, {WS_OT}
        """)
    for gi in range(GR_N - 1):
        emit_wdma(gi)
        for ki in range(NK):
            if ksteps[ki][0] == gi and ki < NACT - 1: act_loads(ki)
    stamp('G loads issued')
    p(f"""
    v_lshrrev_b32 v{vT[0]}, 5, v{vLane}
    v_bfe_u32 v{vT[1]}, v{vLane}, 2, 2
    v_lshl_add_u32 v{vT[1]}, v{vT[1]}, 1, v{vT[0]}
    v_mul_u32_u24 v{vT[1]}, 160, v{vT[1]}
    v_bfe_u32 v{vT[2]}, v{vLane}, 4, 1
    v_lshl_add_u32 v{vT[1]}, v{vT[2]}, 5, v{vT[1]}
    v_and_b32 v{vT[2]}, 3, v{vLane}
    v_lshl_add_u32 v{vT[1]}, v{vT[2]}, 3, v{vT[1]}
    v_add_u32 v{vTRa}, s{sLds}, v{vT[1]}
    v_and_b32 v{vT[2]}, 31, v{vLane}
    v_lshlrev_b32 v{vT[3]}, 3, v{vT[2]}
    v_lshl_add_u32 v{vOT}, v{vT[0]}, 8, v{vT[3]}
    v_mul_u32_u24 v{vT[3]}, 1280, v{vT[2]}
    v_lshl_add_u32 v{vXo}, v{vT[0]}, 3, v{vT[3]}
    """)
    sXo = 45
    p(f"""
    s_lshr_b32 s{sT}, s{sW}, 1
    s_lshl_b32 s{sT2}, s{sMt}, 1
    s_add_u32 s{sT}, s{sT}, s{sT2}
    s_mul_i32 s{sXo}, s{sT}, {32*1280}
    s_mul_i32 s{sT}, s{sNt}, 160
    s_add_u32 s{sXo}, s{sXo}, s{sT}
    s_and_b32 s{sT}, s{sW}, 1
    s_mul_i32 s{sT}, s{sT}, 80
    s_add_u32 s{sXo}, s{sXo}, s{sT}
    """)
    WF0 = 0; WRING = 8; DW = 3
    wfr = [(ki, u) for ki in range(NK) for u in range(3)]
    def tr_reads(fi):
        ki, u = wfr[fi]
        gi, kind, g, kk = ksteps[ki]
        b = WF0 + 4 * (fi % WRING)
        off = (gi % GR_N) * GR_SLOT + kk * 2560 + u * 64
        p(f"ds_read_b64_tr_b16 a[{b}:{b+1}], v{vTRa} offset:{off}")
        p(f"ds_read_b64_tr_b16 a[{b+2}:{b+3}], v{vTRa} offset:{off+1280}")
    acc = lambda tb, u: f"v[{ACC+16*(3*tb+u)}:{ACC+16*(3*tb+u)+15}]"
    POLLK = cfg.get('pollk', 27 - (NACT - 1))
    first_o = 27
    p.waitvm('gw0')
    for fi in range(DW): tr_reads(fi)
    barrier_at = cfg.get('gbar', 1)
    for ki in range(NK):
        gi, kind, g, kk = ksteps[ki]
        r = ACT0 + 8 * (ki % NACT)
        if ki == barrier_at: p("s_barrier")
        for u in range(3):
            fi = 3*ki + u
            b = WF0 + 4 * (fi % WRING)
            for tb in range(2):
                cin = "0" if ki == 0 else acc(tb, u)
                p(f"v_mfma_f32_32x32x16_bf16 {acc(tb,u)}, a[{b}:{b+3}], v[{r+4*tb}:{r+4*tb+3}], {cin}")
                if tb == 0:
                    fj = fi + DW
                    if fj < len(wfr):
                        kj = wfr[fj][0]; gj = ksteps[kj][0]
                        if wfr[fj][1] == 0 and ksteps[kj][3] == 0: p.waitvm(f'gw{gj}')
                        tr_reads(fj)
            if u == 0 and kk == 0 and gi + GR_N - 1 < len(groups):
                emit_wdma(gi + GR_N - 1)
        kn = ki + NACT - 1
        if kn < NK:
            if kn == first_o:
                stamp('G before poll'); poll(); stamp('G polled')
            act_loads(kn)
        if ki == 8 and True:
            for i in range(5):
                p(f"buffer_load_dwordx2 v[{vX+2*i}:{vX+2*i+1}], v{vXo}, s[{SXS}:{SXS+3}], s{sXo} offen offset:{16*i}", tag='xres')
    stamp('G main done')
    def greg(tb, a): return ACC + 16*(3*tb + a//4) + 4*(a % 4)
    p(f"v_add_u32 v{vT[0]}, s{sLds}, v{vL16}")
    for wv in range(4):
        if wv < 3: p(f"s_cmp_lg_u32 s{sW}, {wv}\ns_cbranch_scc1 G_RED{wv+1}")
        if wv == 0: p.save('red')
        else: pass
        n = 0
        for tb in range(2):
            for a in range(10):
                own = 2*tb + (1 if a >= 5 else 0)
                if own == wv: continue
                slot = ((own - wv) % 4 - 1) * 5 + a % 5
                r = greg(tb, a)
                p(f"ds_write_b128 v{vT[0]}, v[{r}:{r+3}] offset:{slot*1024}")
        p("s_waitcnt lgkmcnt(0)\ns_barrier")
        tbo, a0 = wv >> 1, 5 * (wv & 1)
        R = ACT0
        for src in range(1, 4):
            sw = (wv + src) % 4
            rel = (wv - sw) % 4
            p(f"v_mov_b32 v{vT[1]}, {sw*G_LDS}\nv_add_u32 v{vT[1]}, v{vT[1]}, v{vL16}")
            for i in range(5):
                p(f"ds_read_b128 v[{R+4*i}:{R+4*i+3}], v{vT[1]} offset:{((rel-1)*5 + i)*1024}")
            for i in range(5):
                r = greg(tbo, a0 + i)
                for e in range(4): p(f"v_add_f32 v{r+e}, v{r+e}, v{R+4*i+e}")
        for i in range(5):
            r = greg(tbo, a0 + i)
            x0, x1 = vX + 2*i, vX + 2*i + 1
            t = vT[2:6]
            p(f"""
            v_lshlrev_b32 v{t[0]}, 16, v{x0}
            v_and_b32 v{t[1]}, 0xffff0000, v{x0}
            v_lshlrev_b32 v{t[2]}, 16, v{x1}
            v_and_b32 v{t[3]}, 0xffff0000, v{x1}
            v_add_f32 v{r}, v{r}, v{t[0]}
            v_add_f32 v{r+1}, v{r+1}, v{t[1]}
            v_add_f32 v{r+2}, v{r+2}, v{t[2]}
            v_add_f32 v{r+3}, v{r+3}, v{t[3]}
            v_cvt_pk_bf16_f32 v{r}, v{r}, v{r+1}
            v_cvt_pk_bf16_f32 v{r+1}, v{r+2}, v{r+3}
            buffer_store_dwordx2 v[{r}:{r+1}], v{vXo}, s[{SOUT}:{SOUT+3}], s{sXo} offen offset:{16*i}
            """)
        n0 = nst[0]
        if prof:
            stamp('G out issued' if wv == 0 else None)
            prof_end('G' if wv == 0 else 'G2')
            nst[0] = n0
        p("s_endpgm")
        if wv < 3:
            p(f"G_RED{wv+1}:")
            p.restore('red')
    p("K2_T:")
    p.restore('fork')
    nst[0] = 2
    tnames = []
    vKa, vVa, vQo, vHH = 2, 3, 4, 5
    vT = list(range(6, 16)); vQ = 16
    vMx, vMc, vDen = 28, 29, 30
    S0 = 48
    sTw, sKo, sMk = 40, 41, 42
    p(f"""
    s_sub_u32 s{sTw}, s{sW}, 4
    s_lshl_b32 s{sT}, s{sM}, 8
    s_sub_u32 s{sT}, s{sT}, 256
    s_lshl_b32 s{sT}, s{sT}, 3
    s_mul_i32 s{sT2}, s{sHd}, {5*16384}
    s_add_u32 s{sKo}, s{sT}, s{sT2}
    s_add_u32 s{sKo}, s{sKo}, {160*16384 + WS_QKV}
    v_lshlrev_b32 v{vT[0]}, 4, v{vLane}
    """)
    p(f"s_lshl_b32 s{sT2}, s{sTw}, 10\ns_add_u32 s{sKo}, s{sKo}, s{sT2}")
    for kv in range(2):
        for G in range(5):
            base = (KP if kv == 0 else VP) + G * PS
            p(f"s_add_u32 m0, s{sT2}, {base}\ns_add_u32 s{sT}, s{sKo}, {kv*160*16384 + G*16384}")
            p(f"buffer_load_dwordx4 v{vT[0]}, s[{SWS}:{SWS+3}], s{sT} offen lds", tag='kv')
    p(f"""
    v_lshrrev_b32 v{vHH}, 5, v{vLane}
    v_and_b32 v{vT[1]}, 31, v{vLane}
    v_lshlrev_b32 v{vT[2]}, 3, v{vT[1]}
    v_lshl_add_u32 v{vQo}, v{vHH}, 15, v{vT[2]}
    s_lshl_b32 s{sT}, s{sM}, 3
    s_lshl_b32 s{sT3}, s{sTw}, 1
    s_add_u32 s{sT}, s{sT}, s{sT3}
    s_lshl_b32 s{sT}, s{sT}, 8
    s_mul_i32 s{sT3}, s{sHd}, {5*16384}
    s_add_u32 s{sT}, s{sT}, s{sT3}
    s_add_u32 s{sT}, s{sT}, {WS_QKV}
    """)
    for qb in range(2):
        q = vQ + 6*qb
        p(f"""
        s_add_u32 s{sT3}, s{sT}, {qb*256}
        buffer_load_dwordx2 v[{q}:{q+1}], v{vQo}, s[{SWS}:{SWS+3}], s{sT3} offen
        s_add_u32 s{sT3}, s{sT}, {qb*256 + 16384}
        buffer_load_dwordx2 v[{q+2}:{q+3}], v{vQo}, s[{SWS}:{SWS+3}], s{sT3} offen
        s_add_u32 s{sT3}, s{sT}, {qb*256 + 4*16384}
        buffer_load_dwordx2 v[{q+4}:{q+5}], v{vT[2]}, s[{SWS}:{SWS+3}], s{sT3} offen
        """)
    p(f"""
    s_cmp_eq_u32 s{sM}, 0
    s_cselect_b32 s{sT}, 0xc700, 0
    s_cmp_lt_u32 s{sTw}, 2
    s_cselect_b32 s{sT}, s{sT}, 0
    v_mov_b32 v{vT[4]}, s{sT}
    v_mov_b32 v{vT[5]}, 0
    v_mov_b32 v{vT[6]}, s{sT}
    v_mov_b32 v{vT[7]}, 0
    v_add_u32 v{vT[3]}, s{sT2}, v{vT[0]}
    ds_write_b128 v{vT[3]}, v[{vT[4]}:{vT[7]}] offset:{KP + 5*PS - 65536 if KP + 5*PS >= 65536 else KP + 5*PS}
    """.replace(f"v_add_u32 v{vT[3]}, s{sT2}, v{vT[0]}", f"v_add_u32 v{vT[3]}, s{sT2}, v{vT[0]}\nv_add_u32 v{vT[3]}, 0x10000, v{vT[3]}"))
    assert KP >= 65536 and vT[4] % 2 == 0
    p(f"""
    v_mov_b32 v{vT[4]}, 0x3f80
    v_mov_b32 v{vT[6]}, 0x3f80
    ds_write_b128 v{vT[3]}, v[{vT[4]}:{vT[7]}] offset:{VP + 5*PS - 65536}
    """)
    p(f"""
    v_mul_u32_u24 v{vT[3]}, {2*PS}, v{vHH}
    v_lshl_add_u32 v{vT[3]}, v{vT[1]}, 3, v{vT[3]}
    s_lshl_b32 s{sT}, s{sTw}, 9
    s_add_u32 s{sT}, s{sT}, {KP}
    v_add_u32 v{vKa}, s{sT}, v{vT[3]}
    v_mul_u32_u24 v{vT[3]}, {PS}, v{vHH}
    v_lshl_add_u32 v{vT[3]}, v{vT[1]}, 3, v{vT[3]}
    s_add_u32 s{sT3}, s{sT}, {4*PS}
    v_add_u32 v{vT[8]}, s{sT3}, v{vT[3]}
    """)
    vKt = vT[8]
    p(f"""
    v_bfe_u32 v{vT[3]}, v{vLane}, 4, 1
    v_and_b32 v{vT[4]}, 3, v{vLane}
    v_lshl_add_u32 v{vT[3]}, v{vT[3]}, 2, v{vT[4]}
    v_min_u32 v{vT[3]}, 5, v{vT[3]}
    v_mul_u32_u24 v{vT[3]}, {PS}, v{vT[3]}
    v_bfe_u32 v{vT[4]}, v{vLane}, 2, 2
    v_lshl_add_u32 v{vT[4]}, v{vHH}, 2, v{vT[4]}
    v_lshl_add_u32 v{vT[3]}, v{vT[4]}, 3, v{vT[3]}
    s_add_u32 s{sT3}, s{sT}, {VP - KP}
    v_add_u32 v{vVa}, s{sT3}, v{vT[3]}
    """)
    p(f"v_lshlrev_b32 v{vT[3]}, 2, v{vHH}\nv_sub_u32 v{vT[3]}, v{vT[1]}, v{vT[3]}")
    for r in range(16):
        p(f"v_cmp_le_i32 s[{sMk+2*r}:{sMk+2*r+1}], {8*(r>>2) + (r&3)}, v{vT[3]}")
    p(f"v_cmp_eq_u32 vcc, 1, v{vHH}")
    for qb in range(2):
        q = vQ + 6*qb
        p(f"v_mov_b32 v{vT[4]}, 0x3f80\nv_cndmask_b32 v{q+4}, v{q+4}, v{vT[4]}, vcc\nv_cndmask_b32 v{q+5}, v{q+5}, 0, vcc".replace(f"v_cndmask_b32 v{q+5}, v{q+5}, 0, vcc", f"v_mov_b32 v{vT[5]}, 0\nv_cndmask_b32 v{q+5}, v{q+5}, v{vT[5]}, vcc"))
    p(f"v_mov_b32 v{vT[9]}, {NEG}")
    vNeg = vT[9]
    p.waitvm('kv')
    p("s_waitcnt lgkmcnt(0)\ns_barrier")
    stamp()
    KF = 16
    VF = 40
    OA = 0
    St = lambda n: S0 + 16*n
    def kread(qb, n):
        b = KF + 8 * (n % 3)
        off = (qb + n) * 256
        p(f"ds_read_b64 a[{b}:{b+1}], v{vKa} offset:{off}\nds_read_b64 a[{b+2}:{b+3}], v{vKa} offset:{off+PS}\nds_read_b64 a[{b+4}:{b+5}], v{vKt} offset:{off}")
    def smfma(qb, n):
        b = KF + 8 * (n % 3); q = vQ + 6*qb; s = St(n)
        cin = "0"
        if n == 0 or n == 8:
            for r in range(16):
                m = f"s[{sMk+2*r}:{sMk+2*r+1}]"
                if n == 8: p(f"v_cndmask_b32 v{s+r}, v{vNeg}, 0, {m}")
                else: p(f"v_cndmask_b32 v{s+r}, 0, v{vNeg}, {m}")
            cin = f"v[{s}:{s+15}]"
        p(f"v_mfma_f32_32x32x16_bf16 v[{s}:{s+15}], a[{b}:{b+3}], v[{q}:{q+3}], {cin}")
        p(f"v_mfma_f32_32x32x8_bf16 v[{s}:{s+15}], a[{b+4}:{b+5}], v[{q+4}:{q+5}], v[{s}:{s+15}]")
    def vread(qb, n):
        for j in range(2):
            b = VF + 4 * ((2*n + j) % 6)
            off = (qb + n) * 256 + j * 128
            p(f"ds_read_b64_tr_b16 a[{b}:{b+1}], v{vVa} offset:{off}\nds_read_b64_tr_b16 a[{b+2}:{b+3}], v{vVa} offset:{off+64}")
    sC = 39
    p(f"s_mov_b32 s{sC}, {C_SC!r}")
    for qb in range(2):
        kread(qb, 0); kread(qb, 1)
        for n in range(9):
            if n + 2 < 9: kread(qb, n + 2)
            smfma(qb, n)
        for n in range(9):
            s = St(n)
            for r in range(0, 16, 2):
                if n == 0 and r == 0: p(f"v_max_f32 v{vMx}, v{s}, v{s+1}")
                else: p(f"v_max3_f32 v{vMx}, v{vMx}, v{s+r}, v{s+r+1}")
        p(f"""
        v_mov_b32 v{vMc}, v{vMx}
        v_permlane32_swap_b32 v{vMx}, v{vMc}
        v_max_f32 v{vMx}, v{vMx}, v{vMc}
        v_mul_f32 v{vMc}, s{sC}, v{vMx}
        """)
        vread(qb, 0); vread(qb, 1)
        for n in range(9):
            s = St(n)
            if n + 2 < 9: vread(qb, n + 2)
            for r in range(16): p(f"v_fma_f32 v{s+r}, v{s+r}, s{sC}, -v{vMc}")
            for r in range(16): p(f"v_exp_f32 v{s+r}, v{s+r}")
            for r in range(8): p(f"v_cvt_pk_bf16_f32 v{s+r}, v{s+2*r}, v{s+2*r+1}")
            for j in range(2):
                b = VF + 4 * ((2*n + j) % 6)
                cin = "0" if (n == 0 and j == 0) else f"a[{OA}:{OA+15}]"
                p(f"v_mfma_f32_32x32x16_bf16 a[{OA}:{OA+15}], a[{b}:{b+3}], v[{s+4*j}:{s+4*j+3}], {cin}")
        o = list(range(32, 44))
        p(f"v_accvgpr_read_b32 v{vDen}, a{OA+12}")
        for r in range(12): p(f"v_accvgpr_read_b32 v{o[r]}, a{OA+r}")
        p(f"v_rcp_f32 v{vDen}, v{vDen}")
        for r in range(12): p(f"v_mul_f32 v{o[r]}, v{o[r]}, v{vDen}")
        for r in range(6): p(f"v_cvt_pk_bf16_f32 v{o[r]}, v{o[2*r]}, v{o[2*r+1]}")
        p(f"""
        s_lshl_b32 s{sT}, s{sM}, 3
        s_lshl_b32 s{sT2}, s{sTw}, 1
        s_add_u32 s{sT}, s{sT}, s{sT2}
        s_add_u32 s{sT}, s{sT}, {qb}
        s_lshl_b32 s{sT}, s{sT}, 5
        s_add_u32 s{sT}, s{sT}, s{sHd}
        s_lshl_b32 s{sT2}, s{sT}, 10
        s_add_u32 s{sT2}, s{sT2}, {WS_O}
        s_lshl_b32 s{sT}, s{sT}, 8
        s_add_u32 s{sT}, s{sT}, {WS_OT}
        v_lshlrev_b32 v{vT[0]}, 4, v{vLane}
        v_lshlrev_b32 v{vT[2]}, 3, v{vLane}
        buffer_store_dwordx4 v[{o[0]}:{o[3]}], v{vT[0]}, s[{SWS}:{SWS+3}], s{sT2} offen sc1
        s_mov_b32 exec_hi, 0
        buffer_store_dwordx2 v[{o[4]}:{o[5]}], v{vT[2]}, s[{SWS}:{SWS+3}], s{sT} offen sc1
        s_mov_b64 exec, -1
        """)
        stamp()
    p(f"""
    s_lshl_b32 s{sT}, s{sM}, 2
    s_add_u32 s{sT}, s{sT}, s{sTw}
    s_lshl_b32 s{sT}, s{sT}, 5
    s_add_u32 s{sT}, s{sT}, s{sHd}
    s_lshl_b32 s{sT}, s{sT}, 2
    s_add_u32 s{sT}, s{sT}, {WS_FLAG}
    v_mov_b32 v{vT[4]}, 1
    v_mov_b32 v{vT[5]}, 0
    s_waitcnt vmcnt(0)
    s_mov_b64 exec, 1
    buffer_store_dword v{vT[4]}, v{vT[5]}, s[{SWS}:{SWS+3}], s{sT} offen sc1
    """)
    if prof:
        p("s_mov_b64 exec, -1")
        while nst[0] < 2 + len(names) - 1: stamp()
        prof_end('T')
    p("s_endpgm")
    p("K2_END:")
    return p
```

```python
import sys, json
sys.path.insert(0, 'gen')
import k1, k1b
NAME = 'parallel_sum__sliding_block__glu_gated_glu__prompt'
HEAD = open('cdna_kernels/%s.s.ref' % NAME).read().split('; @launch')[0]
HEAD = '\n'.join(l for l in HEAD.split('\n') if l.startswith(';') and 'Override launch' not in l and 'grid=ceil' not in l) + '\n'

def desc(name, vgpr, agpr, sgpr=102):
    acc = (vgpr + 3) // 4 * 4
    tot = acc + agpr
    return f""".section .rodata,"a"
.p2align 6
.amdhsa_kernel {name}
  .amdhsa_next_free_vgpr {tot}
  .amdhsa_next_free_sgpr {sgpr}
  .amdhsa_accum_offset {acc}
  .amdhsa_group_segment_fixed_size 0
  .amdhsa_kernarg_size 80
  .amdhsa_user_sgpr_count 2
  .amdhsa_user_sgpr_kernarg_segment_ptr 1
  .amdhsa_system_sgpr_workgroup_id_x 1
.end_amdhsa_kernel
.text
"""
def kernel(name, body, vgpr, agpr):
    return f""".globl {name}
.p2align 8
.type {name},@function
{name}:
{body}
s_endpgm
""" + desc(name, vgpr, agpr)

def build(cfg, out):
    ks = []
    st = {}
    launches = []
    if cfg.get('k1', 1):
        b1 = (k1b if cfg.get('k1v', 2) == 2 else k1).gen_k1(cfg).finalize(st); print('k1', st, len(b1.split('\n')), 'lines')
        ks.append(kernel('k1_kernel', b1, 256, 256)); launches.append('; @launch kernel=k1_kernel grid=(256,1,1) block=(256,1,1) lds=163840')
    if cfg.get('k2', 1):
        from k2 import gen_k2, K2_LDS
        b2 = gen_k2(cfg).finalize(st); print('k2', st, len(b2.split('\n')), 'lines')
        ks.append(kernel('k2_kernel', b2, cfg.get('k2v', 192), cfg.get('k2a', 64))); launches.append(f'; @launch kernel=k2_kernel grid=(256,1,1) block=(512,1,1) lds={K2_LDS}')
    json.dump({'k1': cfg.get('_names', []), 'k2': cfg.get('_names2', [])}, open(out + '.names', 'w'))
    txt = HEAD + '\n'.join(launches) + '\n.amdgcn_target "amdgcn-amd-amdhsa--gfx950"\n.text\n' + ''.join(ks)
    open(out, 'w').write(txt)
    return txt

if __name__ == '__main__':
    cfg = json.loads(sys.argv[2]) if len(sys.argv) > 2 else {}
    build(cfg, sys.argv[1])
```

```python
from asmlib import Prog
from k1 import srd, WS_QKV, WS_H, WS_O, WS_OT, WS_FLAG, WS_SIZE, WS_PROF, S_G, S_Q
WS_WF = 20 << 20
WS_SIZE2 = 24 << 20
SLOT = 32 * 1024; NSLOT = 4
XB = NSLOT * SLOT

def gen_k1(cfg):
    D = cfg.get('D', 5); RING = cfg.get('RING', 8); BUD = cfg.get('BUD', 4)
    ROT = cfg.get('rot', 1)
    p = Prog()
    prof = cfg.get('prof', 0)
    SP = [88, 90, 92, 94, 96, 98, 100, 74, 76, 78, 80, 82, 84, 86]
    nst = [0]
    def stamp(name=None):
        if not prof: return
        i = nst[0]; nst[0] += 1
        p(f's_memtime s[{SP[i]}:{SP[i]+1}]' if i else 's_memrealtime s[88:89]')
        if name: cfg.setdefault('_names', []).append(name)
    SX, SQ, SG, SU, SW, S1, S2 = 4, 8, 12, 16, 20, 24, 28
    sW, sMi, sNi, sVar = 32, 33, 34, 35
    sXoff = 36
    sB = [37, 38, 39, 40]
    sRG, sRX, sK23 = 41, 42, 43
    sB2 = [44, 45]
    sR2 = 46
    sWm, sW6 = 47, 48
    sMask, sT, sT2, sT3 = 49, 50, 51, 52
    sHoff = [53, 54, 55, 56]
    sQoff = [57, 58, 59, 60, 61]
    sXl, sNL2E, sRot = 62, 63, 64
    sWo = 2 * 0 + 86
    sM = [66, 68, 70, 72, 84]
    vLane, vXe, vXo = 1, 2, 3
    vXA = [4, 5, 6, 7]; vXB = [8, 9, 10, 11]
    vDe, vDo, vS = 12, 13, 14
    vU = [15, 16, 17, 18]
    vP01, vP23, vPq2, vPs2 = 19, 20, 21, 22
    vL16, vQst, vRstd, vNmr = 23, 24, 25, 26
    vT = list(range(28, 48))
    vHi = {vDe: 4, vDo: 5, vS: 6, vU[0]: 7, vU[1]: 8, vU[2]: 9, vU[3]: 10}
    vSum = 44; vOne = 40
    ACC3 = 48; X0 = 96; WR0 = 128
    GR = ACC3 + 32
    xr = lambda s: f"v[{X0+4*s}:{X0+4*s+3}]"
    stamp(); stamp()
    p(f"""
    s_cmp_ge_u32 s2, 256
    s_cbranch_scc1 K1_END
    s_load_dwordx4 s[76:79], s[0:1], 0
    s_load_dwordx4 s[80:83], s[0:1], 32
    s_load_dwordx2 s[84:85], s[0:1], 72
    s_load_dwordx2 s[74:75], s[0:1], 48
    s_load_dwordx2 s[{sWo}:{sWo+1}], s[0:1], 16
    v_and_b32 v{vLane}, 63, v0
    v_lshrrev_b32 v{vT[0]}, 6, v0
    s_and_b32 s{sT}, s2, 3
    v_readfirstlane_b32 s{sW}, v{vT[0]}
    s_lshl_b32 s{sT}, s{sT}, 2
    s_bfe_u32 s{sT2}, s2, 0x20003
    s_add_u32 s{sMi}, s{sT}, s{sT2}
    s_bfe_u32 s{sT}, s2, 0x10002
    s_lshl_b32 s{sT}, s{sT}, 3
    s_lshr_b32 s{sT3}, s2, 5
    s_add_u32 s{sNi}, s{sT}, s{sT3}
    """)
    if ROT:
        p(f"""
        s_mul_i32 s{sT}, s{sT2}, 5
        s_lshr_b32 s{sT}, s{sT}, 1
        s_add_u32 s{sRot}, s{sT}, s{sT3}
        s_cmp_ge_u32 s{sRot}, 10
        s_cselect_b32 s{sT}, 10, 0
        s_sub_u32 s{sRot}, s{sRot}, s{sT}
        """)
    else:
        p(f"s_mov_b32 s{sRot}, 0")
    p(f"""
    s_lshr_b32 s{sVar}, s{sNi}, 3
    s_lshl_b32 s{sT}, s{sMi}, 2
    s_add_u32 s{sT}, s{sT}, s{sW}
    s_mul_i32 s{sXoff}, s{sT}, {32*1280}
    s_lshl_b32 s{sXl}, s{sW}, 13
    s_add_u32 s{sXl}, s{sXl}, {XB}
    s_lshr_b32 s{sT}, s{sW}, 1
    s_lshl_b32 s{sWm}, s{sT}, 13
    s_and_b32 s{sT}, s{sW}, 1
    s_lshl_b32 s{sT}, s{sT}, 12
    s_add_u32 s{sWm}, s{sWm}, s{sT}
    v_lshrrev_b32 v{vT[0]}, 3, v{vLane}
    v_mul_u32_u24 v{vT[0]}, 1280, v{vT[0]}
    v_lshrrev_b32 v{vT[1]}, 4, v{vLane}
    v_and_b32 v{vT[2]}, 7, v{vLane}
    v_xor_b32 v{vT[3]}, v{vT[2]}, v{vT[1]}
    v_xor_b32 v{vT[4]}, 4, v{vT[3]}
    v_lshl_add_u32 v{vXe}, v{vT[3]}, 4, v{vT[0]}
    v_lshl_add_u32 v{vXo}, v{vT[4]}, 4, v{vT[0]}
    s_lshl_b32 s{sT3}, s{sRot}, 7
    s_waitcnt lgkmcnt(0)
    """)
    srd(p, SX, 76, 77, 2048 * 1280)
    sXc = 65
    p(f"s_mov_b32 s{sXc}, s{sT3}")
    xplace = [('W', 0), ('W', 16384), ('W', SLOT), ('W', SLOT + 16384), ('W', 2*SLOT), ('W', 2*SLOT + 16384), ('W', 3*SLOT), ('W', 3*SLOT + 16384), ('X', 0), ('X', 4096)]
    def xdma(c):
        kind, off = xplace[c]
        out = [f"s_add_u32 s{sT2}, s{sXoff}, s{sXc}"]
        for i in range(4):
            out.append(f"s_add_u32 m0, s{sXl if kind == 'X' else sWm}, {off + i*1024}")
            out.append(f"s_add_u32 s{sT}, s{sT2}, {8*i*1280}")
            out.append(f"buffer_load_dwordx4 v{vXe if i%2==0 else vXo}, s[{SX}:{SX+3}], s{sT} offen lds")
        out += [f"s_add_u32 s{sXc}, s{sXc}, 128", f"s_cmp_ge_u32 s{sXc}, 1280", f"s_cselect_b32 s{sT}, 1280, 0", f"s_sub_u32 s{sXc}, s{sXc}, s{sT}"]
        return out
    def emit_stream(lines, tag=None):
        for l in lines: p(l, tag=tag)
    NF0 = cfg.get('nfirst', 3)
    for c in range(NF0): emit_stream(xdma(c), tag=f'x{c}')
    stamp('x issued')
    srd(p, SQ, 78, 79, 640 * S_Q)
    srd(p, SG, 80, 81, 640 * S_G)
    srd(p, SU, 82, 83, 640 * S_G)
    srd(p, SW, 84, 85, WS_SIZE2)
    if cfg.get('pf', 1):
        p(f"""
        s_getpc_b64 s[76:77]
        v_lshlrev_b32 v{vT[5]}, 7, v0
        s_and_b32 s76, s76, 0xffffff00
        global_load_dword v{vT[7]}, v{vT[5]}, s[76:77]
        """, tag='pf')
    sPd, sPs = 66, 67
    sQd1, sQd2, sQs = 68, 69, 70
    p(f"""
    s_mul_i32 s{sT}, s{sNi}, 3
    s_add_u32 s{sT}, s{sT}, 8
    s_and_b32 s{sT2}, s{sT}, 1
    s_add_u32 s{sPd}, s{sT}, s{sT2}
    s_min_u32 s{sPd}, s{sPd}, 52
    s_xor_b32 s{sT2}, s{sT2}, 1
    s_lshl_b32 s{sT2}, s{sT2}, 1
    s_add_u32 s{sPs}, s{sT}, s{sT2}
    s_min_u32 s{sPs}, s{sPs}, 53
    s_lshl_b32 s{sT}, s{sNi}, 2
    s_add_u32 s{sT2}, s{sT}, 2
    s_cmp_eq_u32 s{sVar}, 0
    s_cselect_b32 s{sPd}, s{sT}, s{sPd}
    s_cselect_b32 s{sPs}, s{sT2}, s{sPs}
    """)
    p(f"""
    s_mul_i32 s{sT}, s{sNi}, 3
    s_mul_i32 s{sT2}, s{sNi}, 5
    s_sub_u32 s{sT2}, s{sT2}, 16
    s_cmp_eq_u32 s{sVar}, 0
    s_cselect_b32 s{sT}, s{sT}, s{sT2}
    s_cselect_b32 s{sT3}, 0, 2
    s_and_b32 s{sT2}, s{sT}, 1
    s_add_u32 s{sQd1}, s{sT}, s{sT2}
    s_add_u32 s{sQd2}, s{sQd1}, s{sT3}
    s_add_u32 s{sT3}, s{sT3}, 2
    s_cmp_eq_u32 s{sT2}, 0
    s_cselect_b32 s{sT3}, s{sT3}, 0
    s_add_u32 s{sQs}, s{sT}, s{sT3}
    s_min_u32 s{sQd1}, s{sQd1}, 58
    s_min_u32 s{sQd2}, s{sQd2}, 58
    s_min_u32 s{sQs}, s{sQs}, 59
    """)
    p(f"s_lshl_b32 s{sT3}, s{sMi}, 2\ns_add_u32 s{sT3}, s{sT3}, s{sW}\ns_mul_i32 s{sT}, s{sT3}, {54*2048}\ns_add_u32 s{sT}, s{sT}, {WS_H}")
    for j, (base, add) in enumerate(((sPd, 0), (sPd, 1), (sPs, 0), (sPs, 1))):
        p(f"s_add_u32 s{sT2}, s{base}, {add}\ns_min_u32 s{sT2}, s{sT2}, 53\ns_lshl_b32 s{sT2}, s{sT2}, 11\ns_add_u32 s{sHoff[j]}, s{sT2}, s{sT}")
    p(f"s_lshl_b32 s{sT}, s{sT3}, 8\ns_add_u32 s{sT}, s{sT}, {WS_QKV}")
    for j, (base, add) in enumerate(((sQd1, 0), (sQd1, 1), (sQd2, 0), (sQd2, 1), (sQs, 0))):
        p(f"s_add_u32 s{sT2}, s{base}, {add}\ns_lshl_b32 s{sT2}, s{sT2}, 17\ns_add_u32 s{sQoff[j]}, s{sT2}, s{sT}")
    sSp = 71
    p(f"""
    s_and_b32 s{sT}, s{sW}, 1
    s_and_b32 s{sSp}, s{sT}, s{sVar}
    s_cmp_eq_u32 s{sT}, 0
    s_cselect_b32 s{sT2}, s{sPd}, s{sPs}
    s_lshl_b32 s{sT2}, s{sT2}, 6
    s_lshr_b32 s{sT3}, s{sW}, 1
    s_mul_i32 s{sT}, s{sT3}, {16*S_G}
    s_add_u32 s{sT2}, s{sT2}, s{sT}
    s_mov_b32 s{sB[0]}, s{sT2}
    s_add_u32 s{sB[1]}, s{sT2}, {8*S_G}
    s_mov_b32 s{sB[2]}, s{sT2}
    s_add_u32 s{sB[3]}, s{sT2}, {8*S_G}
    s_lshl_b32 s{sT}, s{sQd1}, 6
    s_mul_i32 s{sT3}, s{sT3}, {16*S_Q}
    s_add_u32 s{sT}, s{sT}, s{sT3}
    s_add_u32 s{sT3}, s{sT}, {8*S_Q}
    s_cmp_eq_u32 s{sSp}, 1
    s_cselect_b32 s{sB[1]}, s{sT2}, s{sB[1]}
    s_cselect_b32 s{sB[2]}, s{sT}, s{sB[2]}
    s_cselect_b32 s{sB[3]}, s{sT3}, s{sB[3]}
    s_cselect_b32 s{S1}, s{SU}, s{SG}
    s_cselect_b32 s{S1+1}, s{SU+1}, s{SG+1}
    s_mov_b32 s{S1+2}, {640*S_G}
    s_mov_b32 s{S1+3}, 0x20000
    s_cselect_b32 s{S2}, s{SQ}, s{SU}
    s_cselect_b32 s{S2+1}, s{SQ+1}, s{SU+1}
    s_cselect_b32 s{S2+2}, s{SQ+2}, s{SU+2}
    s_mov_b32 s{S2+3}, 0x20000
    s_mov_b32 s{sK23}, {64*S_G}
    s_cselect_b32 s{sK23}, {64*S_Q}, s{sK23}
    s_mul_i32 s{sRG}, s{sRot}, {64*S_G}
    s_mul_i32 s{sRX}, s{sRot}, s{sK23}
    """)
    p(f"""
    s_and_b32 s{sT}, s{sW}, 1
    s_mul_i32 s{sT}, s{sT}, {32*S_Q}
    s_lshl_b32 s{sB2[0]}, s{sQd2}, 6
    s_add_u32 s{sB2[0]}, s{sB2[0]}, s{sT}
    s_lshl_b32 s{sB2[1]}, s{sQs}, 6
    s_add_u32 s{sB2[1]}, s{sB2[1]}, s{sT}
    s_lshr_b32 s{sT}, s{sW}, 1
    s_add_u32 s{sT}, s{sT}, s{sRot}
    s_cmp_ge_u32 s{sT}, 10
    s_cselect_b32 s{sT2}, 10, 0
    s_sub_u32 s{sT}, s{sT}, s{sT2}
    s_mul_i32 s{sR2}, s{sT}, {64*S_Q}
    s_mul_i32 s{sW6}, s{sW}, 6144
    s_mov_b32 s{sMask}, 0xffff0000
    s_mov_b32 s{sNL2E}, 0xbfb8aa3b
    """)
    t = vT
    p(f"""
    v_lshrrev_b32 v{t[0]}, 3, v{vLane}
    v_bfe_u32 v{t[1]}, v{vLane}, 4, 1
    v_lshlrev_b32 v{t[1]}, 2, v{t[1]}
    v_and_b32 v{t[2]}, 7, v{vLane}
    v_xor_b32 v{t[1]}, v{t[1]}, v{t[2]}
    v_lshlrev_b32 v{t[1]}, 4, v{t[1]}
    v_mul_u32_u24 v{t[2]}, {S_G}, v{t[0]}
    v_add_u32 v{t[2]}, v{t[2]}, v{t[1]}
    v_mul_u32_u24 v{vPq2}, {S_Q}, v{t[0]}
    v_add_u32 v{vPq2}, v{vPq2}, v{t[1]}
    v_bfe_u32 v{t[3]}, v{vLane}, 2, 2
    v_lshrrev_b32 v{t[4]}, 5, v{vLane}
    v_lshl_add_u32 v{t[3]}, v{t[4]}, 2, v{t[3]}
    v_bfe_u32 v{t[4]}, v{vLane}, 4, 1
    v_lshl_add_u32 v{t[3]}, v{t[4]}, 3, v{t[3]}
    v_and_b32 v{t[4]}, 3, v{vLane}
    v_lshlrev_b32 v{t[4]}, 4, v{t[4]}
    v_mul_u32_u24 v{t[5]}, {S_G}, v{t[3]}
    v_add_u32 v{t[5]}, v{t[5]}, v{t[4]}
    v_mul_u32_u24 v{vPs2}, {S_Q}, v{t[3]}
    v_add_u32 v{vPs2}, v{vPs2}, v{t[4]}
    s_cmp_eq_u32 s{sSp}, 1
    s_cselect_b64 vcc, -1, 0
    v_cndmask_b32 v{vP01}, v{t[2]}, v{t[5]}, vcc
    v_cndmask_b32 v{vP23}, v{t[2]}, v{vPq2}, vcc
    """)
    p(f"""
    v_lshrrev_b32 v{t[0]}, 5, v{vLane}
    v_bfe_u32 v{t[1]}, v{vLane}, 2, 2
    v_bfe_u32 v{t[2]}, v{vLane}, 4, 1
    v_lshlrev_b32 v{t[2]}, 5, v{t[2]}
    v_and_b32 v{t[3]}, 3, v{vLane}
    v_lshl_add_u32 v{t[2]}, v{t[3]}, 3, v{t[2]}
    v_lshl_add_u32 v{t[3]}, v{t[0]}, 3, v{t[1]}
    v_lshlrev_b32 v{t[3]}, 7, v{t[3]}
    v_bfe_u32 v{t[4]}, v{vLane}, 3, 1
    v_lshl_add_u32 v{t[3]}, v{t[4]}, 6, v{t[3]}
    v_add_u32 v{vDe}, v{t[3]}, v{t[2]}
    v_xor_b32 v{vDo}, 64, v{vDe}
    v_lshl_add_u32 v{t[3]}, v{t[0]}, 2, v{t[1]}
    v_lshl_add_u32 v{t[5]}, v{t[3]}, 6, v{t[2]}
    v_add_u32 v{vS}, 2048, v{t[5]}
    s_cmp_eq_u32 s{sVar}, 0
    s_cselect_b64 vcc, -1, 0
    v_add_u32 v{t[6]}, 4096, v{t[5]}
    v_add_u32 v{t[7]}, 4096, v{vDe}
    v_cndmask_b32 v{vU[0]}, v{t[6]}, v{t[7]}, vcc
    v_add_u32 v{t[6]}, 5120, v{t[5]}
    v_add_u32 v{t[7]}, 6144, v{vDe}
    v_cndmask_b32 v{vU[1]}, v{t[6]}, v{t[7]}, vcc
    v_add_u32 v{t[6]}, 6144, v{vDe}
    v_add_u32 v{t[7]}, 4096, v{vDo}
    v_cndmask_b32 v{vU[2]}, v{t[6]}, v{t[7]}, vcc
    v_add_u32 v{vU[3]}, 6144, v{vDo}
    v_lshlrev_b32 v{vL16}, 4, v{vLane}
    v_and_b32 v{t[1]}, 31, v{vLane}
    v_lshlrev_b32 v{t[2]}, 3, v{t[1]}
    v_lshl_add_u32 v{vQst}, v{t[0]}, 14, v{t[2]}
    """)
    p(f"v_bfe_u32 v{t[2]}, v{vLane}, 1, 3\nv_lshlrev_b32 v{t[3]}, 7, v{t[1]}")
    for jj in range(4):
        p(f"""
        v_add_u32 v{t[4]}, {2*jj}, v{t[0]}
        v_xor_b32 v{t[4]}, v{t[4]}, v{t[2]}
        v_lshl_add_u32 v{t[4]}, v{t[4]}, 4, v{t[3]}
        v_add_u32 v{vXA[jj]}, s{sXl}, v{t[4]}
        v_add_u32 v{vXB[jj]}, s{sWm}, v{t[4]}
        """)
    p(f"""
    v_and_b32 v{t[4]}, 7, v{vLane}
    v_bfe_u32 v{t[5]}, v{vLane}, 4, 1
    v_lshlrev_b32 v{t[5]}, 2, v{t[5]}
    v_cmp_eq_u32 vcc, v{t[4]}, v{t[5]}
    v_mov_b32 v{t[6]}, 0x3f803f80
    v_cndmask_b32 v{vOne}, 0, v{t[6]}, vcc
    v_mov_b32 v{vOne+1}, v{vOne}
    v_mov_b32 v{vOne+2}, v{vOne}
    v_mov_b32 v{vOne+3}, v{vOne}
    """)
    p(f"""
    v_mov_b32 v{t[0]}, 0
    v_mov_b32 v{t[1]}, 0
    v_mov_b32 v{t[2]}, 0
    v_mov_b32 v{t[3]}, 0
    v_mov_b32 v{t[4]}, 0
    s_lshl_b32 s{sT}, s2, 4
    s_add_u32 s{sT}, s{sT}, {WS_FLAG}
    s_mov_b64 exec, 1
    buffer_store_dwordx4 v[{t[0]}:{t[3]}], v{t[4]}, s[{SW}:{SW+3}], s{sT} offen sc1
    s_mov_b64 exec, -1
    """, tag='flagz')
    frags = []; chunks = []
    for c in range(10):
        chunks.append(dict(first=len(frags), pas=1))
        for sl in range(4):
            for u in range(8):
                blk = (len(chunks) - 1) % NSLOT * SLOT + sl * 8192
                va, o = {0: (vDe, 0), 1: (vDe, 2048), 2: (vDo, 0), 3: (vDo, 2048)}.get(u, (vU[u-4] if u >= 4 else None, 0))
                frags.append((1, u, 4*c + sl, len(chunks) - 1, va, blk + o))
    for c in range(5):
        chunks.append(dict(first=len(frags), pas=2))
        for sl in range(8):
            for u in range(3):
                blk = (len(chunks) - 1) % NSLOT * SLOT + sl * 3072
                frags.append((2, 8 + u, 8*c + sl, len(chunks) - 1, (vDe, vDo, vS)[u], blk))
    NF = len(frags)
    def wdma(c):
        ch = chunks[c]; base = (c % NSLOT) * SLOT
        out = []
        if ch['pas'] == 1:
            for i in range(2):
                for d in range(4):
                    S = (SG, S1, S2, S2)[d]; va = vP01 if d < 2 else vP23
                    out.append(f"s_add_u32 m0, s{sWm}, {base + i*16384 + d*1024}")
                    out.append(f"s_add_u32 s{sT3}, s{sB[d]}, s{sRG if d < 2 else sRX}")
                    out.append(f"buffer_load_dwordx4 v{va}, s[{S}:{S+3}], s{sT3} offen lds")
                if i == 0:
                    out.append(f"s_lshr_b32 s{sT3}, s{sK23}, 1")
                    out.append(f"s_add_u32 s{sRG}, s{sRG}, {32*S_G}")
                    out.append(f"s_add_u32 s{sRX}, s{sRX}, s{sT3}")
            out += [f"s_lshr_b32 s{sT3}, s{sK23}, 1", f"s_add_u32 s{sRG}, s{sRG}, {32*S_G}", f"s_add_u32 s{sRX}, s{sRX}, s{sT3}",
                    f"s_cmp_ge_u32 s{sRG}, {640*S_G}", f"s_cselect_b32 s{sRG}, 0, s{sRG}", f"s_cselect_b32 s{sRX}, 0, s{sRX}"]
        else:
            for i in range(2):
                for (va, b, extra, pos) in ((vPq2, sB2[0], 0, 0), (vPq2, sB2[0], 8*S_Q, 1024), (vPs2, sB2[1], 0, 2048)):
                    out.append(f"s_add_u32 m0, s{sW6}, {base + i*3072 + pos}")
                    out.append(f"s_add_u32 s{sT3}, s{b}, s{sR2}")
                    if extra + i*16*S_Q: out.append(f"s_add_u32 s{sT3}, s{sT3}, {extra + i*16*S_Q}")
                    out.append(f"buffer_load_dwordx4 v{va}, s[{SQ}:{SQ+3}], s{sT3} offen lds")
            out += [f"s_add_u32 s{sR2}, s{sR2}, {128*S_Q}", f"s_cmp_ge_u32 s{sR2}, {640*S_Q}", f"s_cselect_b32 s{sT3}, {640*S_Q}, 0", f"s_sub_u32 s{sR2}, s{sR2}, s{sT3}"]
        return out
    def stats_mfma(s, first):
        c0 = "0" if first else f"v[{GR}:{GR+15}]"
        c1 = "0" if first else f"v[{vSum}:{vSum+3}]"
        p(f"v_mfma_f32_32x32x16_bf16 v[{GR}:{GR+15}], {xr(s)}, {xr(s)}, {c0}")
        p(f"v_mfma_f32_16x16x32_bf16 v[{vSum}:{vSum+3}], v[{vOne}:{vOne+3}], {xr(s)}, {c1}")
    for c in range(10):
        p.waitvm(f'x{c}')
        if c == 0: stamp('x0 arrived')
        if c == 4: stamp('x4 arrived')
        kind, off = xplace[c]
        for jj in range(4):
            if kind == 'X': p(f"ds_read_b128 {xr(4*c+jj)}, v{vXA[jj]} offset:{off}", tag=f'xr{c}')
            else:
                if off >= 65536 and xplace[c-1][1] < 65536: p(f"v_add_u32 v{vXB[jj]}, 0x10000, v{vXB[jj]}")
                p(f"ds_read_b128 {xr(4*c+jj)}, v{vXB[jj]} offset:{off % 65536}", tag=f'xr{c}')
        if c + NF0 < 10: emit_stream(xdma(c + NF0), tag=f'x{c+NF0}')
        if c > 0:
            for jj in range(4): stats_mfma(4*(c-1)+jj, c == 1 and jj == 0)
        if c + NF0 == 9 + cfg.get('wdel', 0):
            p.waitlg('xr0'); p.waitlg('xr1')
            emit_stream(wdma(0), tag='w0')
        if c + NF0 == 10 + cfg.get('wdel', 0):
            p.waitlg('xr2'); p.waitlg('xr3')
            emit_stream(wdma(1), tag='w1')
    for jj in range(4): stats_mfma(36 + jj, False)
    stamp('x+stats')
    for va, hi in vHi.items(): p(f"v_add_u32 v{hi}, 0x10000, v{va}")
    for b, bit in enumerate((0, 1, 3, 4, 2)):
        p(f"v_bfe_u32 v{t[0]}, v{vLane}, {bit}, 1\nv_cmp_eq_u32 s[{sM[b]}:{sM[b]+1}], 1, v{t[0]}")
    G = lambda r: f"v{GR+r}"
    for i in range(8): p(f"v_cndmask_b32 v{t[i]}, {G(2*i)}, {G(2*i+1)}, s[{sM[0]}:{sM[0]+1}]")
    for i in range(4): p(f"v_cndmask_b32 v{t[i]}, v{t[2*i]}, v{t[2*i+1]}, s[{sM[1]}:{sM[1]+1}]")
    for i in range(2): p(f"v_cndmask_b32 v{t[i]}, v{t[2*i]}, v{t[2*i+1]}, s[{sM[2]}:{sM[2]+1}]")
    p(f"v_cndmask_b32 v{t[0]}, v{t[0]}, v{t[1]}, s[{sM[3]}:{sM[3]+1}]")
    p(f"""
    v_mov_b32 v{t[1]}, v{t[0]}
    v_permlane32_swap_b32 v{t[0]}, v{t[1]}
    v_cndmask_b32 v{t[0]}, v{t[0]}, v{t[1]}, s[{sM[4]}:{sM[4]+1}]
    v_mul_f32 v{t[2]}, {1.0/640!r}, v{vSum}
    v_mul_f32 v{t[0]}, {1.0/640!r}, v{t[0]}
    v_fma_f32 v{t[0]}, -v{t[2]}, v{t[2]}, v{t[0]}
    v_max_f32 v{t[0]}, 0, v{t[0]}
    v_add_f32 v{t[0]}, 0x3727c5ac, v{t[0]}
    v_rsq_f32 v{vRstd}, v{t[0]}
    v_mul_f32 v{vNmr}, v{t[2]}, v{vRstd}
    v_mul_f32 v{vNmr}, -1.0, v{vNmr}
    """)
    def norm_stream(s):
        out = []
        regs = [X0 + 4*s + i for i in range(4)]
        for h in range(2):
            a, b = regs[2*h], regs[2*h+1]
            t0, t1, t2, t3 = vT[4*h:4*h+4]
            out += [f"v_lshlrev_b32 v{t0}, 16, v{a}", f"v_and_b32 v{t1}, s{sMask}, v{a}",
                    f"v_lshlrev_b32 v{t2}, 16, v{b}", f"v_and_b32 v{t3}, s{sMask}, v{b}",
                    f"v_fma_f32 v{t0}, v{t0}, v{vRstd}, v{vNmr}", f"v_fma_f32 v{t1}, v{t1}, v{vRstd}, v{vNmr}",
                    f"v_fma_f32 v{t2}, v{t2}, v{vRstd}, v{vNmr}", f"v_fma_f32 v{t3}, v{t3}, v{vRstd}, v{vNmr}",
                    f"v_cvt_pk_bf16_f32 v{a}, v{t0}, v{t1}", f"v_cvt_pk_bf16_f32 v{b}, v{t2}, v{t3}"]
        return out
    accA = lambda u: 16 * u
    def glu_stream(ug, uu, soff):
        out = []
        for j in range(2):
            pk = vT[8 + 4*j: 12 + 4*j]
            for q in range(2):
                r0 = 8*j + 4*q
                g = vT[0:4]; u = vT[4:8]
                out += [f"v_accvgpr_read_b32 v{g[i]}, a{accA(ug)+r0+i}" for i in range(4)]
                out += [f"v_mul_f32 v{g[i]}, s{sNL2E}, v{g[i]}" for i in range(4)]
                out += [f"v_exp_f32 v{g[i]}, v{g[i]}" for i in range(4)]
                out += [f"v_accvgpr_read_b32 v{u[i]}, a{accA(uu)+r0+i}" for i in range(4)]
                out += [f"v_add_f32 v{g[i]}, 1.0, v{g[i]}" for i in range(4)]
                out += [f"v_rcp_f32 v{g[i]}, v{g[i]}" for i in range(4)]
                out += [f"v_mul_f32 v{g[i]}, v{g[i]}, v{u[i]}" for i in range(4)]
                out += [f"v_cvt_pk_bf16_f32 v{pk[2*q]}, v{g[0]}, v{g[1]}", f"v_cvt_pk_bf16_f32 v{pk[2*q+1]}, v{g[2]}, v{g[3]}"]
            out.append(f"buffer_store_dwordx4 v[{pk[0]}:{pk[3]}], v{vL16}, s[{SW}:{SW+3}], s{soff} offen offset:{1024*j} sc1")
        return out
    def qkv_stream(accbase, isA, soff):
        out = []
        for a in range(4):
            if isA:
                g = vT[4*(a%2): 4 + 4*(a%2)]
                out += [f"v_accvgpr_read_b32 v{g[i]}, a{accbase+4*a+i}" for i in range(4)]
                src = g; pk = vT[8 + 2*a: 10 + 2*a]
            else:
                src = [accbase + 4*a + i for i in range(4)]; pk = [accbase + 4*a, accbase + 4*a + 1]
            out += [f"v_cvt_pk_bf16_f32 v{pk[0]}, v{src[0]}, v{src[1]}", f"v_cvt_pk_bf16_f32 v{pk[1]}, v{src[2]}, v{src[3]}"]
            out.append(f"s_add_u32 s{sT2}, s{soff}, {a*32768}")
            out.append(f"buffer_store_dwordx2 v[{pk[0]}:{pk[1]}], v{vQst}, s[{SW}:{SW+3}], s{sT2} offen sc1")
        return out
    if cfg.get('nofill'):
        norm_stream = lambda s: []
        glu_stream = lambda a, b, c: []
    cost = lambda l: 2 if l.startswith(('v_exp', 'v_rcp')) else 1
    def wreg(i): return f"a[{WR0+4*(i%RING)}:{WR0+4*(i%RING)+3}]"
    def tr_reads(i):
        (pas, u, s, c, va, off) = frags[i]
        b = WR0 + 4 * (i % RING)
        if off >= 65536: va = vHi[va]; off -= 65536
        return [f"ds_read_b64_tr_b16 a[{b}:{b+1}], v{va} offset:{off}", f"ds_read_b64_tr_b16 a[{b+2}:{b+3}], v{va} offset:{off+512}"]
    def acc(u): return f"a[{accA(u)}:{accA(u)+15}]" if u < 8 else f"v[{ACC3+16*(u-8)}:{ACC3+16*(u-8)+15}]"
    def last_m0():
        x = p.ins[-1]
        return (not isinstance(x, tuple)) and ('x', 'm0') in x.dst
    DGAP = cfg.get('dgap', 3)
    def main(i0, i1, q):
        for i in range(i0, i1):
            (pas, u, s, c, va, off) = frags[i]
            cin = "0" if s == 0 else acc(u)
            if pas == 1 and u == 0:
                while q['norm'] and q['norm'][0][0] <= s: p(q['norm'].pop(0)[1])
            p(f"v_mfma_f32_32x32x16_bf16 {acc(u)}, {wreg(i)}, {xr(s)}, {cin}")
            j = i + D
            if j < NF:
                cj = frags[j][3]
                if j == chunks[cj]['first']:
                    while q['dma']:
                        l, tg = q['dma'].pop(0); p(l, tag=tg)
                    if not cfg.get('nowait'): p.waitvm(f'w{cj}')
                    if not cfg.get('nobar'): p("s_barrier")
                    if cj + 2 < len(chunks) and not cfg.get('nodma'):
                        q['dma'] += [(l, f'w{cj+2}') for l in wdma(cj + 2)]
                    q['next_dma'] = i
                emit_stream(tr_reads(j))
            bud = BUD
            if pas == 1 and u == 0 and s + 1 < 40:
                q['norm'] += [(s + 1, l) for l in norm_stream(s + 1)]
            if q['dma'] and i >= q['next_dma']:
                while q['dma']:
                    l, tg = q['dma'].pop(0); p(l, tag=tg); bud -= 1
                    if l.startswith('buffer'): break
                q['next_dma'] = i + DGAP
            if q['extra'] and q['extra'][0][0] <= i:
                grp = q['extra'].pop(0)[1]
                for (l, tg) in grp:
                    if l == 'WAITVM': p.waitvm(tg)
                    elif l == 'WAITLG': p.waitlg(tg)
                    else: p(l, tag=tg); bud -= 1
            while bud > 0:
                if q['norm']: p(q['norm'].pop(0)[1]); bud -= 1
                elif q['epi'] and q['epi'][0][0] <= i:
                    l = q['epi'].pop(0)[1]; p(l); bud -= cost(l)
                else: break
    extra = []
    if cfg.get('repack', 1):
        SR = S1
        SRP = 76
        sJ, sJb, sJs, sJo = 80, 81, 82, 83
        vJ = [vT[12], vT[13], vT[14], vT[15], vT[16]]
        vJa = vT[17]
        setup = []
        A = setup.append
        for l in f"""s_lshl_b32 s{sJ}, s2, 2
        s_add_u32 s{sJ}, s{sJ}, s{sW}
        s_cmp_ge_u32 s{sJ}, 592
        s_cselect_b32 s3, 1, 0
        s_cselect_b32 s{sT}, 592, 0
        s_sub_u32 s{sJ}, s{sJ}, s{sT}
        s_lshr_b32 s{sT}, s{sJ}, 2
        s_and_b32 s{sJo}, s{sJ}, 3
        s_sub_u32 s{sT2}, s{sT}, 108
        s_mul_i32 s{sJb}, s{sT2}, 6554
        s_lshr_b32 s{sJb}, s{sJb}, 16
        s_mul_i32 s{sJs}, s{sJb}, 10
        s_sub_u32 s{sJs}, s{sT2}, s{sJs}
        s_mul_i32 s{sJb}, s{sJb}, 160
        s_cmp_lt_u32 s{sJs}, 8
        s_cselect_b32 s{sT2}, 20, 80
        s_cselect_b32 s{sT3}, 0, 624
        s_mul_i32 s{sT2}, s{sT2}, s{sJs}
        s_cselect_b32 s{sJs}, 4, 20
        s_add_u32 s{sJb}, s{sJb}, s{sT2}
        s_sub_u32 s{sJb}, s{sJb}, s{sT3}
        s_mov_b32 s{SRP+3}, {640*1280}
        s_lshl_b32 s{sT2}, s{sT}, 4
        s_cmp_lt_u32 s{sT}, 108
        s_cselect_b32 s{SRP}, s74, s{sWo}
        s_cselect_b32 s{SRP+1}, s75, s{sWo+1}
        s_cselect_b32 s{SRP+2}, {1728*1280}, s{SRP+3}
        s_cselect_b32 s{sJb}, s{sT2}, s{sJb}
        s_cselect_b32 s{sJs}, 4, s{sJs}
        s_and_b32 s{SRP+1}, s{SRP+1}, 0xffff
        s_mov_b32 s{SRP+3}, 0x20000
        s_mul_i32 s{sJb}, s{sJb}, 1280
        s_mul_i32 s{sT2}, s{sJo}, 320
        s_add_u32 s{sJb}, s{sJb}, s{sT2}
        s_mul_i32 s{sJo}, s{sJo}, {2*148*2560}
        s_mul_i32 s{sT}, s{sT}, 2560
        s_add_u32 s{sJo}, s{sJo}, s{sT}
        s_add_u32 s{sJo}, s{sJo}, {WS_WF}""".split('\n'): A(l.strip())
        for i in range(5):
            for l in f"""v_add_u32 v{t[0]}, {64*i}, v{vLane}
            v_mul_u32_u24 v{t[1]}, 3277, v{t[0]}
            v_lshrrev_b32 v{t[1]}, 16, v{t[1]}
            v_mul_u32_u24 v{t[2]}, 20, v{t[1]}
            v_sub_u32 v{t[0]}, v{t[0]}, v{t[2]}
            v_lshrrev_b32 v{t[2]}, 2, v{t[1]}
            v_mul_u32_u24 v{t[2]}, s{sJs}, v{t[2]}
            v_and_b32 v{t[1]}, 3, v{t[1]}
            v_add_u32 v{t[1]}, v{t[1]}, v{t[2]}
            v_mul_u32_u24 v{t[1]}, 1280, v{t[1]}
            v_lshl_add_u32 v{vJ[i]}, v{t[0]}, 4, v{t[1]}""".split('\n'): A(l.strip())
        for l in f"""v_lshrrev_b32 v{t[0]}, 5, v{vLane}
        v_bfe_u32 v{t[1]}, v{vLane}, 2, 2
        v_lshl_add_u32 v{t[1]}, v{t[0]}, 2, v{t[1]}
        v_mul_u32_u24 v{t[1]}, 320, v{t[1]}
        v_bfe_u32 v{t[2]}, v{vLane}, 4, 1
        v_lshl_add_u32 v{t[1]}, v{t[2]}, 5, v{t[1]}
        v_and_b32 v{t[2]}, 3, v{vLane}
        v_lshl_add_u32 v{t[1]}, v{t[2]}, 3, v{t[1]}
        v_add_u32 v{vJa}, s{sXl}, v{t[1]}""".split('\n'): A(l.strip())
        emit_stream(setup)
        for i in range(5):
            p(f"s_add_u32 m0, s{sXl}, {1024*i}\ns_nop 0")
            p(f"buffer_load_dwordx4 v{vJ[i]}, s[{SRP}:{SRP+3}], s{sJb} offen lds", tag='rp')
        RR = ACC3
        grp = [('WAITVM', 'rp')]
        n = 0
        for nt in range(2):
            for u in range(3):
                off = nt*160 + u*64
                grp += [(f"ds_read_b64_tr_b16 v[{RR+4*n}:{RR+4*n+1}], v{vJa} offset:{off}", 'rpr'), (f"ds_read_b64_tr_b16 v[{RR+4*n+2}:{RR+4*n+3}], v{vJa} offset:{off+2560}", 'rpr')]
                n += 1
        i_rp = cfg.get('rp_at', 40)
        extra.append((i_rp, grp[:7])); extra.append((i_rp + 2, grp[7:]))
        st = []
        n = 0
        for nt in range(2):
            for u in range(3):
                skip = [("s_cmp_eq_u32 s3, 1", None), (f"s_cbranch_scc1 RPS{n}", None)]
                if u < 2:
                    st.append(skip + [(f"s_add_u32 s{sJb}, s{sJo}, {nt*148*2560 + u*1024}", None), (f"buffer_store_dwordx4 v[{RR+4*n}:{RR+4*n+3}], v{vL16}, s[{SW}:{SW+3}], s{sJb} offen sc1", 'nc'), (f"RPS{n}:", None)])
                else:
                    st.append(skip + [(f"v_lshrrev_b32 v{vJ[0]}, 5, v{vLane}", None), (f"v_and_b32 v{vJ[1]}, 15, v{vLane}", None), (f"v_lshl_add_u32 v{vJ[0]}, v{vJ[0]}, 4, v{vJ[1]}", None),
                               (f"v_lshlrev_b32 v{vJ[0]}, 4, v{vJ[0]}", None), (f"s_add_u32 s{sJb}, s{sJo}, {nt*148*2560 + 2048}", None),
                               (f"s_mov_b32 exec_lo, 0xffff", None), (f"s_mov_b32 exec_hi, 0xffff", None),
                               (f"buffer_store_dwordx4 v[{RR+4*n}:{RR+4*n+3}], v{vJ[0]}, s[{SW}:{SW+3}], s{sJb} offen sc1", 'nc'), (f"s_mov_b64 exec, -1", None), (f"RPS{n}:", None)])
                n += 1
        st[0] = [('WAITLG', 'rpr')] + st[0]
        for k, g in enumerate(st): extra.append((i_rp + 8 + 2*k, g))
    emit_stream(norm_stream(0))
    p.waitvm('w0')
    p("s_barrier")
    q = dict(dma=[(l, 'w2') for l in wdma(2)], norm=[], epi=[], extra=extra, next_dma=0)
    if cfg.get('nodma'): q['dma'] = []
    for j in range(D): emit_stream(tr_reads(j))
    n1 = 320
    stamp('main start')
    main(0, n1, q)
    stamp('pass1 end')
    q['epi'] += [(n1 + 1, l) for l in glu_stream(0, 1, sHoff[0])]
    q['epi'] += [(n1 + 1, l) for l in glu_stream(2, 3, sHoff[1])]
    q['epi'] += [(n1 + 1, l) for l in glu_stream(4, 5, sHoff[2])]
    nsplit = cfg.get('nsplit', n1 + 90)
    main(n1, nsplit, q)
    import copy
    p(f"s_cmp_lg_u32 s{sVar}, 0\ns_cbranch_scc1 K1_VARB")
    p.save('fork')
    for var in (0, 1):
        qq = copy.deepcopy(q)
        if var == 1:
            p("K1_VARB:")
            p.restore('fork')
            qq['epi'] += [(nsplit, l) for l in qkv_stream(accA(6), True, sQoff[0])]
            qq['epi'] += [(nsplit, l) for l in qkv_stream(accA(7), True, sQoff[1])]
        else:
            qq['epi'] += [(nsplit, l) for l in glu_stream(6, 7, sHoff[3])]
        main(nsplit, NF, qq)
        assert not qq['dma'] and not qq['norm'] and not qq['extra']
        left = [l for (_, l) in qq['epi']]
        if cfg.get('verbose'): print(f"; variant {var}: {len(left)} epilogue instrs left after main loop")
        n0 = nst[0]
        stamp('mfma done' if var == 0 else None)
        emit_stream(left)
        for j in range(3): emit_stream(qkv_stream(ACC3 + 16*j, False, sQoff[2 + j]))
        if prof:
            stamp('issued' if var == 0 else None)
            p("s_waitcnt vmcnt(0) lgkmcnt(0)")
            stamp('drained' if var == 0 else None)
            p(f"s_memrealtime s[{SP[nst[0]]}:{SP[nst[0]]+1}]\ns_waitcnt lgkmcnt(0)")
            vals = [SP[nst[0]]] + SP[:nst[0]]
            for n in range(16): p(f"v_mov_b32 v{100+n}, s{vals[n]}" if n < len(vals) else f"v_mov_b32 v{100+n}, 0")
            p(f"s_lshl_b32 s{sT}, s2, 2\ns_add_u32 s{sT}, s{sT}, s{sW}\ns_lshl_b32 s{sT}, s{sT}, 6\ns_add_u32 s{sT}, s{sT}, {WS_PROF}\nv_mov_b32 v116, 0\ns_mov_b64 exec, 1")
            for n in range(4): p(f"buffer_store_dwordx4 v[{100+4*n}:{103+4*n}], v116, s[{SW}:{SW+3}], s{sT} offen offset:{16*n}")
        nst[0] = n0
        p("s_endpgm")
    p("K1_END:")
    return p
```

```python
from asmlib import Prog
from k1 import srd, WS_QKV, WS_H, WS_O, WS_OT, WS_FLAG, WS_SIZE, WS_PROF

G_WO = 10 * 2560
G_LDS = G_WO + 2560
T_BASE = 4 * G_LDS
WS_WF = 20 << 20; WS_SIZE2 = 24 << 20
PS = 4096 + 32
KP = T_BASE
VP = KP + 6 * PS
SYNC = VP + 6 * PS + 64
K2_LDS = SYNC + 64
WS_PROF2 = (19 << 20) + (640 << 10)
NEG = 0xc7000000
C_SC = 1.4426950408889634 / (20 ** 0.5)

def gen_k2(cfg):
    p = Prog()
    prof = cfg.get('prof', 0)
    SXS, SWD, SWO, SWS, SOUT = 4, 8, 12, 16, 20
    sW, sMt, sNt, sHd, sM = 32, 33, 34, 35, 36
    sT, sT2, sT3 = 37, 38, 39
    sRot = 31
    SP = [88, 90, 92, 94, 96, 98, 100, 74, 76, 78, 80, 82, 84, 86]
    nst = [0]
    names = cfg.setdefault('_names2', [])
    def stamp(name=None):
        if not prof: return
        i = nst[0]; nst[0] += 1
        p(f's_memtime s[{SP[i]}:{SP[i]+1}]' if i else 's_memrealtime s[88:89]')
        if name: names.append(name)
    def prof_end(role):
        if not prof: return
        p("s_waitcnt vmcnt(0) lgkmcnt(0)")
        stamp('drained' if role == 'G' else None)
        k = nst[0]
        p(f"s_memrealtime s[{SP[k]}:{SP[k]+1}]\ns_waitcnt lgkmcnt(0)")
        vals = [SP[k]] + SP[:k]
        for n in range(16): p(f"v_mov_b32 v{100+n}, s{vals[n]}" if n < len(vals) else f"v_mov_b32 v{100+n}, 0")
        off = WS_PROF2 + (65536 if role == 'T' else 0)
        p(f"s_lshl_b32 s{sT}, s2, 2\ns_and_b32 s{sT2}, s{sW}, 3\ns_add_u32 s{sT}, s{sT}, s{sT2}\ns_lshl_b32 s{sT}, s{sT}, 6\ns_add_u32 s{sT}, s{sT}, {off}\nv_mov_b32 v116, 0\ns_mov_b64 exec, 1")
        for n in range(4): p(f"buffer_store_dwordx4 v[{100+4*n}:{103+4*n}], v116, s[{SWS}:{SWS+3}], s{sT} offen offset:{16*n}")
    vLane = 1
    stamp(); stamp()
    p(f"""
    s_cmp_ge_u32 s2, 256
    s_cbranch_scc1 K2_END
    s_load_dwordx2 s[62:63], s[0:1], 0
    s_load_dwordx2 s[64:65], s[0:1], 16
    s_load_dwordx4 s[68:71], s[0:1], 48
    s_load_dwordx2 s[66:67], s[0:1], 72
    v_and_b32 v{vLane}, 63, v0
    v_lshrrev_b32 v2, 6, v0
    s_nop 0
    v_readfirstlane_b32 s{sW}, v2
    s_and_b32 s{sT}, s2, 7
    s_lshr_b32 s{sT2}, s2, 3
    """)
    if cfg.get('map', 0) == 0:
        p(f"""
        s_lshl_b32 s{sHd}, s{sT}, 2
        s_and_b32 s{sT3}, s{sT2}, 3
        s_add_u32 s{sHd}, s{sHd}, s{sT3}
        s_lshr_b32 s{sM}, s{sT2}, 2
        s_lshr_b32 s{sMt}, s{sT}, 1
        s_lshl_b32 s{sMt}, s{sMt}, 3
        s_and_b32 s{sT3}, s{sT2}, 7
        s_add_u32 s{sMt}, s{sMt}, s{sT3}
        s_and_b32 s{sNt}, s{sT}, 1
        s_lshl_b32 s{sNt}, s{sNt}, 2
        s_lshr_b32 s{sRot}, s{sT2}, 3
        s_add_u32 s{sNt}, s{sNt}, s{sRot}
        s_mul_i32 s{sRot}, s{sRot}, {cfg.get('rn', 7)}
        s_mul_i32 s{sT3}, s{sT3}, {cfg.get('rm', 3)}
        s_add_u32 s{sRot}, s{sRot}, s{sT3}
        """)
    else:
        p(f"""
        s_mov_b32 s{sHd}, s{sT2}
        s_mov_b32 s{sM}, s{sT}
        s_and_b32 s{sT3}, s{sT2}, 3
        s_lshl_b32 s{sMt}, s{sT}, 2
        s_add_u32 s{sMt}, s{sMt}, s{sT3}
        s_lshr_b32 s{sNt}, s{sT2}, 2
        s_mul_i32 s{sRot}, s{sNt}, {cfg.get('rn', 3)}
        s_mul_i32 s{sT3}, s{sT3}, {cfg.get('rm', 7)}
        s_add_u32 s{sRot}, s{sRot}, s{sT3}
        """)
    p(f"""
    s_cmp_ge_u32 s{sRot}, 27
    s_cselect_b32 s{sT3}, 27, 0
    s_sub_u32 s{sRot}, s{sRot}, s{sT3}
    s_cmp_ge_u32 s{sRot}, 27
    s_cselect_b32 s{sT3}, 27, 0
    s_sub_u32 s{sRot}, s{sRot}, s{sT3}
    s_waitcnt lgkmcnt(0)
    """)
    srd(p, SWS, 66, 67, WS_SIZE2)
    if cfg.get('pf2', 0):
        p(f"""
        s_getpc_b64 s[86:87]
        v_lshlrev_b32 v3, 6, v0
        s_and_b32 s86, s86, 0xffffff00
        global_load_dword v4, v3, s[86:87]
        """, tag='pf')
    p(f"s_cmp_ge_u32 s{sW}, 4\ns_cbranch_scc1 K2_T")
    p.save('fork')
    vL16, vL16b, vU2, vOT = 2, 3, 4, 5
    vRow = [6, 7, 8]
    vSt, vLin, vLu2 = 9, 10, 11
    vT = list(range(12, 28)); vX = 28
    LA = 3; NS = 4
    U2R = 38
    ACT0 = 52; XR = 84; ACC = 96
    sLds, sWo, sAo, sFlag, sXo, sA1, sWb = 40, 41, 42, 46, 47, 48, 43
    sMlo, sMhi = 50, 52
    p(f"""
    s_mul_i32 s{sT}, s{sNt}, 148
    s_mul_i32 s{sT2}, s{sW}, 27
    s_add_u32 s{sT}, s{sT}, s{sT2}
    s_mul_i32 s{sWo}, s{sT}, 2560
    s_add_u32 s{sWo}, s{sWo}, {WS_WF}
    s_mul_i32 s{sAo}, s{sMt}, {2*108*1024}
    s_lshl_b32 s{sT2}, s{sT2}, 10
    s_add_u32 s{sAo}, s{sAo}, s{sT2}
    s_add_u32 s{sAo}, s{sAo}, {WS_H}
    v_lshlrev_b32 v{vL16}, 4, v{vLane}
    v_add_u32 v{vL16b}, {108*1024}, v{vL16}
    v_lshrrev_b32 v{vT[0]}, 5, v{vLane}
    v_and_b32 v{vT[1]}, 15, v{vLane}
    v_lshl_add_u32 v{vT[2]}, v{vT[0]}, 4, v{vT[1]}
    v_lshlrev_b32 v{vT[2]}, 4, v{vT[2]}
    v_bfe_u32 v{vT[3]}, v{vLane}, 4, 1
    v_mul_u32_u24 v{vT[3]}, 2560, v{vT[3]}
    v_add_u32 v{vU2}, v{vT[2]}, v{vT[3]}
    """)
    sw = f"s[{SWS}:{SWS+3}]"
    def h_loads(ki):
        if cfg.get('noact') and ki >= LA: return []
        b = 8 * (ki % NS); r = ACT0 + 8 * (ki % NS); tg = f'k{ki}'
        L = [(f"buffer_load_dwordx4 a[{b}:{b+3}], v{vL16}, {sw}, s{sWo} offen", tg),
             (f"buffer_load_dwordx4 v[{r}:{r+3}], v{vL16}, {sw}, s{sAo} offen", tg),
             (f"buffer_load_dwordx4 v[{r+4}:{r+7}], v{vL16b}, {sw}, s{sAo} offen", tg),
             (f"buffer_load_dwordx4 a[{b+4}:{b+7}], v{vL16}, {sw}, s{sWo} offen offset:1024", tg)]
        if ki % 2 == 0:
            u = U2R + 4 * ((ki // 2) % 3)
            L.append((f"buffer_load_dwordx4 v[{u}:{u+3}], v{vU2}, {sw}, s{sWo} offen offset:2048", tg))
        L.append((f"s_add_u32 s{sWo}, s{sWo}, 2560\ns_add_u32 s{sAo}, s{sAo}, 1024", None))
        return L
    def g_tables():
        srd(p, SXS, 62, 63, 2048 * 1280)
        srd(p, SOUT, 70, 71, 2048 * 1280)
        p(f"""
        s_mul_i32 s{sLds}, s{sW}, {G_LDS}
        v_add_u32 v{vLin}, s{sLds}, v{vL16}
        v_add_u32 v{vLu2}, s{sLds}, v{vT[2]}
        v_and_b32 v{vT[1]}, 31, v{vLane}
        v_mul_u32_u24 v{vT[2]}, 80, v{vT[1]}
        v_lshl_add_u32 v{vT[2]}, v{vT[0]}, 3, v{vT[2]}
        s_add_u32 s{sT}, s{sLds}, {G_WO}
        v_add_u32 v{vSt}, s{sT}, v{vT[2]}
        v_lshlrev_b32 v{vT[3]}, 3, v{vT[1]}
        v_lshl_add_u32 v{vOT}, v{vT[0]}, 8, v{vT[3]}
        s_mov_b32 s{sMlo}, 0x0000ffff
        s_mov_b32 s{sMlo+1}, 0x0000ffff
        s_mov_b32 s{sMhi}, 0xffff0000
        s_mov_b32 s{sMhi+1}, 0xffff0000
        """)
        for i in range(3):
            p(f"""
            v_add_u32 v{vT[0]}, {64*i}, v{vLane}
            v_min_u32 v{vT[0]}, 159, v{vT[0]}
            v_mul_u32_u24 v{vT[1]}, 13108, v{vT[0]}
            v_lshrrev_b32 v{vT[1]}, 16, v{vT[1]}
            v_mul_u32_u24 v{vT[2]}, 5, v{vT[1]}
            v_sub_u32 v{vT[2]}, v{vT[0]}, v{vT[2]}
            v_mul_u32_u24 v{vT[1]}, 1280, v{vT[1]}
            v_lshl_add_u32 v{vRow[i]}, v{vT[2]}, 4, v{vT[1]}
            """)
        p(f"""
        s_lshr_b32 s{sT}, s{sW}, 1
        s_lshl_b32 s{sT2}, s{sMt}, 1
        s_add_u32 s{sT}, s{sT}, s{sT2}
        s_mul_i32 s{sXo}, s{sT}, {32*1280}
        s_mul_i32 s{sT}, s{sNt}, 160
        s_add_u32 s{sXo}, s{sXo}, s{sT}
        s_and_b32 s{sT}, s{sW}, 1
        s_mul_i32 s{sT}, s{sT}, 80
        s_add_u32 s{sXo}, s{sXo}, s{sT}
        s_mul_i32 s{sT}, s{sNt}, 148
        s_mul_i32 s{sT2}, s{sW}, 10
        s_add_u32 s{sT}, s{sT}, s{sT2}
        s_add_u32 s{sT}, s{sT}, 108
        s_mul_i32 s{sOo}, s{sT}, 2560
        s_add_u32 s{sOo}, s{sOo}, {WS_WF}
        """)
    sOo = 49
    if cfg.get('tfirst', 1): g_tables()
    if cfg.get('tsync', 1): p("s_barrier")
    for ki in range(LA):
        for (l, tg) in h_loads(ki): p(l, tag=tg)
    stamp('G loads issued')
    if not cfg.get('tfirst', 1): g_tables()
    def wo_dma(n):
        L = []
        if n % 4 == 0:
            L.append((f"s_add_u32 m0, s{sLds}, {n*1024}", None))
            if n: L.append((f"s_add_u32 s{sOo}, s{sOo}, 4096", None))
        L.append((f"buffer_load_dwordx4 v{vL16}, {sw}, s{sOo} offen offset:{(n%4)*1024} lds", 'wo'))
        return L
    acc = lambda tb, u: f"v[{ACC+16*(3*tb+u)}:{ACC+16*(3*tb+u)+15}]"
    barrier_at = cfg.get('gbar', 1)
    WO0 = cfg.get('wo0', 1)
    nwo = 0
    osc = ' sc1' if cfg.get('osc1', 1) else ''
    OH = ['a56', 'v84', 'v76', 'a24', 'v52', 'a0', 'v60', 'a8', 'v68', 'a16']
    def oreg(j, i, n): return f"{OH[j][0]}[{int(OH[j][1:])+i}:{int(OH[j][1:])+i+n-1}]"
    sOa = [54, 55]; sOt = [56, 57]
    def o_loads(j):
        L = []
        if j < 8:
            for tb in range(2):
                L.append((f"buffer_load_dwordx4 {oreg(j, 4*tb, 4)}, v{vL16}, {sw}, s{sOa[tb]} offen offset:{(j % 4)*1024}{osc}", f'o{j}'))
            if j == 3: L.append((f"s_add_u32 s{sOa[0]}, s{sOa[0]}, 4096\ns_add_u32 s{sOa[1]}, s{sOa[1]}, 4096", None))
        else:
            g = j - 8
            for tb in range(2):
                for e in range(2):
                    L.append((f"buffer_load_dwordx2 {oreg(j, 4*tb + 2*e, 2)}, v{vOT}, {sw}, s{sOt[tb]} offen offset:{(4*g + 2*e)*256}{osc}", f'o{j}'))
        return L
    WR = 32
    def wo_reads(j):
        b = WR + 12 * (j % 2)
        return [(f"ds_read_b128 a[{b}:{b+3}], v{vLin} offset:{j*2560}", f'wr{j}'),
                (f"ds_read_b128 a[{b+4}:{b+7}], v{vLin} offset:{j*2560 + 1024}", f'wr{j}'),
                (f"ds_read_b128 a[{b+8}:{b+11}], v{vLu2} offset:{j*2560 + 2048}", f'wr{j}')]
    PK = cfg.get('PK', 24); assert PK == 24
    vFl = vT[9]; vFa = vT[8]
    def poll_setup():
        p(f"""
        s_lshl_b32 s{sT}, s{sMt}, 6
        s_lshl_b32 s{sT2}, s{sW}, 3
        s_add_u32 s{sT}, s{sT}, s{sT2}
        s_lshl_b32 s{sOa[0]}, s{sT}, 10
        s_add_u32 s{sOa[0]}, s{sOa[0]}, {WS_O}
        s_add_u32 s{sOa[1]}, s{sOa[0]}, {32*1024}
        s_lshl_b32 s{sOt[0]}, s{sT}, 8
        s_add_u32 s{sOt[0]}, s{sOt[0]}, {WS_OT}
        s_add_u32 s{sOt[1]}, s{sOt[0]}, {32*256}
        s_lshl_b32 s{sFlag}, s{sMt}, 7
        s_lshl_b32 s{sT}, s{sW}, 5
        s_add_u32 s{sFlag}, s{sFlag}, s{sT}
        s_add_u32 s{sFlag}, s{sFlag}, {WS_FLAG}
        v_and_b32 v{vFa}, 7, v{vLane}
        v_lshlrev_b32 v{vFa}, 2, v{vFa}
        s_mov_b32 s{sT3}, 200000
        """)
    for ki in range(27):
        b = 8 * (ki % NS); r = ACT0 + 8 * (ki % NS)
        if ki == barrier_at and not cfg.get('tsync', 1): p("s_barrier")
        if cfg.get('kst') and ki in (2, 8, 14, 20): stamp(f'k{ki}')
        q = h_loads(ki + LA) if ki + LA < 27 else []
        ex = []
        if ki >= WO0:
            for _ in range(cfg.get('wor', 2)):
                if nwo < 25: ex += wo_dma(nwo); nwo += 1
        if ki == 6:
            ex += [(f"buffer_load_dwordx4 v[{XR+4*i}:{XR+4*i+3}], v{vRow[i]}, s[{SXS}:{SXS+3}], s{sXo} offen", 'xr') for i in range(3)]
        if ki == 12:
            ex += [(f"ds_write_b128 v{vLin}, v[{XR+4*i}:{XR+4*i+3}] offset:{G_WO + 1024*i}", 'xw') for i in range(2)]
            ex += [(f"s_mov_b32 exec_hi, 0\nds_write_b128 v{vLin}, v[{XR+8}:{XR+11}] offset:{G_WO + 2048}\ns_mov_b64 exec, -1", 'xw')]
        if ki == 13:
            ex += [(f"ds_read_b64 v[{vX+2*i}:{vX+2*i+1}], v{vSt} offset:{16*i}", 'xd') for i in range(5)]
        if ki == PK - cfg.get('early', 0):
            poll_setup()
            if not cfg.get('noT') and cfg.get('early', 0):
                ex += [(f"buffer_load_dword v{vFl}, v{vFa}, {sw}, s{sFlag} offen sc1", 'fl')]
        if ki == PK:
            stamp('G before poll')
            if not cfg.get('noT'):
                if cfg.get('early', 0):
                    p(f"v_cmp_ne_u32 vcc, 1, v{vFl}\ns_cbranch_vccz G_POLLED")
                p.save('poll')
                p("G_POLL:")
                p(f"""
                buffer_load_dword v{vFl}, v{vFa}, {sw}, s{sFlag} offen sc1
                s_sub_u32 s{sT3}, s{sT3}, 1
                s_waitcnt vmcnt(0)
                v_cmp_ne_u32 vcc, 1, v{vFl}
                s_cmp_eq_u32 s{sT3}, 0
                s_cbranch_scc1 G_POLLED
                s_cbranch_vccnz G_POLL
                """)
                p("G_POLLED:")
                p.restore('poll')
            stamp('G polled')
            p.waitvm('wo')
            ex += o_loads(0) + o_loads(1) + o_loads(2) + o_loads(3) + wo_reads(0) + wo_reads(1)
        if ki == PK + 1: ex += o_loads(4) + o_loads(5)
        if ki == PK + 2: ex += o_loads(6) + o_loads(7)
        q = q + ex
        p.waitvm(f'k{ki}')
        u2 = U2R + 4 * ((ki // 2) % 3); tq = vT[4 * (ki % 2): 4 * (ki % 2) + 4]
        m = sMlo if ki % 2 == 0 else sMhi
        if cfg.get('lfirst', 1):
            while q:
                l, tg = q.pop(0); p(l, tag=tg)
        for i in range(4): p(f"v_cndmask_b32 v{tq[i]}, 0, v{u2+i}, s[{m}:{m+1}]")
        for u in range(3):
            for tb in range(2):
                cin = "0" if ki == 0 else acc(tb, u)
                wsrc = f"a[{b+4*u}:{b+4*u+3}]" if u < 2 else f"v[{tq[0]}:{tq[3]}]"
                p(f"v_mfma_f32_32x32x16_bf16 {acc(tb,u)}, {wsrc}, v[{r+4*tb}:{r+4*tb+3}], {cin}")
                nq = 2 if (u, tb) != (2, 1) else 99
                while q and nq > 0:
                    l, tg = q.pop(0); p(l, tag=tg); nq -= 1 if ('buffer' in l or 'ds_' in l) else 0
    assert nwo == 25
    for (l, tg) in o_loads(8) + o_loads(9): p(l, tag=tg)
    stamp('G h done')
    for tb in range(2):
        c = ACC + 16 * (3*tb + 2)
        for i in range(8): p(f"v_add_f32 v{c+i}, v{c+i}, v{c+8+i}")
    for j in range(10):
        b = WR + 12 * (j % 2)
        p.waitvm(f'o{j}')
        for u in range(3):
            for tb in range(2):
                p(f"v_mfma_f32_32x32x16_bf16 {acc(tb,u)}, a[{b+4*u}:{b+4*u+3}], {oreg(j, 4*tb, 4)}, {acc(tb,u)}")
        if j + 2 < 10:
            for (l, tg) in wo_reads(j + 2): p(l, tag=tg)
    stamp('G main done')
    def greg(tb, a): return ACC + 16*(3*tb + a//4) + 4*(a % 4)
    for wv in range(4):
        if wv < 3: p(f"s_cmp_lg_u32 s{sW}, {wv}\ns_cbranch_scc1 G_RED{wv+1}")
        if wv == 0: p.save('red')
        for tb in range(2):
            for a in range(10):
                own = 2*tb + (1 if a >= 5 else 0)
                if own == wv: continue
                slot = ((own - wv) % 4 - 1) * 5 + a % 5
                r = greg(tb, a)
                p(f"ds_write_b128 v{vLin}, v[{r}:{r+3}] offset:{slot*1024}")
        p("s_waitcnt lgkmcnt(0)\ns_barrier")
        tbo, a0 = wv >> 1, 5 * (wv & 1)
        R = 12
        stg = [38 + 4*n for n in range(14)] + [12]
        n = 0
        for src in range(1, 4):
            sw_ = (wv + src) % 4
            rel = (wv - sw_) % 4
            p(f"v_add_u32 v{vT[4+src]}, {sw_*G_LDS}, v{vL16}")
            for i in range(5):
                p(f"ds_read_b128 v[{stg[n]}:{stg[n]+3}], v{vT[4+src]} offset:{((rel-1)*5 + i)*1024}"); n += 1
        for i in range(5):
            r = greg(tbo, a0 + i)
            x0, x1 = vX + 2*i, vX + 2*i + 1
            t = vT[8:12]
            p(f"""
            v_lshlrev_b32 v{t[0]}, 16, v{x0}
            v_and_b32 v{t[1]}, 0xffff0000, v{x0}
            v_lshlrev_b32 v{t[2]}, 16, v{x1}
            v_and_b32 v{t[3]}, 0xffff0000, v{x1}
            """)
            for e in range(4): p(f"v_add_f32 v{r+e}, v{r+e}, v{t[e]}")
        for src in range(3):
            for i in range(5):
                r = greg(tbo, a0 + i)
                for e in range(4): p(f"v_add_f32 v{r+e}, v{r+e}, v{stg[5*src+i]+e}")
                if src == 2:
                    p(f"""
                    v_cvt_pk_bf16_f32 v{r}, v{r}, v{r+1}
                    v_cvt_pk_bf16_f32 v{r+1}, v{r+2}, v{r+3}
                    ds_write_b64 v{vSt}, v[{r}:{r+1}] offset:{16*i}
                    """, tag='ow')
        p.waitlg('ow')
        for i in range(3): p(f"ds_read_b128 v[{48+4*i}:{51+4*i}], v{vLin} offset:{G_WO + 1024*i}")
        for i in range(2): p(f"buffer_store_dwordx4 v[{48+4*i}:{51+4*i}], v{vRow[i]}, s[{SOUT}:{SOUT+3}], s{sXo} offen")
        p(f"s_mov_b32 exec_hi, 0\nbuffer_store_dwordx4 v[56:59], v{vRow[2]}, s[{SOUT}:{SOUT+3}], s{sXo} offen")
        n0 = nst[0]
        if prof:
            p("s_mov_b64 exec, -1")
            stamp('G out issued' if wv == 0 else None)
            prof_end('G' if wv == 0 else 'G2')
            nst[0] = n0
        p("s_endpgm")
        if wv < 3:
            p(f"G_RED{wv+1}:")
            p.restore('red')
    p("K2_T:")
    p.restore('fork')
    nst[0] = 2
    tnames = []
    vKa, vVa, vQo, vHH = 2, 3, 4, 5
    vT = list(range(6, 16)); vQ = 16
    vMx, vMc, vDen = 28, 29, 30
    S0 = 48
    sTw, sKo, sMk = 40, 41, 42
    p(f"""
    s_sub_u32 s{sTw}, s{sW}, 4
    s_lshl_b32 s{sT}, s{sM}, 8
    s_sub_u32 s{sT}, s{sT}, 256
    s_lshl_b32 s{sT}, s{sT}, 3
    s_mul_i32 s{sT2}, s{sHd}, {5*16384}
    s_add_u32 s{sKo}, s{sT}, s{sT2}
    s_add_u32 s{sKo}, s{sKo}, {160*16384 + WS_QKV}
    v_lshlrev_b32 v{vT[0]}, 4, v{vLane}
    """)
    if cfg.get('noT') == 1:
        p("s_barrier\ns_endpgm")
    assert not (cfg.get('noT') == 2 and cfg.get('tsync', 1))
    p(f"s_lshl_b32 s{sT2}, s{sTw}, 10\ns_add_u32 s{sKo}, s{sKo}, s{sT2}")
    for kv in range(2):
        for G in range(5):
            base = (KP if kv == 0 else VP) + G * PS
            p(f"s_add_u32 m0, s{sT2}, {base}\ns_add_u32 s{sT}, s{sKo}, {kv*160*16384 + G*16384}")
            p(f"buffer_load_dwordx4 v{vT[0]}, s[{SWS}:{SWS+3}], s{sT} offen lds", tag='kv')
    vSy = 47
    if cfg.get('tsync', 1):
        p(f"""
        s_lshl_b32 s{sT}, s{sTw}, 2
        s_add_u32 s{sT}, s{sT}, {SYNC}
        v_mov_b32 v{vSy}, s{sT}
        v_mov_b32 v{vT[1]}, 0
        ds_write_b32 v{vSy}, v{vT[1]}
        s_waitcnt lgkmcnt(0)
        s_barrier
        """)
    if cfg.get('tprio', 0): p(f"s_setprio {cfg['tprio']}")
    p(f"""
    v_lshrrev_b32 v{vHH}, 5, v{vLane}
    v_and_b32 v{vT[1]}, 31, v{vLane}
    v_lshlrev_b32 v{vT[2]}, 3, v{vT[1]}
    v_lshl_add_u32 v{vQo}, v{vHH}, 15, v{vT[2]}
    s_lshl_b32 s{sT}, s{sM}, 3
    s_lshl_b32 s{sT3}, s{sTw}, 1
    s_add_u32 s{sT}, s{sT}, s{sT3}
    s_lshl_b32 s{sT}, s{sT}, 8
    s_mul_i32 s{sT3}, s{sHd}, {5*16384}
    s_add_u32 s{sT}, s{sT}, s{sT3}
    s_add_u32 s{sT}, s{sT}, {WS_QKV}
    """)
    for qb in range(2):
        q = vQ + 6*qb
        p(f"""
        s_add_u32 s{sT3}, s{sT}, {qb*256}
        buffer_load_dwordx2 v[{q}:{q+1}], v{vQo}, s[{SWS}:{SWS+3}], s{sT3} offen
        s_add_u32 s{sT3}, s{sT}, {qb*256 + 16384}
        buffer_load_dwordx2 v[{q+2}:{q+3}], v{vQo}, s[{SWS}:{SWS+3}], s{sT3} offen
        s_add_u32 s{sT3}, s{sT}, {qb*256 + 4*16384}
        buffer_load_dwordx2 v[{q+4}:{q+5}], v{vT[2]}, s[{SWS}:{SWS+3}], s{sT3} offen
        """)
    vPa, vPi, vPd = 44, 45, 46
    P = cfg.get('P', 4); nW = (20 * P + 7) // 8; nA = 4 * P; NPF = (27 + P - 1) // P
    assert nW + nA <= 64
    t = vT[3:8]
    if cfg.get('pft', 1):
        p(f"""
        s_and_b32 s{sT}, s{sMt}, 7
        s_mul_i32 s{sT}, s{sT}, {nW}
        v_add_u32 v{t[0]}, s{sT}, v{vLane}
        v_min_u32 v{t[0]}, {20*P - 1}, v{t[0]}
        v_lshlrev_b32 v{t[0]}, 7, v{t[0]}
        s_mul_i32 s{sT}, s{sNt}, 148
        s_mul_i32 s{sT3}, s{sTw}, 27
        s_add_u32 s{sT}, s{sT}, s{sT3}
        s_mul_i32 s{sT}, s{sT}, 2560
        s_add_u32 s{sT}, s{sT}, {WS_WF}
        v_add_u32 v{t[0]}, s{sT}, v{t[0]}
        v_subrev_u32 v{t[1]}, {nW}, v{vLane}
        v_cmp_le_i32 vcc, {2*P}, v{t[1]}
        v_cndmask_b32 v{t[2]}, 0, 1, vcc
        v_mul_u32_u24 v{t[3]}, {2*P}, v{t[2]}
        v_sub_u32 v{t[1]}, v{t[1]}, v{t[3]}
        s_and_b32 s{sT}, s{sNt}, 3
        s_mul_i32 s{sT}, s{sT}, {2*P}
        v_add_u32 v{t[1]}, s{sT}, v{t[1]}
        v_lshlrev_b32 v{t[1]}, 7, v{t[1]}
        v_mul_u32_u24 v{t[2]}, {108*1024}, v{t[2]}
        v_add_u32 v{t[1]}, v{t[1]}, v{t[2]}
        s_mul_i32 s{sT}, s{sMt}, {2*108*1024}
        s_lshl_b32 s{sT3}, s{sT3}, 10
        s_add_u32 s{sT}, s{sT}, s{sT3}
        s_add_u32 s{sT}, s{sT}, {WS_H}
        v_add_u32 v{t[1]}, s{sT}, v{t[1]}
        v_cmp_gt_u32 vcc, {nW}, v{vLane}
        v_cndmask_b32 v{vPa}, v{t[1]}, v{t[0]}, vcc
        v_mov_b32 v{t[0]}, {P*2560}
        v_mov_b32 v{t[1]}, {P*1024}
        v_cndmask_b32 v{vPi}, v{t[1]}, v{t[0]}, vcc
        s_bfm_b64 s[24:25], {nW + nA}, 0
        """)
    npf = [0]
    def pf(n=1):
        if not cfg.get('pft', 1): return
        for _ in range(n):
            j = npf[0]
            if j < NPF:
                if j >= cfg.get('pf0', 1):
                    p(f"s_mov_b64 exec, s[24:25]\nbuffer_load_dword v{vPd}, v{vPa}, s[{SWS}:{SWS+3}], 0 offen\ns_mov_b64 exec, -1", tag='pf')
                p(f"v_add_u32 v{vPa}, v{vPa}, v{vPi}")
            elif j == NPF and cfg.get('pfo', 1):
                p(f"""
                s_and_b32 s26, s{sMt}, 7
                s_mul_i32 s26, s26, 25
                v_add_u32 v{vPa}, s26, v{vLane}
                v_lshlrev_b32 v{vPa}, 7, v{vPa}
                s_mul_i32 s26, s{sNt}, 148
                s_mul_i32 s27, s{sTw}, 10
                s_add_u32 s26, s26, s27
                s_add_u32 s26, s26, 108
                s_mul_i32 s26, s26, 2560
                s_add_u32 s26, s26, {WS_WF}
                s_mov_b64 exec, 0x1ffffff
                buffer_load_dword v{vPd}, v{vPa}, s[{SWS}:{SWS+3}], s26 offen
                s_mov_b64 exec, -1
                """, tag='pf')
            npf[0] += 1
    pf(cfg.get('pfa', 3))
    if cfg.get('noT') == 2:
        pf(12)
        p("s_barrier\ns_waitcnt vmcnt(0)\ns_endpgm")
    p(f"""
    s_cmp_eq_u32 s{sM}, 0
    s_cselect_b32 s{sT}, 0xc700, 0
    s_cmp_lt_u32 s{sTw}, 2
    s_cselect_b32 s{sT}, s{sT}, 0
    v_mov_b32 v{vT[4]}, s{sT}
    v_mov_b32 v{vT[5]}, 0
    v_mov_b32 v{vT[6]}, s{sT}
    v_mov_b32 v{vT[7]}, 0
    v_add_u32 v{vT[3]}, s{sT2}, v{vT[0]}
    v_add_u32 v{vT[3]}, {KP + 5*PS}, v{vT[3]}
    ds_write_b128 v{vT[3]}, v[{vT[4]}:{vT[7]}]
    """)
    assert vT[4] % 2 == 0
    p(f"""
    v_mov_b32 v{vT[4]}, 0x3f80
    v_mov_b32 v{vT[6]}, 0x3f80
    ds_write_b128 v{vT[3]}, v[{vT[4]}:{vT[7]}] offset:{VP - KP}
    """)
    p(f"""
    v_mul_u32_u24 v{vT[3]}, {2*PS}, v{vHH}
    v_lshl_add_u32 v{vT[3]}, v{vT[1]}, 3, v{vT[3]}
    s_lshl_b32 s{sT}, s{sTw}, 9
    s_add_u32 s{sT}, s{sT}, {KP}
    v_add_u32 v{vKa}, s{sT}, v{vT[3]}
    v_mul_u32_u24 v{vT[3]}, {PS}, v{vHH}
    v_lshl_add_u32 v{vT[3]}, v{vT[1]}, 3, v{vT[3]}
    s_add_u32 s{sT3}, s{sT}, {4*PS}
    v_add_u32 v{vT[8]}, s{sT3}, v{vT[3]}
    """)
    vKt = vT[8]
    p(f"""
    v_bfe_u32 v{vT[3]}, v{vLane}, 4, 1
    v_and_b32 v{vT[4]}, 3, v{vLane}
    v_lshl_add_u32 v{vT[3]}, v{vT[3]}, 2, v{vT[4]}
    v_min_u32 v{vT[3]}, 5, v{vT[3]}
    v_mul_u32_u24 v{vT[3]}, {PS}, v{vT[3]}
    v_bfe_u32 v{vT[4]}, v{vLane}, 2, 2
    v_lshl_add_u32 v{vT[4]}, v{vHH}, 2, v{vT[4]}
    v_lshl_add_u32 v{vT[3]}, v{vT[4]}, 3, v{vT[3]}
    s_add_u32 s{sT3}, s{sT}, {VP - KP}
    v_add_u32 v{vVa}, s{sT3}, v{vT[3]}
    """)
    p(f"v_lshlrev_b32 v{vT[3]}, 2, v{vHH}\nv_sub_u32 v{vT[3]}, v{vT[1]}, v{vT[3]}")
    for r in range(16):
        p(f"v_cmp_le_i32 s[{sMk+2*r}:{sMk+2*r+1}], {8*(r>>2) + (r&3)}, v{vT[3]}")
    p(f"v_cmp_eq_u32 vcc, 1, v{vHH}")
    for qb in range(2):
        q = vQ + 6*qb
        p(f"v_mov_b32 v{vT[4]}, 0x3f80\nv_cndmask_b32 v{q+4}, v{q+4}, v{vT[4]}, vcc\nv_cndmask_b32 v{q+5}, v{q+5}, 0, vcc".replace(f"v_cndmask_b32 v{q+5}, v{q+5}, 0, vcc", f"v_mov_b32 v{vT[5]}, 0\nv_cndmask_b32 v{q+5}, v{q+5}, v{vT[5]}, vcc"))
    p(f"v_mov_b32 v{vT[9]}, {NEG}")
    vNeg = vT[9]
    p.waitvm('kv')
    if cfg.get('tsync', 1):
        p(f"""
        s_waitcnt lgkmcnt(0)
        v_mov_b32 v{vT[4]}, 1
        ds_write_b32 v{vSy}, v{vT[4]}
        v_mov_b32 v{vSy}, {SYNC}
        s_mov_b32 s{sT3}, 1000000
        """)
        p("T_SYNC:")
        p(f"""
        ds_read_b128 v[32:35], v{vSy}
        s_sub_u32 s{sT3}, s{sT3}, 1
        s_waitcnt lgkmcnt(0)
        v_and_b32 v32, v32, v33
        v_and_b32 v34, v34, v35
        v_and_b32 v32, v32, v34
        v_cmp_ne_u32 vcc, 1, v32
        s_cmp_eq_u32 s{sT3}, 0
        s_cbranch_scc1 T_SYNCED
        s_cbranch_vccnz T_SYNC
        """)
        p("T_SYNCED:")
    else:
        p("s_waitcnt lgkmcnt(0)\ns_barrier")
    stamp()
    if cfg.get('noT') == 3: p("s_endpgm")
    KF = 16
    VF = 40
    OA = 0
    St = lambda n: S0 + 16*n
    def kread(qb, n):
        b = KF + 8 * (n % 3)
        off = (qb + n) * 256
        p(f"ds_read_b64 a[{b}:{b+1}], v{vKa} offset:{off}\nds_read_b64 a[{b+2}:{b+3}], v{vKa} offset:{off+PS}\nds_read_b64 a[{b+4}:{b+5}], v{vKt} offset:{off}")
    def smfma(qb, n):
        b = KF + 8 * (n % 3); q = vQ + 6*qb; s = St(n)
        cin = "0"
        if n == 0 or n == 8:
            for r in range(16):
                m = f"s[{sMk+2*r}:{sMk+2*r+1}]"
                if n == 8: p(f"v_cndmask_b32 v{s+r}, v{vNeg}, 0, {m}")
                else: p(f"v_cndmask_b32 v{s+r}, 0, v{vNeg}, {m}")
            cin = f"v[{s}:{s+15}]"
        if cfg.get('nosm'): return
        p(f"v_mfma_f32_32x32x16_bf16 v[{s}:{s+15}], a[{b}:{b+3}], v[{q}:{q+3}], {cin}")
        p(f"v_mfma_f32_32x32x8_bf16 v[{s}:{s+15}], a[{b+4}:{b+5}], v[{q+4}:{q+5}], v[{s}:{s+15}]")
    def vread(qb, n):
        for j in range(2):
            b = VF + 4 * ((2*n + j) % 6)
            off = (qb + n) * 256 + j * 128
            p(f"ds_read_b64_tr_b16 a[{b}:{b+1}], v{vVa} offset:{off}\nds_read_b64_tr_b16 a[{b+2}:{b+3}], v{vVa} offset:{off+64}")
    sC = 39
    p(f"s_mov_b32 s{sC}, {C_SC!r}")
    for qb in range(2):
        kread(qb, 0); kread(qb, 1)
        for n in range(9):
            if n + 2 < 9: kread(qb, n + 2)
            smfma(qb, n)
            if qb == 0 and n % cfg.get('pfs', 2) == 0: pf(1)
        for n in range(9):
            s = St(n)
            for r in range(0, 16, 2):
                if n == 0 and r == 0: p(f"v_max_f32 v{vMx}, v{s}, v{s+1}")
                else: p(f"v_max3_f32 v{vMx}, v{vMx}, v{s+r}, v{s+r+1}")
        p(f"""
        v_mov_b32 v{vMc}, v{vMx}
        v_permlane32_swap_b32 v{vMx}, v{vMc}
        v_max_f32 v{vMx}, v{vMx}, v{vMc}
        v_mul_f32 v{vMc}, s{sC}, v{vMx}
        """)
        vread(qb, 0); vread(qb, 1)
        for n in range(9):
            s = St(n)
            if n + 2 < 9: vread(qb, n + 2)
            for r in range(16): p(f"v_fma_f32 v{s+r}, v{s+r}, s{sC}, -v{vMc}")
            for r in range(16 if not cfg.get('noexp') else 0): p(f"v_exp_f32 v{s+r}, v{s+r}")
            for r in range(8): p(f"v_cvt_pk_bf16_f32 v{s+r}, v{s+2*r}, v{s+2*r+1}")
            for j in range(2):
                b = VF + 4 * ((2*n + j) % 6)
                cin = "0" if (n == 0 and j == 0) else f"a[{OA}:{OA+15}]"
                p(f"v_mfma_f32_32x32x16_bf16 a[{OA}:{OA+15}], a[{b}:{b+3}], v[{s+4*j}:{s+4*j+3}], {cin}")
        o = list(range(32, 44))
        p(f"v_accvgpr_read_b32 v{vDen}, a{OA+12}")
        for r in range(12): p(f"v_accvgpr_read_b32 v{o[r]}, a{OA+r}")
        p(f"v_rcp_f32 v{vDen}, v{vDen}")
        for r in range(12): p(f"v_mul_f32 v{o[r]}, v{o[r]}, v{vDen}")
        for r in range(6): p(f"v_cvt_pk_bf16_f32 v{o[r]}, v{o[2*r]}, v{o[2*r+1]}")
        p(f"""
        s_lshl_b32 s{sT}, s{sM}, 3
        s_lshl_b32 s{sT2}, s{sTw}, 1
        s_add_u32 s{sT}, s{sT}, s{sT2}
        s_add_u32 s{sT}, s{sT}, {qb}
        s_lshl_b32 s{sT}, s{sT}, 5
        s_add_u32 s{sT}, s{sT}, s{sHd}
        s_lshl_b32 s{sT2}, s{sT}, 10
        s_add_u32 s{sT2}, s{sT2}, {WS_O}
        s_lshl_b32 s{sT}, s{sT}, 8
        s_add_u32 s{sT}, s{sT}, {WS_OT}
        v_lshlrev_b32 v{vT[0]}, 4, v{vLane}
        v_lshlrev_b32 v{vT[2]}, 3, v{vLane}
        buffer_store_dwordx4 v[{o[0]}:{o[3]}], v{vT[0]}, s[{SWS}:{SWS+3}], s{sT2} offen sc1
        s_mov_b32 exec_hi, 0
        buffer_store_dwordx2 v[{o[4]}:{o[5]}], v{vT[2]}, s[{SWS}:{SWS+3}], s{sT} offen sc1
        s_mov_b64 exec, -1
        """)
        stamp()
    p(f"""
    s_lshl_b32 s{sT}, s{sM}, 2
    s_add_u32 s{sT}, s{sT}, s{sTw}
    s_lshl_b32 s{sT}, s{sT}, 5
    s_add_u32 s{sT}, s{sT}, s{sHd}
    s_lshl_b32 s{sT}, s{sT}, 2
    s_add_u32 s{sT}, s{sT}, {WS_FLAG}
    v_mov_b32 v{vT[4]}, 1
    v_mov_b32 v{vT[5]}, 0
    s_waitcnt vmcnt(0)
    s_mov_b64 exec, 1
    buffer_store_dword v{vT[4]}, v{vT[5]}, s[{SWS}:{SWS+3}], s{sT} offen sc1
    """)
    if prof:
        p("s_mov_b64 exec, -1")
        while nst[0] < 2 + len(names) - 1: stamp()
        prof_end('T')
    p("s_endpgm")
    p("K2_END:")
    return p
```

```python
from asmlib import Prog
from k1 import srd, WS_QKV, WS_H, WS_O, WS_OT, WS_FLAG, WS_SIZE, WS_PROF, S_G, S_Q
WS_WF = 20 << 20
WS_SIZE2 = 24 << 20
SLOT = 32 * 1024; NSLOT = 4
XB = NSLOT * SLOT

def gen_k1(cfg):
    D = cfg.get('D', 5); RING = cfg.get('RING', 8); BUD = cfg.get('BUD', 4)
    ROT = cfg.get('rot', 1)
    p = Prog()
    prof = cfg.get('prof', 0)
    SP = [88, 90, 92, 94, 96, 98, 100, 74, 76, 78, 80, 82, 84, 86]
    nst = [0]
    def stamp(name=None):
        if not prof: return
        i = nst[0]; nst[0] += 1
        p(f's_memtime s[{SP[i]}:{SP[i]+1}]' if i else 's_memrealtime s[88:89]')
        if name: cfg.setdefault('_names', []).append(name)
    SX, SQ, SG, SU, SW, S1, S2 = 4, 8, 12, 16, 20, 24, 28
    sW, sMi, sNi, sVar = 32, 33, 34, 35
    sXoff = 36
    sB = [37, 38, 39, 40]
    sRG, sRX, sK23 = 41, 42, 43
    sB2 = [44, 45]
    sR2 = 46
    sWm, sW6 = 47, 48
    sMask, sT, sT2, sT3 = 49, 50, 51, 52
    sHoff = [53, 54, 55, 56]
    sQoff = [57, 58, 59, 60, 61]
    sXl, sNL2E, sRot = 62, 63, 64
    sWo = 2 * 0 + 86
    sM = [66, 68, 70, 72, 84]
    vLane, vXe, vXo = 1, 2, 3
    vXA = [4, 5, 6, 7]; vXB = [8, 9, 10, 11]
    vDe, vDo, vS = 12, 13, 14
    vU = [15, 16, 17, 18]
    vP01, vP23, vPq2, vPs2 = 19, 20, 21, 22
    vL16, vQst, vRstd, vNmr = 23, 24, 25, 26
    vT = list(range(28, 48))
    vHi = {vDe: 4, vDo: 5, vS: 6, vU[0]: 7, vU[1]: 8, vU[2]: 9, vU[3]: 10}
    vSum = 44; vOne = 40
    ACC3 = 48; X0 = 96; WR0 = 128
    GR = ACC3 + 32
    xr = lambda s: f"v[{X0+4*s}:{X0+4*s+3}]"
    stamp(); stamp()
    p(f"""
    s_cmp_ge_u32 s2, 256
    s_cbranch_scc1 K1_END
    s_load_dwordx4 s[76:79], s[0:1], 0
    s_load_dwordx4 s[80:83], s[0:1], 32
    s_load_dwordx2 s[84:85], s[0:1], 72
    s_load_dwordx2 s[74:75], s[0:1], 48
    s_load_dwordx2 s[{sWo}:{sWo+1}], s[0:1], 16
    v_and_b32 v{vLane}, 63, v0
    v_lshrrev_b32 v{vT[0]}, 6, v0
    s_and_b32 s{sT}, s2, 3
    v_readfirstlane_b32 s{sW}, v{vT[0]}
    s_lshl_b32 s{sT}, s{sT}, 2
    s_bfe_u32 s{sT2}, s2, 0x20003
    s_add_u32 s{sMi}, s{sT}, s{sT2}
    s_bfe_u32 s{sT}, s2, 0x10002
    s_lshl_b32 s{sT}, s{sT}, 3
    s_lshr_b32 s{sT3}, s2, 5
    s_add_u32 s{sNi}, s{sT}, s{sT3}
    """)
    if ROT:
        p(f"""
        s_mul_i32 s{sT}, s{sT2}, 5
        s_lshr_b32 s{sT}, s{sT}, 1
        s_add_u32 s{sRot}, s{sT}, s{sT3}
        s_cmp_ge_u32 s{sRot}, 10
        s_cselect_b32 s{sT}, 10, 0
        s_sub_u32 s{sRot}, s{sRot}, s{sT}
        """)
    else:
        p(f"s_mov_b32 s{sRot}, 0")
    p(f"""
    s_lshr_b32 s{sVar}, s{sNi}, 3
    s_lshl_b32 s{sT}, s{sMi}, 2
    s_add_u32 s{sT}, s{sT}, s{sW}
    s_mul_i32 s{sXoff}, s{sT}, {32*1280}
    s_lshl_b32 s{sXl}, s{sW}, 13
    s_add_u32 s{sXl}, s{sXl}, {XB}
    s_lshr_b32 s{sT}, s{sW}, 1
    s_lshl_b32 s{sWm}, s{sT}, 13
    s_and_b32 s{sT}, s{sW}, 1
    s_lshl_b32 s{sT}, s{sT}, 12
    s_add_u32 s{sWm}, s{sWm}, s{sT}
    v_lshrrev_b32 v{vT[0]}, 3, v{vLane}
    v_mul_u32_u24 v{vT[0]}, 1280, v{vT[0]}
    v_lshrrev_b32 v{vT[1]}, 4, v{vLane}
    v_and_b32 v{vT[2]}, 7, v{vLane}
    v_xor_b32 v{vT[3]}, v{vT[2]}, v{vT[1]}
    v_xor_b32 v{vT[4]}, 4, v{vT[3]}
    v_lshl_add_u32 v{vXe}, v{vT[3]}, 4, v{vT[0]}
    v_lshl_add_u32 v{vXo}, v{vT[4]}, 4, v{vT[0]}
    s_lshl_b32 s{sT3}, s{sRot}, 7
    s_waitcnt lgkmcnt(0)
    """)
    srd(p, SX, 76, 77, 2048 * 1280)
    sXc = 65
    p(f"s_mov_b32 s{sXc}, s{sT3}")
    xplace = [('W', 0), ('W', 16384), ('W', SLOT), ('W', SLOT + 16384), ('W', 2*SLOT), ('W', 2*SLOT + 16384), ('W', 3*SLOT), ('W', 3*SLOT + 16384), ('X', 0), ('X', 4096)]
    def xdma(c):
        kind, off = xplace[c]
        out = [f"s_add_u32 s{sT2}, s{sXoff}, s{sXc}"]
        for i in range(4):
            out.append(f"s_add_u32 m0, s{sXl if kind == 'X' else sWm}, {off + i*1024}")
            out.append(f"s_add_u32 s{sT}, s{sT2}, {8*i*1280}")
            out.append(f"buffer_load_dwordx4 v{vXe if i%2==0 else vXo}, s[{SX}:{SX+3}], s{sT} offen lds")
        out += [f"s_add_u32 s{sXc}, s{sXc}, 128", f"s_cmp_ge_u32 s{sXc}, 1280", f"s_cselect_b32 s{sT}, 1280, 0", f"s_sub_u32 s{sXc}, s{sXc}, s{sT}"]
        return out
    def emit_stream(lines, tag=None):
        for l in lines: p(l, tag=tag)
    NF0 = cfg.get('nfirst', 3)
    for c in range(NF0): emit_stream(xdma(c), tag=f'x{c}')
    stamp('x issued')
    srd(p, SQ, 78, 79, 640 * S_Q)
    srd(p, SG, 80, 81, 640 * S_G)
    srd(p, SU, 82, 83, 640 * S_G)
    srd(p, SW, 84, 85, WS_SIZE2)
    if cfg.get('pf', 1) == 1:
        p(f"""
        s_getpc_b64 s[76:77]
        v_lshlrev_b32 v{vT[5]}, 7, v0
        s_and_b32 s76, s76, 0xffffff00
        global_load_dword v27, v{vT[5]}, s[76:77]
        """, tag='pf')
    if cfg.get('pf', 1) >= 2:
        end = 'TEXT_END' if cfg['pf'] == 2 else 'K1_END'
        p(f"""
        s_getpc_b64 s[76:77]
        K1_PFB:
        s_lshr_b32 s{sT}, s2, 3
        s_lshl_b32 s{sT}, s{sT}, 2
        s_add_u32 s{sT}, s{sT}, s{sW}
        s_lshl_b32 s{sT}, s{sT}, 2
        s_mov_b32 s{sT2}, {end}-K1_PFB-4
        v_add_u32 v{vT[5]}, s{sT}, v{vLane}
        v_lshlrev_b32 v{vT[5]}, 7, v{vT[5]}
        v_min_u32 v{vT[5]}, s{sT2}, v{vT[5]}
        s_mov_b64 exec, 15
        global_load_dword v27, v{vT[5]}, s[76:77]
        s_mov_b64 exec, -1
        """, tag='pf')
    sPd, sPs = 66, 67
    sQd1, sQd2, sQs = 68, 69, 70
    p(f"""
    s_mul_i32 s{sT}, s{sNi}, 3
    s_add_u32 s{sT}, s{sT}, 8
    s_and_b32 s{sT2}, s{sT}, 1
    s_add_u32 s{sPd}, s{sT}, s{sT2}
    s_min_u32 s{sPd}, s{sPd}, 52
    s_xor_b32 s{sT2}, s{sT2}, 1
    s_lshl_b32 s{sT2}, s{sT2}, 1
    s_add_u32 s{sPs}, s{sT}, s{sT2}
    s_min_u32 s{sPs}, s{sPs}, 53
    s_lshl_b32 s{sT}, s{sNi}, 2
    s_add_u32 s{sT2}, s{sT}, 2
    s_cmp_eq_u32 s{sVar}, 0
    s_cselect_b32 s{sPd}, s{sT}, s{sPd}
    s_cselect_b32 s{sPs}, s{sT2}, s{sPs}
    """)
    p(f"""
    s_mul_i32 s{sT}, s{sNi}, 3
    s_mul_i32 s{sT2}, s{sNi}, 5
    s_sub_u32 s{sT2}, s{sT2}, 16
    s_cmp_eq_u32 s{sVar}, 0
    s_cselect_b32 s{sT}, s{sT}, s{sT2}
    s_cselect_b32 s{sT3}, 0, 2
    s_and_b32 s{sT2}, s{sT}, 1
    s_add_u32 s{sQd1}, s{sT}, s{sT2}
    s_add_u32 s{sQd2}, s{sQd1}, s{sT3}
    s_add_u32 s{sT3}, s{sT3}, 2
    s_cmp_eq_u32 s{sT2}, 0
    s_cselect_b32 s{sT3}, s{sT3}, 0
    s_add_u32 s{sQs}, s{sT}, s{sT3}
    s_min_u32 s{sQd1}, s{sQd1}, 58
    s_min_u32 s{sQd2}, s{sQd2}, 58
    s_min_u32 s{sQs}, s{sQs}, 59
    """)
    p(f"s_lshl_b32 s{sT3}, s{sMi}, 2\ns_add_u32 s{sT3}, s{sT3}, s{sW}\ns_mul_i32 s{sT}, s{sT3}, {54*2048}\ns_add_u32 s{sT}, s{sT}, {WS_H}")
    for j, (base, add) in enumerate(((sPd, 0), (sPd, 1), (sPs, 0), (sPs, 1))):
        p(f"s_add_u32 s{sT2}, s{base}, {add}\ns_min_u32 s{sT2}, s{sT2}, 53\ns_lshl_b32 s{sT2}, s{sT2}, 11\ns_add_u32 s{sHoff[j]}, s{sT2}, s{sT}")
    p(f"s_lshl_b32 s{sT}, s{sT3}, 8\ns_add_u32 s{sT}, s{sT}, {WS_QKV}")
    for j, (base, add) in enumerate(((sQd1, 0), (sQd1, 1), (sQd2, 0), (sQd2, 1), (sQs, 0))):
        p(f"s_add_u32 s{sT2}, s{base}, {add}\ns_lshl_b32 s{sT2}, s{sT2}, 17\ns_add_u32 s{sQoff[j]}, s{sT2}, s{sT}")
    sSp = 71
    p(f"""
    s_and_b32 s{sT}, s{sW}, 1
    s_and_b32 s{sSp}, s{sT}, s{sVar}
    s_cmp_eq_u32 s{sT}, 0
    s_cselect_b32 s{sT2}, s{sPd}, s{sPs}
    s_lshl_b32 s{sT2}, s{sT2}, 6
    s_lshr_b32 s{sT3}, s{sW}, 1
    s_mul_i32 s{sT}, s{sT3}, {16*S_G}
    s_add_u32 s{sT2}, s{sT2}, s{sT}
    s_mov_b32 s{sB[0]}, s{sT2}
    s_add_u32 s{sB[1]}, s{sT2}, {8*S_G}
    s_mov_b32 s{sB[2]}, s{sT2}
    s_add_u32 s{sB[3]}, s{sT2}, {8*S_G}
    s_lshl_b32 s{sT}, s{sQd1}, 6
    s_mul_i32 s{sT3}, s{sT3}, {16*S_Q}
    s_add_u32 s{sT}, s{sT}, s{sT3}
    s_add_u32 s{sT3}, s{sT}, {8*S_Q}
    s_cmp_eq_u32 s{sSp}, 1
    s_cselect_b32 s{sB[1]}, s{sT2}, s{sB[1]}
    s_cselect_b32 s{sB[2]}, s{sT}, s{sB[2]}
    s_cselect_b32 s{sB[3]}, s{sT3}, s{sB[3]}
    s_cselect_b32 s{S1}, s{SU}, s{SG}
    s_cselect_b32 s{S1+1}, s{SU+1}, s{SG+1}
    s_mov_b32 s{S1+2}, {640*S_G}
    s_mov_b32 s{S1+3}, 0x20000
    s_cselect_b32 s{S2}, s{SQ}, s{SU}
    s_cselect_b32 s{S2+1}, s{SQ+1}, s{SU+1}
    s_cselect_b32 s{S2+2}, s{SQ+2}, s{SU+2}
    s_mov_b32 s{S2+3}, 0x20000
    s_mov_b32 s{sK23}, {64*S_G}
    s_cselect_b32 s{sK23}, {64*S_Q}, s{sK23}
    s_mul_i32 s{sRG}, s{sRot}, {64*S_G}
    s_mul_i32 s{sRX}, s{sRot}, s{sK23}
    """)
    p(f"""
    s_and_b32 s{sT}, s{sW}, 1
    s_mul_i32 s{sT}, s{sT}, {32*S_Q}
    s_lshl_b32 s{sB2[0]}, s{sQd2}, 6
    s_add_u32 s{sB2[0]}, s{sB2[0]}, s{sT}
    s_lshl_b32 s{sB2[1]}, s{sQs}, 6
    s_add_u32 s{sB2[1]}, s{sB2[1]}, s{sT}
    s_lshr_b32 s{sT}, s{sW}, 1
    s_add_u32 s{sT}, s{sT}, s{sRot}
    s_cmp_ge_u32 s{sT}, 10
    s_cselect_b32 s{sT2}, 10, 0
    s_sub_u32 s{sT}, s{sT}, s{sT2}
    s_mul_i32 s{sR2}, s{sT}, {64*S_Q}
    s_mul_i32 s{sW6}, s{sW}, 6144
    s_mov_b32 s{sMask}, 0xffff0000
    s_mov_b32 s{sNL2E}, 0xbfb8aa3b
    """)
    t = vT
    p(f"""
    v_lshrrev_b32 v{t[0]}, 3, v{vLane}
    v_bfe_u32 v{t[1]}, v{vLane}, 4, 1
    v_lshlrev_b32 v{t[1]}, 2, v{t[1]}
    v_and_b32 v{t[2]}, 7, v{vLane}
    v_xor_b32 v{t[1]}, v{t[1]}, v{t[2]}
    v_lshlrev_b32 v{t[1]}, 4, v{t[1]}
    v_mul_u32_u24 v{t[2]}, {S_G}, v{t[0]}
    v_add_u32 v{t[2]}, v{t[2]}, v{t[1]}
    v_mul_u32_u24 v{vPq2}, {S_Q}, v{t[0]}
    v_add_u32 v{vPq2}, v{vPq2}, v{t[1]}
    v_bfe_u32 v{t[3]}, v{vLane}, 2, 2
    v_lshrrev_b32 v{t[4]}, 5, v{vLane}
    v_lshl_add_u32 v{t[3]}, v{t[4]}, 2, v{t[3]}
    v_bfe_u32 v{t[4]}, v{vLane}, 4, 1
    v_lshl_add_u32 v{t[3]}, v{t[4]}, 3, v{t[3]}
    v_and_b32 v{t[4]}, 3, v{vLane}
    v_lshlrev_b32 v{t[4]}, 4, v{t[4]}
    v_mul_u32_u24 v{t[5]}, {S_G}, v{t[3]}
    v_add_u32 v{t[5]}, v{t[5]}, v{t[4]}
    v_mul_u32_u24 v{vPs2}, {S_Q}, v{t[3]}
    v_add_u32 v{vPs2}, v{vPs2}, v{t[4]}
    s_cmp_eq_u32 s{sSp}, 1
    s_cselect_b64 vcc, -1, 0
    v_cndmask_b32 v{vP01}, v{t[2]}, v{t[5]}, vcc
    v_cndmask_b32 v{vP23}, v{t[2]}, v{vPq2}, vcc
    """)
    p(f"""
    v_lshrrev_b32 v{t[0]}, 5, v{vLane}
    v_bfe_u32 v{t[1]}, v{vLane}, 2, 2
    v_bfe_u32 v{t[2]}, v{vLane}, 4, 1
    v_lshlrev_b32 v{t[2]}, 5, v{t[2]}
    v_and_b32 v{t[3]}, 3, v{vLane}
    v_lshl_add_u32 v{t[2]}, v{t[3]}, 3, v{t[2]}
    v_lshl_add_u32 v{t[3]}, v{t[0]}, 3, v{t[1]}
    v_lshlrev_b32 v{t[3]}, 7, v{t[3]}
    v_bfe_u32 v{t[4]}, v{vLane}, 3, 1
    v_lshl_add_u32 v{t[3]}, v{t[4]}, 6, v{t[3]}
    v_add_u32 v{vDe}, v{t[3]}, v{t[2]}
    v_xor_b32 v{vDo}, 64, v{vDe}
    v_lshl_add_u32 v{t[3]}, v{t[0]}, 2, v{t[1]}
    v_lshl_add_u32 v{t[5]}, v{t[3]}, 6, v{t[2]}
    v_add_u32 v{vS}, 2048, v{t[5]}
    s_cmp_eq_u32 s{sVar}, 0
    s_cselect_b64 vcc, -1, 0
    v_add_u32 v{t[6]}, 4096, v{t[5]}
    v_add_u32 v{t[7]}, 4096, v{vDe}
    v_cndmask_b32 v{vU[0]}, v{t[6]}, v{t[7]}, vcc
    v_add_u32 v{t[6]}, 5120, v{t[5]}
    v_add_u32 v{t[7]}, 6144, v{vDe}
    v_cndmask_b32 v{vU[1]}, v{t[6]}, v{t[7]}, vcc
    v_add_u32 v{t[6]}, 6144, v{vDe}
    v_add_u32 v{t[7]}, 4096, v{vDo}
    v_cndmask_b32 v{vU[2]}, v{t[6]}, v{t[7]}, vcc
    v_add_u32 v{vU[3]}, 6144, v{vDo}
    v_lshlrev_b32 v{vL16}, 4, v{vLane}
    v_and_b32 v{t[1]}, 31, v{vLane}
    v_lshlrev_b32 v{t[2]}, 3, v{t[1]}
    v_lshl_add_u32 v{vQst}, v{t[0]}, 14, v{t[2]}
    """)
    p(f"v_bfe_u32 v{t[2]}, v{vLane}, 1, 3\nv_lshlrev_b32 v{t[3]}, 7, v{t[1]}")
    for jj in range(4):
        p(f"""
        v_add_u32 v{t[4]}, {2*jj}, v{t[0]}
        v_xor_b32 v{t[4]}, v{t[4]}, v{t[2]}
        v_lshl_add_u32 v{t[4]}, v{t[4]}, 4, v{t[3]}
        v_add_u32 v{vXA[jj]}, s{sXl}, v{t[4]}
        v_add_u32 v{vXB[jj]}, s{sWm}, v{t[4]}
        """)
    p(f"""
    v_and_b32 v{t[4]}, 7, v{vLane}
    v_bfe_u32 v{t[5]}, v{vLane}, 4, 1
    v_lshlrev_b32 v{t[5]}, 2, v{t[5]}
    v_cmp_eq_u32 vcc, v{t[4]}, v{t[5]}
    v_mov_b32 v{t[6]}, 0x3f803f80
    v_cndmask_b32 v{vOne}, 0, v{t[6]}, vcc
    v_mov_b32 v{vOne+1}, v{vOne}
    v_mov_b32 v{vOne+2}, v{vOne}
    v_mov_b32 v{vOne+3}, v{vOne}
    """)
    p(f"""
    v_mov_b32 v{t[0]}, 0
    v_mov_b32 v{t[1]}, 0
    v_mov_b32 v{t[2]}, 0
    v_mov_b32 v{t[3]}, 0
    v_mov_b32 v{t[4]}, 0
    s_lshl_b32 s{sT}, s2, 4
    s_add_u32 s{sT}, s{sT}, {WS_FLAG}
    s_mov_b64 exec, 1
    buffer_store_dwordx4 v[{t[0]}:{t[3]}], v{t[4]}, s[{SW}:{SW+3}], s{sT} offen sc1
    s_mov_b64 exec, -1
    """, tag='flagz')
    frags = []; chunks = []
    for c in range(10):
        chunks.append(dict(first=len(frags), pas=1))
        for sl in range(4):
            for u in range(8):
                blk = (len(chunks) - 1) % NSLOT * SLOT + sl * 8192
                va, o = {0: (vDe, 0), 1: (vDe, 2048), 2: (vDo, 0), 3: (vDo, 2048)}.get(u, (vU[u-4] if u >= 4 else None, 0))
                frags.append((1, u, 4*c + sl, len(chunks) - 1, va, blk + o))
    for c in range(5):
        chunks.append(dict(first=len(frags), pas=2))
        for sl in range(8):
            for u in range(3):
                blk = (len(chunks) - 1) % NSLOT * SLOT + sl * 3072
                frags.append((2, 8 + u, 8*c + sl, len(chunks) - 1, (vDe, vDo, vS)[u], blk))
    NF = len(frags)
    def wdma(c):
        ch = chunks[c]; base = (c % NSLOT) * SLOT
        out = []
        if ch['pas'] == 1:
            for i in range(2):
                for d in range(4):
                    S = (SG, S1, S2, S2)[d]; va = vP01 if d < 2 else vP23
                    out.append(f"s_add_u32 m0, s{sWm}, {base + i*16384 + d*1024}")
                    out.append(f"s_add_u32 s{sT3}, s{sB[d]}, s{sRG if d < 2 else sRX}")
                    out.append(f"buffer_load_dwordx4 v{va}, s[{S}:{S+3}], s{sT3} offen lds")
                if i == 0:
                    out.append(f"s_lshr_b32 s{sT3}, s{sK23}, 1")
                    out.append(f"s_add_u32 s{sRG}, s{sRG}, {32*S_G}")
                    out.append(f"s_add_u32 s{sRX}, s{sRX}, s{sT3}")
            out += [f"s_lshr_b32 s{sT3}, s{sK23}, 1", f"s_add_u32 s{sRG}, s{sRG}, {32*S_G}", f"s_add_u32 s{sRX}, s{sRX}, s{sT3}",
                    f"s_cmp_ge_u32 s{sRG}, {640*S_G}", f"s_cselect_b32 s{sRG}, 0, s{sRG}", f"s_cselect_b32 s{sRX}, 0, s{sRX}"]
        else:
            for i in range(2):
                for (va, b, extra, pos) in ((vPq2, sB2[0], 0, 0), (vPq2, sB2[0], 8*S_Q, 1024), (vPs2, sB2[1], 0, 2048)):
                    out.append(f"s_add_u32 m0, s{sW6}, {base + i*3072 + pos}")
                    out.append(f"s_add_u32 s{sT3}, s{b}, s{sR2}")
                    if extra + i*16*S_Q: out.append(f"s_add_u32 s{sT3}, s{sT3}, {extra + i*16*S_Q}")
                    out.append(f"buffer_load_dwordx4 v{va}, s[{SQ}:{SQ+3}], s{sT3} offen lds")
            out += [f"s_add_u32 s{sR2}, s{sR2}, {128*S_Q}", f"s_cmp_ge_u32 s{sR2}, {640*S_Q}", f"s_cselect_b32 s{sT3}, {640*S_Q}, 0", f"s_sub_u32 s{sR2}, s{sR2}, s{sT3}"]
        return out
    def stats_mfma(s, first):
        c0 = "0" if first else f"v[{GR}:{GR+15}]"
        c1 = "0" if first else f"v[{vSum}:{vSum+3}]"
        p(f"v_mfma_f32_32x32x16_bf16 v[{GR}:{GR+15}], {xr(s)}, {xr(s)}, {c0}")
        p(f"v_mfma_f32_16x16x32_bf16 v[{vSum}:{vSum+3}], v[{vOne}:{vOne+3}], {xr(s)}, {c1}")
    for c in range(10):
        p.waitvm(f'x{c}')
        if c == 0: stamp('x0 arrived')
        if c == 4: stamp('x4 arrived')
        kind, off = xplace[c]
        for jj in range(4):
            if kind == 'X': p(f"ds_read_b128 {xr(4*c+jj)}, v{vXA[jj]} offset:{off}", tag=f'xr{c}')
            else:
                if off >= 65536 and xplace[c-1][1] < 65536: p(f"v_add_u32 v{vXB[jj]}, 0x10000, v{vXB[jj]}")
                p(f"ds_read_b128 {xr(4*c+jj)}, v{vXB[jj]} offset:{off % 65536}", tag=f'xr{c}')
        if c + NF0 < 10: emit_stream(xdma(c + NF0), tag=f'x{c+NF0}')
        if c > 0:
            for jj in range(4): stats_mfma(4*(c-1)+jj, c == 1 and jj == 0)
        if c + NF0 == 9 + cfg.get('wdel', 0):
            p.waitlg('xr0'); p.waitlg('xr1')
            emit_stream(wdma(0), tag='w0')
        if c + NF0 == 10 + cfg.get('wdel', 0):
            p.waitlg('xr2'); p.waitlg('xr3')
            emit_stream(wdma(1), tag='w1')
    for jj in range(4): stats_mfma(36 + jj, False)
    stamp('x+stats')
    for va, hi in vHi.items(): p(f"v_add_u32 v{hi}, 0x10000, v{va}")
    for b, bit in enumerate((0, 1, 3, 4, 2)):
        p(f"v_bfe_u32 v{t[0]}, v{vLane}, {bit}, 1\nv_cmp_eq_u32 s[{sM[b]}:{sM[b]+1}], 1, v{t[0]}")
    G = lambda r: f"v{GR+r}"
    for i in range(8): p(f"v_cndmask_b32 v{t[i]}, {G(2*i)}, {G(2*i+1)}, s[{sM[0]}:{sM[0]+1}]")
    for i in range(4): p(f"v_cndmask_b32 v{t[i]}, v{t[2*i]}, v{t[2*i+1]}, s[{sM[1]}:{sM[1]+1}]")
    for i in range(2): p(f"v_cndmask_b32 v{t[i]}, v{t[2*i]}, v{t[2*i+1]}, s[{sM[2]}:{sM[2]+1}]")
    p(f"v_cndmask_b32 v{t[0]}, v{t[0]}, v{t[1]}, s[{sM[3]}:{sM[3]+1}]")
    p(f"""
    v_mov_b32 v{t[1]}, v{t[0]}
    v_permlane32_swap_b32 v{t[0]}, v{t[1]}
    v_cndmask_b32 v{t[0]}, v{t[0]}, v{t[1]}, s[{sM[4]}:{sM[4]+1}]
    v_mul_f32 v{t[2]}, {1.0/640!r}, v{vSum}
    v_mul_f32 v{t[0]}, {1.0/640!r}, v{t[0]}
    v_fma_f32 v{t[0]}, -v{t[2]}, v{t[2]}, v{t[0]}
    v_max_f32 v{t[0]}, 0, v{t[0]}
    v_add_f32 v{t[0]}, 0x3727c5ac, v{t[0]}
    v_rsq_f32 v{vRstd}, v{t[0]}
    v_mul_f32 v{vNmr}, v{t[2]}, v{vRstd}
    v_mul_f32 v{vNmr}, -1.0, v{vNmr}
    """)
    def norm_stream(s):
        out = []
        regs = [X0 + 4*s + i for i in range(4)]
        for h in range(2):
            a, b = regs[2*h], regs[2*h+1]
            t0, t1, t2, t3 = vT[4*h:4*h+4]
            out += [f"v_lshlrev_b32 v{t0}, 16, v{a}", f"v_and_b32 v{t1}, s{sMask}, v{a}",
                    f"v_lshlrev_b32 v{t2}, 16, v{b}", f"v_and_b32 v{t3}, s{sMask}, v{b}",
                    f"v_fma_f32 v{t0}, v{t0}, v{vRstd}, v{vNmr}", f"v_fma_f32 v{t1}, v{t1}, v{vRstd}, v{vNmr}",
                    f"v_fma_f32 v{t2}, v{t2}, v{vRstd}, v{vNmr}", f"v_fma_f32 v{t3}, v{t3}, v{vRstd}, v{vNmr}",
                    f"v_cvt_pk_bf16_f32 v{a}, v{t0}, v{t1}", f"v_cvt_pk_bf16_f32 v{b}, v{t2}, v{t3}"]
        return out
    accA = lambda u: 16 * u
    def glu_stream(ug, uu, soff):
        out = []
        for j in range(2):
            pk = vT[8 + 4*j: 12 + 4*j]
            for q in range(2):
                r0 = 8*j + 4*q
                g = vT[0:4]; u = vT[4:8]
                out += [f"v_accvgpr_read_b32 v{g[i]}, a{accA(ug)+r0+i}" for i in range(4)]
                out += [f"v_mul_f32 v{g[i]}, s{sNL2E}, v{g[i]}" for i in range(4)]
                out += [f"v_exp_f32 v{g[i]}, v{g[i]}" for i in range(4)]
                out += [f"v_accvgpr_read_b32 v{u[i]}, a{accA(uu)+r0+i}" for i in range(4)]
                out += [f"v_add_f32 v{g[i]}, 1.0, v{g[i]}" for i in range(4)]
                out += [f"v_rcp_f32 v{g[i]}, v{g[i]}" for i in range(4)]
                out += [f"v_mul_f32 v{g[i]}, v{g[i]}, v{u[i]}" for i in range(4)]
                out += [f"v_cvt_pk_bf16_f32 v{pk[2*q]}, v{g[0]}, v{g[1]}", f"v_cvt_pk_bf16_f32 v{pk[2*q+1]}, v{g[2]}, v{g[3]}"]
            out.append(f"buffer_store_dwordx4 v[{pk[0]}:{pk[3]}], v{vL16}, s[{SW}:{SW+3}], s{soff} offen offset:{1024*j} sc1")
        return out
    def qkv_stream(accbase, isA, soff):
        out = []
        for a in range(4):
            if isA:
                g = vT[4*(a%2): 4 + 4*(a%2)]
                out += [f"v_accvgpr_read_b32 v{g[i]}, a{accbase+4*a+i}" for i in range(4)]
                src = g; pk = vT[8 + 2*a: 10 + 2*a]
            else:
                src = [accbase + 4*a + i for i in range(4)]; pk = [accbase + 4*a, accbase + 4*a + 1]
            out += [f"v_cvt_pk_bf16_f32 v{pk[0]}, v{src[0]}, v{src[1]}", f"v_cvt_pk_bf16_f32 v{pk[1]}, v{src[2]}, v{src[3]}"]
            out.append(f"s_add_u32 s{sT2}, s{soff}, {a*32768}")
            out.append(f"buffer_store_dwordx2 v[{pk[0]}:{pk[1]}], v{vQst}, s[{SW}:{SW+3}], s{sT2} offen sc1")
        return out
    if cfg.get('nofill'):
        norm_stream = lambda s: []
        glu_stream = lambda a, b, c: []
    cost = lambda l: 2 if l.startswith(('v_exp', 'v_rcp')) else 1
    def wreg(i): return f"a[{WR0+4*(i%RING)}:{WR0+4*(i%RING)+3}]"
    def tr_reads(i):
        (pas, u, s, c, va, off) = frags[i]
        b = WR0 + 4 * (i % RING)
        if off >= 65536: va = vHi[va]; off -= 65536
        return [f"ds_read_b64_tr_b16 a[{b}:{b+1}], v{va} offset:{off}", f"ds_read_b64_tr_b16 a[{b+2}:{b+3}], v{va} offset:{off+512}"]
    def acc(u): return f"a[{accA(u)}:{accA(u)+15}]" if u < 8 else f"v[{ACC3+16*(u-8)}:{ACC3+16*(u-8)+15}]"
    def last_m0():
        x = p.ins[-1]
        return (not isinstance(x, tuple)) and ('x', 'm0') in x.dst
    DGAP = cfg.get('dgap', 3)
    def main(i0, i1, q):
        for i in range(i0, i1):
            (pas, u, s, c, va, off) = frags[i]
            cin = "0" if s == 0 else acc(u)
            if pas == 1 and u == 0:
                while q['norm'] and q['norm'][0][0] <= s: p(q['norm'].pop(0)[1])
            p(f"v_mfma_f32_32x32x16_bf16 {acc(u)}, {wreg(i)}, {xr(s)}, {cin}")
            j = i + D
            if j < NF:
                cj = frags[j][3]
                if j == chunks[cj]['first']:
                    while q['dma']:
                        l, tg = q['dma'].pop(0); p(l, tag=tg)
                    if not cfg.get('nowait'): p.waitvm(f'w{cj}')
                    if not cfg.get('nobar'): p("s_barrier")
                    if cj + 2 < len(chunks) and not cfg.get('nodma'):
                        q['dma'] += [(l, f'w{cj+2}') for l in wdma(cj + 2)]
                    q['next_dma'] = i
                emit_stream(tr_reads(j))
            bud = BUD
            if pas == 1 and u == 0 and s + 1 < 40:
                q['norm'] += [(s + 1, l) for l in norm_stream(s + 1)]
            if q['dma'] and i >= q['next_dma']:
                while q['dma']:
                    l, tg = q['dma'].pop(0); p(l, tag=tg); bud -= 1
                    if l.startswith('buffer'): break
                q['next_dma'] = i + DGAP
            if q['extra'] and q['extra'][0][0] <= i:
                grp = q['extra'].pop(0)[1]
                for (l, tg) in grp:
                    if l == 'WAITVM': p.waitvm(tg)
                    elif l == 'WAITLG': p.waitlg(tg)
                    else: p(l, tag=tg); bud -= 1
            while bud > 0:
                if q['norm']: p(q['norm'].pop(0)[1]); bud -= 1
                elif q['epi'] and q['epi'][0][0] <= i:
                    l = q['epi'].pop(0)[1]; p(l); bud -= cost(l)
                else: break
    extra = []
    if cfg.get('repack', 1):
        SR = S1
        SRP = 76
        sJ, sJb, sJs, sJo = 80, 81, 82, 83
        vJ = [vT[12], vT[13], vT[14], vT[15], vT[16]]
        vJa = vT[17]
        setup = []
        A = setup.append
        for l in f"""s_lshl_b32 s{sJ}, s2, 2
        s_add_u32 s{sJ}, s{sJ}, s{sW}
        s_cmp_ge_u32 s{sJ}, 592
        s_cselect_b32 s3, 1, 0
        s_cselect_b32 s{sT}, 592, 0
        s_sub_u32 s{sJ}, s{sJ}, s{sT}
        s_lshr_b32 s{sT}, s{sJ}, 2
        s_and_b32 s{sJo}, s{sJ}, 3
        s_sub_u32 s{sT2}, s{sT}, 108
        s_mul_i32 s{sJb}, s{sT2}, 6554
        s_lshr_b32 s{sJb}, s{sJb}, 16
        s_mul_i32 s{sJs}, s{sJb}, 10
        s_sub_u32 s{sJs}, s{sT2}, s{sJs}
        s_mul_i32 s{sJb}, s{sJb}, 160
        s_cmp_lt_u32 s{sJs}, 8
        s_cselect_b32 s{sT2}, 20, 80
        s_cselect_b32 s{sT3}, 0, 624
        s_mul_i32 s{sT2}, s{sT2}, s{sJs}
        s_cselect_b32 s{sJs}, 4, 20
        s_add_u32 s{sJb}, s{sJb}, s{sT2}
        s_sub_u32 s{sJb}, s{sJb}, s{sT3}
        s_mov_b32 s{SRP+3}, {640*1280}
        s_lshl_b32 s{sT2}, s{sT}, 4
        s_cmp_lt_u32 s{sT}, 108
        s_cselect_b32 s{SRP}, s74, s{sWo}
        s_cselect_b32 s{SRP+1}, s75, s{sWo+1}
        s_cselect_b32 s{SRP+2}, {1728*1280}, s{SRP+3}
        s_cselect_b32 s{sJb}, s{sT2}, s{sJb}
        s_cselect_b32 s{sJs}, 4, s{sJs}
        s_and_b32 s{SRP+1}, s{SRP+1}, 0xffff
        s_mov_b32 s{SRP+3}, 0x20000
        s_mul_i32 s{sJb}, s{sJb}, 1280
        s_mul_i32 s{sT2}, s{sJo}, 320
        s_add_u32 s{sJb}, s{sJb}, s{sT2}
        s_mul_i32 s{sJo}, s{sJo}, {2*148*2560}
        s_mul_i32 s{sT}, s{sT}, 2560
        s_add_u32 s{sJo}, s{sJo}, s{sT}
        s_add_u32 s{sJo}, s{sJo}, {WS_WF}""".split('\n'): A(l.strip())
        for i in range(5):
            for l in f"""v_add_u32 v{t[0]}, {64*i}, v{vLane}
            v_mul_u32_u24 v{t[1]}, 3277, v{t[0]}
            v_lshrrev_b32 v{t[1]}, 16, v{t[1]}
            v_mul_u32_u24 v{t[2]}, 20, v{t[1]}
            v_sub_u32 v{t[0]}, v{t[0]}, v{t[2]}
            v_lshrrev_b32 v{t[2]}, 2, v{t[1]}
            v_mul_u32_u24 v{t[2]}, s{sJs}, v{t[2]}
            v_and_b32 v{t[1]}, 3, v{t[1]}
            v_add_u32 v{t[1]}, v{t[1]}, v{t[2]}
            v_mul_u32_u24 v{t[1]}, 1280, v{t[1]}
            v_lshl_add_u32 v{vJ[i]}, v{t[0]}, 4, v{t[1]}""".split('\n'): A(l.strip())
        for l in f"""v_lshrrev_b32 v{t[0]}, 5, v{vLane}
        v_bfe_u32 v{t[1]}, v{vLane}, 2, 2
        v_lshl_add_u32 v{t[1]}, v{t[0]}, 2, v{t[1]}
        v_mul_u32_u24 v{t[1]}, 320, v{t[1]}
        v_bfe_u32 v{t[2]}, v{vLane}, 4, 1
        v_lshl_add_u32 v{t[1]}, v{t[2]}, 5, v{t[1]}
        v_and_b32 v{t[2]}, 3, v{vLane}
        v_lshl_add_u32 v{t[1]}, v{t[2]}, 3, v{t[1]}
        v_add_u32 v{vJa}, s{sXl}, v{t[1]}""".split('\n'): A(l.strip())
        emit_stream(setup)
        for i in range(5):
            p(f"s_add_u32 m0, s{sXl}, {1024*i}\ns_nop 0")
            p(f"buffer_load_dwordx4 v{vJ[i]}, s[{SRP}:{SRP+3}], s{sJb} offen lds", tag='rp')
        RR = ACC3
        grp = [('WAITVM', 'rp')]
        n = 0
        for nt in range(2):
            for u in range(3):
                off = nt*160 + u*64
                grp += [(f"ds_read_b64_tr_b16 v[{RR+4*n}:{RR+4*n+1}], v{vJa} offset:{off}", 'rpr'), (f"ds_read_b64_tr_b16 v[{RR+4*n+2}:{RR+4*n+3}], v{vJa} offset:{off+2560}", 'rpr')]
                n += 1
        i_rp = cfg.get('rp_at', 40)
        extra.append((i_rp, grp[:7])); extra.append((i_rp + 2, grp[7:]))
        st = []
        n = 0
        for nt in range(2):
            for u in range(3):
                skip = [("s_cmp_eq_u32 s3, 1", None), (f"s_cbranch_scc1 RPS{n}", None)]
                if u < 2:
                    st.append(skip + [(f"s_add_u32 s{sJb}, s{sJo}, {nt*148*2560 + u*1024}", None), (f"buffer_store_dwordx4 v[{RR+4*n}:{RR+4*n+3}], v{vL16}, s[{SW}:{SW+3}], s{sJb} offen sc1", 'nc'), (f"RPS{n}:", None)])
                else:
                    st.append(skip + [(f"v_lshrrev_b32 v{vJ[0]}, 5, v{vLane}", None), (f"v_and_b32 v{vJ[1]}, 15, v{vLane}", None), (f"v_lshl_add_u32 v{vJ[0]}, v{vJ[0]}, 4, v{vJ[1]}", None),
                               (f"v_lshlrev_b32 v{vJ[0]}, 4, v{vJ[0]}", None), (f"s_add_u32 s{sJb}, s{sJo}, {nt*148*2560 + 2048}", None),
                               (f"s_mov_b32 exec_lo, 0xffff", None), (f"s_mov_b32 exec_hi, 0xffff", None),
                               (f"buffer_store_dwordx4 v[{RR+4*n}:{RR+4*n+3}], v{vJ[0]}, s[{SW}:{SW+3}], s{sJb} offen sc1", 'nc'), (f"s_mov_b64 exec, -1", None), (f"RPS{n}:", None)])
                n += 1
        st[0] = [('WAITLG', 'rpr')] + st[0]
        for k, g in enumerate(st): extra.append((i_rp + 8 + 2*k, g))
    emit_stream(norm_stream(0))
    p.waitvm('w0')
    p("s_barrier")
    q = dict(dma=[(l, 'w2') for l in wdma(2)], norm=[], epi=[], extra=extra, next_dma=0)
    if cfg.get('nodma'): q['dma'] = []
    for j in range(D): emit_stream(tr_reads(j))
    n1 = 320
    stamp('main start')
    main(0, n1, q)
    stamp('pass1 end')
    q['epi'] += [(n1 + 1, l) for l in glu_stream(0, 1, sHoff[0])]
    q['epi'] += [(n1 + 1, l) for l in glu_stream(2, 3, sHoff[1])]
    q['epi'] += [(n1 + 1, l) for l in glu_stream(4, 5, sHoff[2])]
    nsplit = cfg.get('nsplit', n1 + 90)
    main(n1, nsplit, q)
    import copy
    p(f"s_cmp_lg_u32 s{sVar}, 0\ns_cbranch_scc1 K1_VARB")
    p.save('fork')
    for var in (0, 1):
        qq = copy.deepcopy(q)
        if var == 1:
            p("K1_VARB:")
            p.restore('fork')
            qq['epi'] += [(nsplit, l) for l in qkv_stream(accA(6), True, sQoff[0])]
            qq['epi'] += [(nsplit, l) for l in qkv_stream(accA(7), True, sQoff[1])]
        else:
            qq['epi'] += [(nsplit, l) for l in glu_stream(6, 7, sHoff[3])]
        main(nsplit, NF, qq)
        assert not qq['dma'] and not qq['norm'] and not qq['extra']
        left = [l for (_, l) in qq['epi']]
        if cfg.get('verbose'): print(f"; variant {var}: {len(left)} epilogue instrs left after main loop")
        n0 = nst[0]
        stamp('mfma done' if var == 0 else None)
        emit_stream(left)
        for j in range(3): emit_stream(qkv_stream(ACC3 + 16*j, False, sQoff[2 + j]))
        if prof:
            stamp('issued' if var == 0 else None)
            p("s_waitcnt vmcnt(0) lgkmcnt(0)")
            stamp('drained' if var == 0 else None)
            p(f"s_memrealtime s[{SP[nst[0]]}:{SP[nst[0]]+1}]\ns_waitcnt lgkmcnt(0)")
            vals = [SP[nst[0]]] + SP[:nst[0]]
            for n in range(16): p(f"v_mov_b32 v{100+n}, s{vals[n]}" if n < len(vals) else f"v_mov_b32 v{100+n}, 0")
            p(f"s_lshl_b32 s{sT}, s2, 2\ns_add_u32 s{sT}, s{sT}, s{sW}\ns_lshl_b32 s{sT}, s{sT}, 6\ns_add_u32 s{sT}, s{sT}, {WS_PROF}\nv_mov_b32 v116, 0\ns_mov_b64 exec, 1")
            for n in range(4): p(f"buffer_store_dwordx4 v[{100+4*n}:{103+4*n}], v116, s[{SW}:{SW+3}], s{sT} offen offset:{16*n}")
        nst[0] = n0
        p("s_endpgm")
    p("K1_END:")
    return p
```

```python
from asmlib import Prog
from k1 import srd, WS_QKV, WS_H, WS_O, WS_OT, WS_FLAG, WS_SIZE, WS_PROF

G_WO = 10 * 2560
G_LDS = G_WO + 2560
T_BASE = 4 * G_LDS
WS_WF = 20 << 20; WS_SIZE2 = 24 << 20
PS = 4096 + 32
KP = T_BASE
VP = KP + 6 * PS
SYNC = VP + 6 * PS + 64
K2_LDS = SYNC + 64
WS_PROF2 = (19 << 20) + (640 << 10)
NEG = 0xc7000000
C_SC = 1.4426950408889634 / (20 ** 0.5)

def gen_k2(cfg):
    p = Prog()
    prof = cfg.get('prof', 0)
    SXS, SWD, SWO, SWS, SOUT = 4, 8, 12, 16, 20
    sW, sMt, sNt, sHd, sM = 32, 33, 34, 35, 36
    sT, sT2, sT3 = 37, 38, 39
    sRot = 31
    SP = [88, 90, 92, 94, 96, 98, 100, 74, 76, 78, 80, 82, 84, 86]
    nst = [0]
    names = cfg.setdefault('_names2', [])
    def stamp(name=None):
        if not prof: return
        i = nst[0]; nst[0] += 1
        p(f's_memtime s[{SP[i]}:{SP[i]+1}]' if i else 's_memrealtime s[88:89]')
        if name: names.append(name)
    def prof_end(role):
        if not prof: return
        p("s_waitcnt vmcnt(0) lgkmcnt(0)")
        stamp('drained' if role == 'G' else None)
        k = nst[0]
        p(f"s_memrealtime s[{SP[k]}:{SP[k]+1}]\ns_waitcnt lgkmcnt(0)")
        vals = [SP[k]] + SP[:k]
        for n in range(16): p(f"v_mov_b32 v{100+n}, s{vals[n]}" if n < len(vals) else f"v_mov_b32 v{100+n}, 0")
        off = WS_PROF2 + (65536 if role == 'T' else 0)
        p(f"s_lshl_b32 s{sT}, s2, 2\ns_and_b32 s{sT2}, s{sW}, 3\ns_add_u32 s{sT}, s{sT}, s{sT2}\ns_lshl_b32 s{sT}, s{sT}, 6\ns_add_u32 s{sT}, s{sT}, {off}\nv_mov_b32 v116, 0\ns_mov_b64 exec, 1")
        for n in range(4): p(f"buffer_store_dwordx4 v[{100+4*n}:{103+4*n}], v116, s[{SWS}:{SWS+3}], s{sT} offen offset:{16*n}")
    vLane = 1
    stamp(); stamp()
    p(f"""
    s_cmp_ge_u32 s2, 256
    s_cbranch_scc1 K2_END
    s_load_dwordx2 s[62:63], s[0:1], 0
    s_load_dwordx2 s[64:65], s[0:1], 16
    s_load_dwordx4 s[68:71], s[0:1], 48
    s_load_dwordx2 s[66:67], s[0:1], 72
    v_and_b32 v{vLane}, 63, v0
    v_lshrrev_b32 v2, 6, v0
    s_nop 0
    v_readfirstlane_b32 s{sW}, v2
    s_and_b32 s{sT}, s2, 7
    s_lshr_b32 s{sT2}, s2, 3
    """)
    if cfg.get('map', 0) == 0:
        p(f"""
        s_lshl_b32 s{sHd}, s{sT}, 2
        s_and_b32 s{sT3}, s{sT2}, 3
        s_add_u32 s{sHd}, s{sHd}, s{sT3}
        s_lshr_b32 s{sM}, s{sT2}, 2
        s_lshr_b32 s{sMt}, s{sT}, 1
        s_lshl_b32 s{sMt}, s{sMt}, 3
        s_and_b32 s{sT3}, s{sT2}, 7
        s_add_u32 s{sMt}, s{sMt}, s{sT3}
        s_and_b32 s{sNt}, s{sT}, 1
        s_lshl_b32 s{sNt}, s{sNt}, 2
        s_lshr_b32 s{sRot}, s{sT2}, 3
        s_add_u32 s{sNt}, s{sNt}, s{sRot}
        s_mul_i32 s{sRot}, s{sRot}, {cfg.get('rn', 7)}
        s_mul_i32 s{sT3}, s{sT3}, {cfg.get('rm', 3)}
        s_add_u32 s{sRot}, s{sRot}, s{sT3}
        """)
    else:
        p(f"""
        s_mov_b32 s{sHd}, s{sT2}
        s_mov_b32 s{sM}, s{sT}
        s_and_b32 s{sT3}, s{sT2}, 3
        s_lshl_b32 s{sMt}, s{sT}, 2
        s_add_u32 s{sMt}, s{sMt}, s{sT3}
        s_lshr_b32 s{sNt}, s{sT2}, 2
        s_mul_i32 s{sRot}, s{sNt}, {cfg.get('rn', 3)}
        s_mul_i32 s{sT3}, s{sT3}, {cfg.get('rm', 7)}
        s_add_u32 s{sRot}, s{sRot}, s{sT3}
        """)
    p(f"""
    s_cmp_ge_u32 s{sRot}, 27
    s_cselect_b32 s{sT3}, 27, 0
    s_sub_u32 s{sRot}, s{sRot}, s{sT3}
    s_cmp_ge_u32 s{sRot}, 27
    s_cselect_b32 s{sT3}, 27, 0
    s_sub_u32 s{sRot}, s{sRot}, s{sT3}
    s_waitcnt lgkmcnt(0)
    """)
    srd(p, SWS, 66, 67, WS_SIZE2)
    if cfg.get('pf2', 0):
        p(f"""
        s_getpc_b64 s[86:87]
        K2_PFB:
        s_lshr_b32 s{sT}, s2, 3
        s_lshl_b32 s{sT}, s{sT}, 3
        s_add_u32 s{sT}, s{sT}, s{sW}
        s_lshl_b32 s{sT}, s{sT}, 7
        s_min_u32 s{sT}, s{sT}, TEXT_END-K2_PFB-4
        v_mov_b32 v3, s{sT}
        s_mov_b64 exec, 1
        global_load_dword v0, v3, s[86:87]
        s_mov_b64 exec, -1
        """, tag='pf')
    p(f"s_cmp_ge_u32 s{sW}, 4\ns_cbranch_scc1 K2_T")
    p.save('fork')
    vL16, vL16b, vU2, vOT = 2, 3, 4, 5
    vRow = [6, 7, 8]
    vSt, vLin, vLu2 = 9, 10, 11
    vT = list(range(12, 28)); vX = 28
    LA = 3; NS = 4
    U2R = 38
    ACT0 = 52; XR = 84; ACC = 96
    sLds, sWo, sAo, sFlag, sXo, sA1, sWb = 40, 41, 42, 46, 47, 48, 43
    sMlo, sMhi = 50, 52
    p(f"""
    s_mul_i32 s{sT}, s{sNt}, 148
    s_mul_i32 s{sT2}, s{sW}, 27
    s_add_u32 s{sT}, s{sT}, s{sT2}
    s_mul_i32 s{sWo}, s{sT}, 2560
    s_add_u32 s{sWo}, s{sWo}, {WS_WF}
    s_mul_i32 s{sAo}, s{sMt}, {2*108*1024}
    s_lshl_b32 s{sT2}, s{sT2}, 10
    s_add_u32 s{sAo}, s{sAo}, s{sT2}
    s_add_u32 s{sAo}, s{sAo}, {WS_H}
    v_lshlrev_b32 v{vL16}, 4, v{vLane}
    v_add_u32 v{vL16b}, {108*1024}, v{vL16}
    v_lshrrev_b32 v{vT[0]}, 5, v{vLane}
    v_and_b32 v{vT[1]}, 15, v{vLane}
    v_lshl_add_u32 v{vT[2]}, v{vT[0]}, 4, v{vT[1]}
    v_lshlrev_b32 v{vT[2]}, 4, v{vT[2]}
    v_bfe_u32 v{vT[3]}, v{vLane}, 4, 1
    v_mul_u32_u24 v{vT[3]}, 2560, v{vT[3]}
    v_add_u32 v{vU2}, v{vT[2]}, v{vT[3]}
    """)
    sw = f"s[{SWS}:{SWS+3}]"
    def h_loads(ki):
        if cfg.get('noact') and ki >= LA: return []
        b = 8 * (ki % NS); r = ACT0 + 8 * (ki % NS); tg = f'k{ki}'
        L = [(f"buffer_load_dwordx4 a[{b}:{b+3}], v{vL16}, {sw}, s{sWo} offen", tg),
             (f"buffer_load_dwordx4 v[{r}:{r+3}], v{vL16}, {sw}, s{sAo} offen", tg),
             (f"buffer_load_dwordx4 v[{r+4}:{r+7}], v{vL16b}, {sw}, s{sAo} offen", tg),
             (f"buffer_load_dwordx4 a[{b+4}:{b+7}], v{vL16}, {sw}, s{sWo} offen offset:1024", tg)]
        if ki % 2 == 0:
            u = U2R + 4 * ((ki // 2) % 3)
            L.append((f"buffer_load_dwordx4 v[{u}:{u+3}], v{vU2}, {sw}, s{sWo} offen offset:2048", tg))
        L.append((f"s_add_u32 s{sWo}, s{sWo}, 2560\ns_add_u32 s{sAo}, s{sAo}, 1024", None))
        return L
    def g_tables():
        srd(p, SXS, 62, 63, 2048 * 1280)
        srd(p, SOUT, 70, 71, 2048 * 1280)
        p(f"""
        s_mul_i32 s{sLds}, s{sW}, {G_LDS}
        v_add_u32 v{vLin}, s{sLds}, v{vL16}
        v_add_u32 v{vLu2}, s{sLds}, v{vT[2]}
        v_and_b32 v{vT[1]}, 31, v{vLane}
        v_mul_u32_u24 v{vT[2]}, 80, v{vT[1]}
        v_lshl_add_u32 v{vT[2]}, v{vT[0]}, 3, v{vT[2]}
        s_add_u32 s{sT}, s{sLds}, {G_WO}
        v_add_u32 v{vSt}, s{sT}, v{vT[2]}
        v_lshlrev_b32 v{vT[3]}, 3, v{vT[1]}
        v_lshl_add_u32 v{vOT}, v{vT[0]}, 8, v{vT[3]}
        s_mov_b32 s{sMlo}, 0x0000ffff
        s_mov_b32 s{sMlo+1}, 0x0000ffff
        s_mov_b32 s{sMhi}, 0xffff0000
        s_mov_b32 s{sMhi+1}, 0xffff0000
        """)
        for i in range(3):
            p(f"""
            v_add_u32 v{vT[0]}, {64*i}, v{vLane}
            v_min_u32 v{vT[0]}, 159, v{vT[0]}
            v_mul_u32_u24 v{vT[1]}, 13108, v{vT[0]}
            v_lshrrev_b32 v{vT[1]}, 16, v{vT[1]}
            v_mul_u32_u24 v{vT[2]}, 5, v{vT[1]}
            v_sub_u32 v{vT[2]}, v{vT[0]}, v{vT[2]}
            v_mul_u32_u24 v{vT[1]}, 1280, v{vT[1]}
            v_lshl_add_u32 v{vRow[i]}, v{vT[2]}, 4, v{vT[1]}
            """)
        p(f"""
        s_lshr_b32 s{sT}, s{sW}, 1
        s_lshl_b32 s{sT2}, s{sMt}, 1
        s_add_u32 s{sT}, s{sT}, s{sT2}
        s_mul_i32 s{sXo}, s{sT}, {32*1280}
        s_mul_i32 s{sT}, s{sNt}, 160
        s_add_u32 s{sXo}, s{sXo}, s{sT}
        s_and_b32 s{sT}, s{sW}, 1
        s_mul_i32 s{sT}, s{sT}, 80
        s_add_u32 s{sXo}, s{sXo}, s{sT}
        s_mul_i32 s{sT}, s{sNt}, 148
        s_mul_i32 s{sT2}, s{sW}, 10
        s_add_u32 s{sT}, s{sT}, s{sT2}
        s_add_u32 s{sT}, s{sT}, 108
        s_mul_i32 s{sOo}, s{sT}, 2560
        s_add_u32 s{sOo}, s{sOo}, {WS_WF}
        """)
    sOo = 49
    if cfg.get('tfirst', 1): g_tables()
    if cfg.get('tsync', 1): p("s_barrier")
    for ki in range(LA):
        for (l, tg) in h_loads(ki): p(l, tag=tg)
    stamp('G loads issued')
    if not cfg.get('tfirst', 1): g_tables()
    def wo_dma(n):
        L = []
        if n % 4 == 0:
            L.append((f"s_add_u32 m0, s{sLds}, {n*1024}", None))
            if n: L.append((f"s_add_u32 s{sOo}, s{sOo}, 4096", None))
        L.append((f"buffer_load_dwordx4 v{vL16}, {sw}, s{sOo} offen offset:{(n%4)*1024} lds", 'wo'))
        return L
    acc = lambda tb, u: f"v[{ACC+16*(3*tb+u)}:{ACC+16*(3*tb+u)+15}]"
    barrier_at = cfg.get('gbar', 1)
    WO0 = cfg.get('wo0', 1)
    nwo = 0
    osc = ' sc1' if cfg.get('osc1', 1) else ''
    OH = ['a56', 'v84', 'v76', 'a24', 'v52', 'a0', 'v60', 'a8', 'v68', 'a16']
    def oreg(j, i, n): return f"{OH[j][0]}[{int(OH[j][1:])+i}:{int(OH[j][1:])+i+n-1}]"
    sOa = [54, 55]; sOt = [56, 57]
    def o_loads(j):
        L = []
        if j < 8:
            for tb in range(2):
                L.append((f"buffer_load_dwordx4 {oreg(j, 4*tb, 4)}, v{vL16}, {sw}, s{sOa[tb]} offen offset:{(j % 4)*1024}{osc}", f'o{j}'))
            if j == 3: L.append((f"s_add_u32 s{sOa[0]}, s{sOa[0]}, 4096\ns_add_u32 s{sOa[1]}, s{sOa[1]}, 4096", None))
        else:
            g = j - 8
            for tb in range(2):
                for e in range(2):
                    L.append((f"buffer_load_dwordx2 {oreg(j, 4*tb + 2*e, 2)}, v{vOT}, {sw}, s{sOt[tb]} offen offset:{(4*g + 2*e)*256}{osc}", f'o{j}'))
        return L
    WR = 32
    def wo_reads(j):
        b = WR + 12 * (j % 2)
        return [(f"ds_read_b128 a[{b}:{b+3}], v{vLin} offset:{j*2560}", f'wr{j}'),
                (f"ds_read_b128 a[{b+4}:{b+7}], v{vLin} offset:{j*2560 + 1024}", f'wr{j}'),
                (f"ds_read_b128 a[{b+8}:{b+11}], v{vLu2} offset:{j*2560 + 2048}", f'wr{j}')]
    PK = cfg.get('PK', 24); assert PK == 24
    vFl = vT[9]; vFa = vT[8]
    def poll_setup():
        p(f"""
        s_lshl_b32 s{sT}, s{sMt}, 6
        s_lshl_b32 s{sT2}, s{sW}, 3
        s_add_u32 s{sT}, s{sT}, s{sT2}
        s_lshl_b32 s{sOa[0]}, s{sT}, 10
        s_add_u32 s{sOa[0]}, s{sOa[0]}, {WS_O}
        s_add_u32 s{sOa[1]}, s{sOa[0]}, {32*1024}
        s_lshl_b32 s{sOt[0]}, s{sT}, 8
        s_add_u32 s{sOt[0]}, s{sOt[0]}, {WS_OT}
        s_add_u32 s{sOt[1]}, s{sOt[0]}, {32*256}
        s_lshl_b32 s{sFlag}, s{sMt}, 7
        s_lshl_b32 s{sT}, s{sW}, 5
        s_add_u32 s{sFlag}, s{sFlag}, s{sT}
        s_add_u32 s{sFlag}, s{sFlag}, {WS_FLAG}
        v_and_b32 v{vFa}, 7, v{vLane}
        v_lshlrev_b32 v{vFa}, 2, v{vFa}
        s_mov_b32 s{sT3}, 200000
        """)
    for ki in range(27):
        b = 8 * (ki % NS); r = ACT0 + 8 * (ki % NS)
        if ki == barrier_at and not cfg.get('tsync', 1): p("s_barrier")
        if cfg.get('kst') and ki in (2, 8, 14, 20): stamp(f'k{ki}')
        q = h_loads(ki + LA) if ki + LA < 27 else []
        ex = []
        if ki >= WO0:
            for _ in range(cfg.get('wor', 2)):
                if nwo < 25: ex += wo_dma(nwo); nwo += 1
        if ki == 6:
            ex += [(f"buffer_load_dwordx4 v[{XR+4*i}:{XR+4*i+3}], v{vRow[i]}, s[{SXS}:{SXS+3}], s{sXo} offen", 'xr') for i in range(3)]
        if ki == 12:
            ex += [(f"ds_write_b128 v{vLin}, v[{XR+4*i}:{XR+4*i+3}] offset:{G_WO + 1024*i}", 'xw') for i in range(2)]
            ex += [(f"s_mov_b32 exec_hi, 0\nds_write_b128 v{vLin}, v[{XR+8}:{XR+11}] offset:{G_WO + 2048}\ns_mov_b64 exec, -1", 'xw')]
        if ki == 13:
            ex += [(f"ds_read_b64 v[{vX+2*i}:{vX+2*i+1}], v{vSt} offset:{16*i}", 'xd') for i in range(5)]
        if ki == PK - cfg.get('early', 0):
            poll_setup()
            if not cfg.get('noT') and cfg.get('early', 0):
                ex += [(f"buffer_load_dword v{vFl}, v{vFa}, {sw}, s{sFlag} offen sc1", 'fl')]
        if ki == PK:
            stamp('G before poll')
            if not cfg.get('noT'):
                if cfg.get('early', 0):
                    p(f"v_cmp_ne_u32 vcc, 1, v{vFl}\ns_cbranch_vccz G_POLLED")
                p.save('poll')
                p("G_POLL:")
                p(f"""
                buffer_load_dword v{vFl}, v{vFa}, {sw}, s{sFlag} offen sc1
                s_sub_u32 s{sT3}, s{sT3}, 1
                s_waitcnt vmcnt(0)
                v_cmp_ne_u32 vcc, 1, v{vFl}
                s_cmp_eq_u32 s{sT3}, 0
                s_cbranch_scc1 G_POLLED
                s_cbranch_vccnz G_POLL
                """)
                p("G_POLLED:")
                p.restore('poll')
            stamp('G polled')
            p.waitvm('wo')
            ex += o_loads(0) + o_loads(1) + o_loads(2) + o_loads(3) + wo_reads(0) + wo_reads(1)
        if ki == PK + 1: ex += o_loads(4) + o_loads(5)
        if ki == PK + 2: ex += o_loads(6) + o_loads(7)
        q = q + ex
        p.waitvm(f'k{ki}')
        u2 = U2R + 4 * ((ki // 2) % 3); tq = vT[4 * (ki % 2): 4 * (ki % 2) + 4]
        m = sMlo if ki % 2 == 0 else sMhi
        if cfg.get('lfirst', 1):
            while q:
                l, tg = q.pop(0); p(l, tag=tg)
        for i in range(4): p(f"v_cndmask_b32 v{tq[i]}, 0, v{u2+i}, s[{m}:{m+1}]")
        for u in range(3):
            for tb in range(2):
                cin = "0" if ki == 0 else acc(tb, u)
                wsrc = f"a[{b+4*u}:{b+4*u+3}]" if u < 2 else f"v[{tq[0]}:{tq[3]}]"
                p(f"v_mfma_f32_32x32x16_bf16 {acc(tb,u)}, {wsrc}, v[{r+4*tb}:{r+4*tb+3}], {cin}")
                nq = 2 if (u, tb) != (2, 1) else 99
                while q and nq > 0:
                    l, tg = q.pop(0); p(l, tag=tg); nq -= 1 if ('buffer' in l or 'ds_' in l) else 0
    assert nwo == 25
    for (l, tg) in o_loads(8) + o_loads(9): p(l, tag=tg)
    stamp('G h done')
    for tb in range(2):
        c = ACC + 16 * (3*tb + 2)
        for i in range(8): p(f"v_add_f32 v{c+i}, v{c+i}, v{c+8+i}")
    for j in range(10):
        b = WR + 12 * (j % 2)
        p.waitvm(f'o{j}')
        for u in range(3):
            for tb in range(2):
                p(f"v_mfma_f32_32x32x16_bf16 {acc(tb,u)}, a[{b+4*u}:{b+4*u+3}], {oreg(j, 4*tb, 4)}, {acc(tb,u)}")
        if j + 2 < 10:
            for (l, tg) in wo_reads(j + 2): p(l, tag=tg)
    stamp('G main done')
    def greg(tb, a): return ACC + 16*(3*tb + a//4) + 4*(a % 4)
    for wv in range(4):
        if wv < 3: p(f"s_cmp_lg_u32 s{sW}, {wv}\ns_cbranch_scc1 G_RED{wv+1}")
        if wv == 0: p.save('red')
        for tb in range(2):
            for a in range(10):
                own = 2*tb + (1 if a >= 5 else 0)
                if own == wv: continue
                slot = ((own - wv) % 4 - 1) * 5 + a % 5
                r = greg(tb, a)
                p(f"ds_write_b128 v{vLin}, v[{r}:{r+3}] offset:{slot*1024}")
        p("s_waitcnt lgkmcnt(0)\ns_barrier")
        tbo, a0 = wv >> 1, 5 * (wv & 1)
        R = 12
        stg = [38 + 4*n for n in range(14)] + [12]
        n = 0
        for src in range(1, 4):
            sw_ = (wv + src) % 4
            rel = (wv - sw_) % 4
            p(f"v_add_u32 v{vT[4+src]}, {sw_*G_LDS}, v{vL16}")
            for i in range(5):
                p(f"ds_read_b128 v[{stg[n]}:{stg[n]+3}], v{vT[4+src]} offset:{((rel-1)*5 + i)*1024}"); n += 1
        for i in range(5):
            r = greg(tbo, a0 + i)
            x0, x1 = vX + 2*i, vX + 2*i + 1
            t = vT[8:12]
            p(f"""
            v_lshlrev_b32 v{t[0]}, 16, v{x0}
            v_and_b32 v{t[1]}, 0xffff0000, v{x0}
            v_lshlrev_b32 v{t[2]}, 16, v{x1}
            v_and_b32 v{t[3]}, 0xffff0000, v{x1}
            """)
            for e in range(4): p(f"v_add_f32 v{r+e}, v{r+e}, v{t[e]}")
        for src in range(3):
            for i in range(5):
                r = greg(tbo, a0 + i)
                for e in range(4): p(f"v_add_f32 v{r+e}, v{r+e}, v{stg[5*src+i]+e}")
                if src == 2:
                    p(f"""
                    v_cvt_pk_bf16_f32 v{r}, v{r}, v{r+1}
                    v_cvt_pk_bf16_f32 v{r+1}, v{r+2}, v{r+3}
                    ds_write_b64 v{vSt}, v[{r}:{r+1}] offset:{16*i}
                    """, tag='ow')
        p.waitlg('ow')
        for i in range(3): p(f"ds_read_b128 v[{48+4*i}:{51+4*i}], v{vLin} offset:{G_WO + 1024*i}")
        for i in range(2): p(f"buffer_store_dwordx4 v[{48+4*i}:{51+4*i}], v{vRow[i]}, s[{SOUT}:{SOUT+3}], s{sXo} offen")
        p(f"s_mov_b32 exec_hi, 0\nbuffer_store_dwordx4 v[56:59], v{vRow[2]}, s[{SOUT}:{SOUT+3}], s{sXo} offen")
        n0 = nst[0]
        if prof:
            p("s_mov_b64 exec, -1")
            stamp('G out issued' if wv == 0 else None)
            prof_end('G' if wv == 0 else 'G2')
            nst[0] = n0
        p("s_endpgm")
        if wv < 3:
            p(f"G_RED{wv+1}:")
            p.restore('red')
    p("K2_T:")
    p.restore('fork')
    nst[0] = 2
    tnames = []
    vKa, vVa, vQo, vHH = 2, 3, 4, 5
    vT = list(range(6, 16)); vQ = 16
    vMx, vMc, vDen = 28, 29, 30
    S0 = 48
    sTw, sKo, sMk = 40, 41, 42
    p(f"""
    s_sub_u32 s{sTw}, s{sW}, 4
    s_lshl_b32 s{sT}, s{sM}, 8
    s_sub_u32 s{sT}, s{sT}, 256
    s_lshl_b32 s{sT}, s{sT}, 3
    s_mul_i32 s{sT2}, s{sHd}, {5*16384}
    s_add_u32 s{sKo}, s{sT}, s{sT2}
    s_add_u32 s{sKo}, s{sKo}, {160*16384 + WS_QKV}
    v_lshlrev_b32 v{vT[0]}, 4, v{vLane}
    """)
    if cfg.get('noT') == 1:
        p("s_barrier\ns_endpgm")
    assert not (cfg.get('noT') == 2 and cfg.get('tsync', 1))
    p(f"s_lshl_b32 s{sT2}, s{sTw}, 10\ns_add_u32 s{sKo}, s{sKo}, s{sT2}")
    for kv in range(2):
        for G in range(5):
            base = (KP if kv == 0 else VP) + G * PS
            p(f"s_add_u32 m0, s{sT2}, {base}\ns_add_u32 s{sT}, s{sKo}, {kv*160*16384 + G*16384}")
            p(f"buffer_load_dwordx4 v{vT[0]}, s[{SWS}:{SWS+3}], s{sT} offen lds", tag='kv')
    vSy = 47
    if cfg.get('tsync', 1):
        p(f"""
        s_lshl_b32 s{sT}, s{sTw}, 2
        s_add_u32 s{sT}, s{sT}, {SYNC}
        v_mov_b32 v{vSy}, s{sT}
        v_mov_b32 v{vT[1]}, 0
        ds_write_b32 v{vSy}, v{vT[1]}
        s_waitcnt lgkmcnt(0)
        s_barrier
        """)
    if cfg.get('tprio', 0): p(f"s_setprio {cfg['tprio']}")
    p(f"""
    v_lshrrev_b32 v{vHH}, 5, v{vLane}
    v_and_b32 v{vT[1]}, 31, v{vLane}
    v_lshlrev_b32 v{vT[2]}, 3, v{vT[1]}
    v_lshl_add_u32 v{vQo}, v{vHH}, 15, v{vT[2]}
    s_lshl_b32 s{sT}, s{sM}, 3
    s_lshl_b32 s{sT3}, s{sTw}, 1
    s_add_u32 s{sT}, s{sT}, s{sT3}
    s_lshl_b32 s{sT}, s{sT}, 8
    s_mul_i32 s{sT3}, s{sHd}, {5*16384}
    s_add_u32 s{sT}, s{sT}, s{sT3}
    s_add_u32 s{sT}, s{sT}, {WS_QKV}
    """)
    for qb in range(2):
        q = vQ + 6*qb
        p(f"""
        s_add_u32 s{sT3}, s{sT}, {qb*256}
        buffer_load_dwordx2 v[{q}:{q+1}], v{vQo}, s[{SWS}:{SWS+3}], s{sT3} offen
        s_add_u32 s{sT3}, s{sT}, {qb*256 + 16384}
        buffer_load_dwordx2 v[{q+2}:{q+3}], v{vQo}, s[{SWS}:{SWS+3}], s{sT3} offen
        s_add_u32 s{sT3}, s{sT}, {qb*256 + 4*16384}
        buffer_load_dwordx2 v[{q+4}:{q+5}], v{vT[2]}, s[{SWS}:{SWS+3}], s{sT3} offen
        """)
    vPa, vPi, vPd = 44, 45, 46
    P = cfg.get('P', 4); nW = (20 * P + 7) // 8; nA = 4 * P; NPF = (27 + P - 1) // P
    assert nW + nA <= 64
    t = vT[3:8]
    if cfg.get('pft', 1):
        p(f"""
        s_and_b32 s{sT}, s{sMt}, 7
        s_mul_i32 s{sT}, s{sT}, {nW}
        v_add_u32 v{t[0]}, s{sT}, v{vLane}
        v_min_u32 v{t[0]}, {20*P - 1}, v{t[0]}
        v_lshlrev_b32 v{t[0]}, 7, v{t[0]}
        s_mul_i32 s{sT}, s{sNt}, 148
        s_mul_i32 s{sT3}, s{sTw}, 27
        s_add_u32 s{sT}, s{sT}, s{sT3}
        s_mul_i32 s{sT}, s{sT}, 2560
        s_add_u32 s{sT}, s{sT}, {WS_WF}
        v_add_u32 v{t[0]}, s{sT}, v{t[0]}
        v_subrev_u32 v{t[1]}, {nW}, v{vLane}
        v_cmp_le_i32 vcc, {2*P}, v{t[1]}
        v_cndmask_b32 v{t[2]}, 0, 1, vcc
        v_mul_u32_u24 v{t[3]}, {2*P}, v{t[2]}
        v_sub_u32 v{t[1]}, v{t[1]}, v{t[3]}
        s_and_b32 s{sT}, s{sNt}, 3
        s_mul_i32 s{sT}, s{sT}, {2*P}
        v_add_u32 v{t[1]}, s{sT}, v{t[1]}
        v_lshlrev_b32 v{t[1]}, 7, v{t[1]}
        v_mul_u32_u24 v{t[2]}, {108*1024}, v{t[2]}
        v_add_u32 v{t[1]}, v{t[1]}, v{t[2]}
        s_mul_i32 s{sT}, s{sMt}, {2*108*1024}
        s_lshl_b32 s{sT3}, s{sT3}, 10
        s_add_u32 s{sT}, s{sT}, s{sT3}
        s_add_u32 s{sT}, s{sT}, {WS_H}
        v_add_u32 v{t[1]}, s{sT}, v{t[1]}
        v_cmp_gt_u32 vcc, {nW}, v{vLane}
        v_cndmask_b32 v{vPa}, v{t[1]}, v{t[0]}, vcc
        v_mov_b32 v{t[0]}, {P*2560}
        v_mov_b32 v{t[1]}, {P*1024}
        v_cndmask_b32 v{vPi}, v{t[1]}, v{t[0]}, vcc
        s_bfm_b64 s[24:25], {nW + nA}, 0
        """)
    npf = [0]
    def pf(n=1):
        if not cfg.get('pft', 1): return
        for _ in range(n):
            j = npf[0]
            if j < NPF:
                if j >= cfg.get('pf0', 1):
                    p(f"s_mov_b64 exec, s[24:25]\nbuffer_load_dword v{vPd}, v{vPa}, s[{SWS}:{SWS+3}], 0 offen\ns_mov_b64 exec, -1", tag='pf')
                p(f"v_add_u32 v{vPa}, v{vPa}, v{vPi}")
            elif j == NPF and cfg.get('pfo', 1):
                p(f"""
                s_and_b32 s26, s{sMt}, 7
                s_mul_i32 s26, s26, 25
                v_add_u32 v{vPa}, s26, v{vLane}
                v_lshlrev_b32 v{vPa}, 7, v{vPa}
                s_mul_i32 s26, s{sNt}, 148
                s_mul_i32 s27, s{sTw}, 10
                s_add_u32 s26, s26, s27
                s_add_u32 s26, s26, 108
                s_mul_i32 s26, s26, 2560
                s_add_u32 s26, s26, {WS_WF}
                s_mov_b64 exec, 0x1ffffff
                buffer_load_dword v{vPd}, v{vPa}, s[{SWS}:{SWS+3}], s26 offen
                s_mov_b64 exec, -1
                """, tag='pf')
            npf[0] += 1
    pf(cfg.get('pfa', 3))
    if cfg.get('noT') == 2:
        pf(12)
        p("s_barrier\ns_waitcnt vmcnt(0)\ns_endpgm")
    p(f"""
    s_cmp_eq_u32 s{sM}, 0
    s_cselect_b32 s{sT}, 0xc700, 0
    s_cmp_lt_u32 s{sTw}, 2
    s_cselect_b32 s{sT}, s{sT}, 0
    v_mov_b32 v{vT[4]}, s{sT}
    v_mov_b32 v{vT[5]}, 0
    v_mov_b32 v{vT[6]}, s{sT}
    v_mov_b32 v{vT[7]}, 0
    v_add_u32 v{vT[3]}, s{sT2}, v{vT[0]}
    v_add_u32 v{vT[3]}, {KP + 5*PS}, v{vT[3]}
    ds_write_b128 v{vT[3]}, v[{vT[4]}:{vT[7]}]
    """)
    assert vT[4] % 2 == 0
    p(f"""
    v_mov_b32 v{vT[4]}, 0x3f80
    v_mov_b32 v{vT[6]}, 0x3f80
    ds_write_b128 v{vT[3]}, v[{vT[4]}:{vT[7]}] offset:{VP - KP}
    """)
    p(f"""
    v_mul_u32_u24 v{vT[3]}, {2*PS}, v{vHH}
    v_lshl_add_u32 v{vT[3]}, v{vT[1]}, 3, v{vT[3]}
    s_lshl_b32 s{sT}, s{sTw}, 9
    s_add_u32 s{sT}, s{sT}, {KP}
    v_add_u32 v{vKa}, s{sT}, v{vT[3]}
    v_mul_u32_u24 v{vT[3]}, {PS}, v{vHH}
    v_lshl_add_u32 v{vT[3]}, v{vT[1]}, 3, v{vT[3]}
    s_add_u32 s{sT3}, s{sT}, {4*PS}
    v_add_u32 v{vT[8]}, s{sT3}, v{vT[3]}
    """)
    vKt = vT[8]
    p(f"""
    v_bfe_u32 v{vT[3]}, v{vLane}, 4, 1
    v_and_b32 v{vT[4]}, 3, v{vLane}
    v_lshl_add_u32 v{vT[3]}, v{vT[3]}, 2, v{vT[4]}
    v_min_u32 v{vT[3]}, 5, v{vT[3]}
    v_mul_u32_u24 v{vT[3]}, {PS}, v{vT[3]}
    v_bfe_u32 v{vT[4]}, v{vLane}, 2, 2
    v_lshl_add_u32 v{vT[4]}, v{vHH}, 2, v{vT[4]}
    v_lshl_add_u32 v{vT[3]}, v{vT[4]}, 3, v{vT[3]}
    s_add_u32 s{sT3}, s{sT}, {VP - KP}
    v_add_u32 v{vVa}, s{sT3}, v{vT[3]}
    """)
    p(f"v_lshlrev_b32 v{vT[3]}, 2, v{vHH}\nv_sub_u32 v{vT[3]}, v{vT[1]}, v{vT[3]}")
    for r in range(16):
        p(f"v_cmp_le_i32 s[{sMk+2*r}:{sMk+2*r+1}], {8*(r>>2) + (r&3)}, v{vT[3]}")
    p(f"v_cmp_eq_u32 vcc, 1, v{vHH}")
    for qb in range(2):
        q = vQ + 6*qb
        p(f"v_mov_b32 v{vT[4]}, 0x3f80\nv_cndmask_b32 v{q+4}, v{q+4}, v{vT[4]}, vcc\nv_cndmask_b32 v{q+5}, v{q+5}, 0, vcc".replace(f"v_cndmask_b32 v{q+5}, v{q+5}, 0, vcc", f"v_mov_b32 v{vT[5]}, 0\nv_cndmask_b32 v{q+5}, v{q+5}, v{vT[5]}, vcc"))
    p(f"v_mov_b32 v{vT[9]}, {NEG}")
    vNeg = vT[9]
    p.waitvm('kv')
    if cfg.get('tsync', 1):
        p(f"""
        s_waitcnt lgkmcnt(0)
        v_mov_b32 v{vT[4]}, 1
        ds_write_b32 v{vSy}, v{vT[4]}
        v_mov_b32 v{vSy}, {SYNC}
        s_mov_b32 s{sT3}, 1000000
        """)
        p("T_SYNC:")
        p(f"""
        ds_read_b128 v[32:35], v{vSy}
        s_sub_u32 s{sT3}, s{sT3}, 1
        s_waitcnt lgkmcnt(0)
        v_and_b32 v32, v32, v33
        v_and_b32 v34, v34, v35
        v_and_b32 v32, v32, v34
        v_cmp_ne_u32 vcc, 1, v32
        s_cmp_eq_u32 s{sT3}, 0
        s_cbranch_scc1 T_SYNCED
        s_cbranch_vccnz T_SYNC
        """)
        p("T_SYNCED:")
    else:
        p("s_waitcnt lgkmcnt(0)\ns_barrier")
    stamp()
    if cfg.get('noT') == 3: p("s_endpgm")
    KF = 16
    VF = 40
    OA = 0
    St = lambda n: S0 + 16*n
    def kread(qb, n):
        b = KF + 8 * (n % 3)
        off = (qb + n) * 256
        p(f"ds_read_b64 a[{b}:{b+1}], v{vKa} offset:{off}\nds_read_b64 a[{b+2}:{b+3}], v{vKa} offset:{off+PS}\nds_read_b64 a[{b+4}:{b+5}], v{vKt} offset:{off}")
    def smfma(qb, n):
        b = KF + 8 * (n % 3); q = vQ + 6*qb; s = St(n)
        cin = "0"
        if n == 0 or n == 8:
            for r in range(16):
                m = f"s[{sMk+2*r}:{sMk+2*r+1}]"
                if n == 8: p(f"v_cndmask_b32 v{s+r}, v{vNeg}, 0, {m}")
                else: p(f"v_cndmask_b32 v{s+r}, 0, v{vNeg}, {m}")
            cin = f"v[{s}:{s+15}]"
        if cfg.get('nosm'): return
        p(f"v_mfma_f32_32x32x16_bf16 v[{s}:{s+15}], a[{b}:{b+3}], v[{q}:{q+3}], {cin}")
        p(f"v_mfma_f32_32x32x8_bf16 v[{s}:{s+15}], a[{b+4}:{b+5}], v[{q+4}:{q+5}], v[{s}:{s+15}]")
    def vread(qb, n):
        for j in range(2):
            b = VF + 4 * ((2*n + j) % 6)
            off = (qb + n) * 256 + j * 128
            p(f"ds_read_b64_tr_b16 a[{b}:{b+1}], v{vVa} offset:{off}\nds_read_b64_tr_b16 a[{b+2}:{b+3}], v{vVa} offset:{off+64}")
    sC = 39
    p(f"s_mov_b32 s{sC}, {C_SC!r}")
    for qb in range(2):
        kread(qb, 0); kread(qb, 1)
        for n in range(9):
            if n + 2 < 9: kread(qb, n + 2)
            smfma(qb, n)
            if qb == 0 and n % cfg.get('pfs', 2) == 0: pf(1)
        for n in range(9):
            s = St(n)
            for r in range(0, 16, 2):
                if n == 0 and r == 0: p(f"v_max_f32 v{vMx}, v{s}, v{s+1}")
                else: p(f"v_max3_f32 v{vMx}, v{vMx}, v{s+r}, v{s+r+1}")
        p(f"""
        v_mov_b32 v{vMc}, v{vMx}
        v_permlane32_swap_b32 v{vMx}, v{vMc}
        v_max_f32 v{vMx}, v{vMx}, v{vMc}
        v_mul_f32 v{vMc}, s{sC}, v{vMx}
        """)
        vread(qb, 0); vread(qb, 1)
        for n in range(9):
            s = St(n)
            if n + 2 < 9: vread(qb, n + 2)
            for r in range(16): p(f"v_fma_f32 v{s+r}, v{s+r}, s{sC}, -v{vMc}")
            for r in range(16 if not cfg.get('noexp') else 0): p(f"v_exp_f32 v{s+r}, v{s+r}")
            for r in range(8): p(f"v_cvt_pk_bf16_f32 v{s+r}, v{s+2*r}, v{s+2*r+1}")
            for j in range(2):
                b = VF + 4 * ((2*n + j) % 6)
                cin = "0" if (n == 0 and j == 0) else f"a[{OA}:{OA+15}]"
                p(f"v_mfma_f32_32x32x16_bf16 a[{OA}:{OA+15}], a[{b}:{b+3}], v[{s+4*j}:{s+4*j+3}], {cin}")
        o = list(range(32, 44))
        p(f"v_accvgpr_read_b32 v{vDen}, a{OA+12}")
        for r in range(12): p(f"v_accvgpr_read_b32 v{o[r]}, a{OA+r}")
        p(f"v_rcp_f32 v{vDen}, v{vDen}")
        for r in range(12): p(f"v_mul_f32 v{o[r]}, v{o[r]}, v{vDen}")
        for r in range(6): p(f"v_cvt_pk_bf16_f32 v{o[r]}, v{o[2*r]}, v{o[2*r+1]}")
        p(f"""
        s_lshl_b32 s{sT}, s{sM}, 3
        s_lshl_b32 s{sT2}, s{sTw}, 1
        s_add_u32 s{sT}, s{sT}, s{sT2}
        s_add_u32 s{sT}, s{sT}, {qb}
        s_lshl_b32 s{sT}, s{sT}, 5
        s_add_u32 s{sT}, s{sT}, s{sHd}
        s_lshl_b32 s{sT2}, s{sT}, 10
        s_add_u32 s{sT2}, s{sT2}, {WS_O}
        s_lshl_b32 s{sT}, s{sT}, 8
        s_add_u32 s{sT}, s{sT}, {WS_OT}
        v_lshlrev_b32 v{vT[0]}, 4, v{vLane}
        v_lshlrev_b32 v{vT[2]}, 3, v{vLane}
        buffer_store_dwordx4 v[{o[0]}:{o[3]}], v{vT[0]}, s[{SWS}:{SWS+3}], s{sT2} offen sc1
        s_mov_b32 exec_hi, 0
        buffer_store_dwordx2 v[{o[4]}:{o[5]}], v{vT[2]}, s[{SWS}:{SWS+3}], s{sT} offen sc1
        s_mov_b64 exec, -1
        """)
        stamp()
    p(f"""
    s_lshl_b32 s{sT}, s{sM}, 2
    s_add_u32 s{sT}, s{sT}, s{sTw}
    s_lshl_b32 s{sT}, s{sT}, 5
    s_add_u32 s{sT}, s{sT}, s{sHd}
    s_lshl_b32 s{sT}, s{sT}, 2
    s_add_u32 s{sT}, s{sT}, {WS_FLAG}
    v_mov_b32 v{vT[4]}, 1
    v_mov_b32 v{vT[5]}, 0
    s_waitcnt vmcnt(0)
    s_mov_b64 exec, 1
    buffer_store_dword v{vT[4]}, v{vT[5]}, s[{SWS}:{SWS+3}], s{sT} offen sc1
    """)
    if prof:
        p("s_mov_b64 exec, -1")
        while nst[0] < 2 + len(names) - 1: stamp()
        prof_end('T')
    p("s_endpgm")
    p("K2_END:")
    return p
```

```python
import sys, json
sys.path.insert(0, 'gen')
import k1, k1b
NAME = 'parallel_sum__sliding_block__glu_gated_glu__prompt'
HEAD = open('cdna_kernels/%s.s.ref' % NAME).read().split('; @launch')[0]
HEAD = '\n'.join(l for l in HEAD.split('\n') if l.startswith(';') and 'Override launch' not in l and 'grid=ceil' not in l) + '\n'

def desc(name, vgpr, agpr, sgpr=102):
    acc = (vgpr + 3) // 4 * 4
    tot = acc + agpr
    return f""".section .rodata,"a"
.p2align 6
.amdhsa_kernel {name}
  .amdhsa_next_free_vgpr {tot}
  .amdhsa_next_free_sgpr {sgpr}
  .amdhsa_accum_offset {acc}
  .amdhsa_group_segment_fixed_size 0
  .amdhsa_kernarg_size 80
  .amdhsa_user_sgpr_count 2
  .amdhsa_user_sgpr_kernarg_segment_ptr 1
  .amdhsa_system_sgpr_workgroup_id_x 1
.end_amdhsa_kernel
.text
"""
def kernel(name, body, vgpr, agpr):
    return f""".globl {name}
.p2align 8
.type {name},@function
{name}:
{body}
s_endpgm
""" + desc(name, vgpr, agpr)

def build(cfg, out):
    ks = []
    st = {}
    launches = []
    if cfg.get('k1', 1):
        b1 = (k1b if cfg.get('k1v', 2) == 2 else k1).gen_k1(cfg).finalize(st); print('k1', st, len(b1.split('\n')), 'lines')
        ks.append(kernel('k1_kernel', b1, 256, 256)); launches.append('; @launch kernel=k1_kernel grid=(256,1,1) block=(256,1,1) lds=163840')
    if cfg.get('k2', 1):
        from k2 import gen_k2, K2_LDS
        b2 = gen_k2(cfg).finalize(st); print('k2', st, len(b2.split('\n')), 'lines')
        ks.append(kernel('k2_kernel', b2, cfg.get('k2v', 192), cfg.get('k2a', 64))); launches.append(f'; @launch kernel=k2_kernel grid=(256,1,1) block=(512,1,1) lds={K2_LDS}')
    json.dump({'k1': cfg.get('_names', []), 'k2': cfg.get('_names2', [])}, open(out + '.names', 'w'))
    body = ''.join(ks)
    i = body.rfind('s_endpgm\n.section')
    body = body[:i] + 's_endpgm\nTEXT_END:\ns_endpgm\n' + body[i + len('s_endpgm\n'):]
    txt = HEAD + '\n'.join(launches) + '\n.amdgcn_target "amdgcn-amd-amdhsa--gfx950"\n.text\n' + body
    open(out, 'w').write(txt)
    return txt

if __name__ == '__main__':
    cfg = json.loads(sys.argv[2]) if len(sys.argv) > 2 else {}
    build(cfg, sys.argv[1])
```

```python
from asmlib import Prog
from k1 import srd, WS_QKV, WS_H, WS_O, WS_OT, WS_FLAG, WS_SIZE, WS_PROF, S_G, S_Q
WS_WF = 20 << 20
WS_SIZE2 = 24 << 20
SLOT = 32 * 1024; NSLOT = 4
XB = NSLOT * SLOT

def gen_k1(cfg):
    D = cfg.get('D', 5); RING = cfg.get('RING', 8); BUD = cfg.get('BUD', 4)
    ROT = cfg.get('rot', 1)
    p = Prog()
    prof = cfg.get('prof', 0)
    SP = [88, 90, 92, 94, 96, 98, 100, 74, 76, 78, 80, 82, 84, 86]
    nst = [0]
    def stamp(name=None):
        if not prof: return
        i = nst[0]; nst[0] += 1
        p(f's_memtime s[{SP[i]}:{SP[i]+1}]' if i else 's_memrealtime s[88:89]')
        if name: cfg.setdefault('_names', []).append(name)
    SX, SQ, SG, SU, SW, S1, S2 = 4, 8, 12, 16, 20, 24, 28
    sW, sMi, sNi, sVar = 32, 33, 34, 35
    sXoff = 36
    sB = [37, 38, 39, 40]
    sRG, sRX, sK23 = 41, 42, 43
    sB2 = [44, 45]
    sR2 = 46
    sWm, sW6 = 47, 48
    sMask, sT, sT2, sT3 = 49, 50, 51, 52
    sHoff = [53, 54, 55, 56]
    sQoff = [57, 58, 59, 60, 61]
    sXl, sNL2E, sRot = 62, 63, 64
    sWo = 2 * 0 + 86
    sM = [66, 68, 70, 72, 84]
    vLane, vXe, vXo = 1, 2, 3
    vXA = [4, 5, 6, 7]; vXB = [8, 9, 10, 11]
    vDe, vDo, vS = 12, 13, 14
    vU = [15, 16, 17, 18]
    vP01, vP23, vPq2, vPs2 = 19, 20, 21, 22
    vL16, vQst, vRstd, vNmr = 23, 24, 25, 26
    vT = list(range(28, 48))
    vHi = {vDe: 4, vDo: 5, vS: 6, vU[0]: 7, vU[1]: 8, vU[2]: 9, vU[3]: 10}
    vSum = 44; vOne = 40
    ACC3 = 48; X0 = 96; WR0 = 128
    GR = ACC3 + 32
    xr = lambda s: f"v[{X0+4*s}:{X0+4*s+3}]"
    stamp(); stamp()
    p(f"""
    s_cmp_ge_u32 s2, 256
    s_cbranch_scc1 K1_END
    s_load_dwordx4 s[76:79], s[0:1], 0
    s_load_dwordx4 s[80:83], s[0:1], 32
    s_load_dwordx2 s[84:85], s[0:1], 72
    s_load_dwordx2 s[74:75], s[0:1], 48
    s_load_dwordx2 s[{sWo}:{sWo+1}], s[0:1], 16
    v_and_b32 v{vLane}, 63, v0
    v_lshrrev_b32 v{vT[0]}, 6, v0
    s_and_b32 s{sT}, s2, 3
    v_readfirstlane_b32 s{sW}, v{vT[0]}
    s_lshl_b32 s{sT}, s{sT}, 2
    s_bfe_u32 s{sT2}, s2, 0x20003
    s_add_u32 s{sMi}, s{sT}, s{sT2}
    s_bfe_u32 s{sT}, s2, 0x10002
    s_lshl_b32 s{sT}, s{sT}, 3
    s_lshr_b32 s{sT3}, s2, 5
    s_add_u32 s{sNi}, s{sT}, s{sT3}
    """)
    if ROT == 2:
        p(f"s_mul_i32 s{sRot}, s{sT3}, 5\ns_lshr_b32 s{sRot}, s{sRot}, 2")
    elif ROT == 3:
        p(f"s_and_b32 s{sT}, s{sT2}, 1\ns_mul_i32 s{sT}, s{sT}, 5\ns_add_u32 s{sRot}, s{sT}, s{sT3}\ns_cmp_ge_u32 s{sRot}, 10\ns_cselect_b32 s{sT}, 10, 0\ns_sub_u32 s{sRot}, s{sRot}, s{sT}")
    elif ROT:
        p(f"""
        s_mul_i32 s{sT}, s{sT2}, 5
        s_lshr_b32 s{sT}, s{sT}, 1
        s_add_u32 s{sRot}, s{sT}, s{sT3}
        s_cmp_ge_u32 s{sRot}, 10
        s_cselect_b32 s{sT}, 10, 0
        s_sub_u32 s{sRot}, s{sRot}, s{sT}
        """)
    else:
        p(f"s_mov_b32 s{sRot}, 0")
    p(f"""
    s_lshr_b32 s{sVar}, s{sNi}, 3
    s_lshl_b32 s{sT}, s{sMi}, 2
    s_add_u32 s{sT}, s{sT}, s{sW}
    s_mul_i32 s{sXoff}, s{sT}, {32*1280}
    s_lshl_b32 s{sXl}, s{sW}, 13
    s_add_u32 s{sXl}, s{sXl}, {XB}
    s_lshr_b32 s{sT}, s{sW}, 1
    s_lshl_b32 s{sWm}, s{sT}, 13
    s_and_b32 s{sT}, s{sW}, 1
    s_lshl_b32 s{sT}, s{sT}, 12
    s_add_u32 s{sWm}, s{sWm}, s{sT}
    v_lshrrev_b32 v{vT[0]}, 3, v{vLane}
    v_mul_u32_u24 v{vT[0]}, 1280, v{vT[0]}
    v_lshrrev_b32 v{vT[1]}, 4, v{vLane}
    v_and_b32 v{vT[2]}, 7, v{vLane}
    v_xor_b32 v{vT[3]}, v{vT[2]}, v{vT[1]}
    v_xor_b32 v{vT[4]}, 4, v{vT[3]}
    v_lshl_add_u32 v{vXe}, v{vT[3]}, 4, v{vT[0]}
    v_lshl_add_u32 v{vXo}, v{vT[4]}, 4, v{vT[0]}
    s_lshl_b32 s{sT3}, s{sRot}, 7
    s_waitcnt lgkmcnt(0)
    """)
    srd(p, SX, 76, 77, 2048 * 1280)
    sXc = 65
    p(f"s_mov_b32 s{sXc}, s{sT3}")
    xplace = [('W', 0), ('W', 16384), ('W', SLOT), ('W', SLOT + 16384), ('W', 2*SLOT), ('W', 2*SLOT + 16384), ('W', 3*SLOT), ('W', 3*SLOT + 16384), ('X', 0), ('X', 4096)]
    def xdma(c):
        kind, off = xplace[c]
        out = [f"s_add_u32 s{sT2}, s{sXoff}, s{sXc}"]
        for i in range(4):
            out.append(f"s_add_u32 m0, s{sXl if kind == 'X' else sWm}, {off + i*1024}")
            out.append(f"s_add_u32 s{sT}, s{sT2}, {8*i*1280}")
            out.append(f"buffer_load_dwordx4 v{vXe if i%2==0 else vXo}, s[{SX}:{SX+3}], s{sT} offen lds")
        out += [f"s_add_u32 s{sXc}, s{sXc}, 128", f"s_cmp_ge_u32 s{sXc}, 1280", f"s_cselect_b32 s{sT}, 1280, 0", f"s_sub_u32 s{sXc}, s{sXc}, s{sT}"]
        return out
    def emit_stream(lines, tag=None):
        for l in lines: p(l, tag=tag)
    NF0 = cfg.get('nfirst', 3)
    for c in range(NF0): emit_stream(xdma(c), tag=f'x{c}')
    stamp('x issued')
    srd(p, SQ, 78, 79, 640 * S_Q)
    srd(p, SG, 80, 81, 640 * S_G)
    srd(p, SU, 82, 83, 640 * S_G)
    srd(p, SW, 84, 85, WS_SIZE2)
    if cfg.get('pf', 2) == 1:
        p(f"""
        s_getpc_b64 s[76:77]
        v_lshlrev_b32 v{vT[5]}, 7, v0
        s_and_b32 s76, s76, 0xffffff00
        global_load_dword v27, v{vT[5]}, s[76:77]
        """, tag='pf')
    if cfg.get('pf', 2) >= 2:
        end = 'TEXT_END' if cfg.get('pf', 2) == 2 else 'K1_END'
        p(f"""
        s_getpc_b64 s[76:77]
        K1_PFB:
        s_lshr_b32 s{sT}, s2, 3
        s_lshl_b32 s{sT}, s{sT}, 2
        s_add_u32 s{sT}, s{sT}, s{sW}
        s_lshl_b32 s{sT}, s{sT}, 2
        s_mov_b32 s{sT2}, {end}-K1_PFB-4
        v_add_u32 v{vT[5]}, s{sT}, v{vLane}
        v_lshlrev_b32 v{vT[5]}, 7, v{vT[5]}
        v_min_u32 v{vT[5]}, s{sT2}, v{vT[5]}
        s_mov_b64 exec, 15
        global_load_dword v27, v{vT[5]}, s[76:77]
        s_mov_b64 exec, -1
        """, tag='pf')
    sPd, sPs = 66, 67
    sQd1, sQd2, sQs = 68, 69, 70
    p(f"""
    s_mul_i32 s{sT}, s{sNi}, 3
    s_add_u32 s{sT}, s{sT}, 8
    s_and_b32 s{sT2}, s{sT}, 1
    s_add_u32 s{sPd}, s{sT}, s{sT2}
    s_min_u32 s{sPd}, s{sPd}, 52
    s_xor_b32 s{sT2}, s{sT2}, 1
    s_lshl_b32 s{sT2}, s{sT2}, 1
    s_add_u32 s{sPs}, s{sT}, s{sT2}
    s_min_u32 s{sPs}, s{sPs}, 53
    s_lshl_b32 s{sT}, s{sNi}, 2
    s_add_u32 s{sT2}, s{sT}, 2
    s_cmp_eq_u32 s{sVar}, 0
    s_cselect_b32 s{sPd}, s{sT}, s{sPd}
    s_cselect_b32 s{sPs}, s{sT2}, s{sPs}
    """)
    p(f"""
    s_mul_i32 s{sT}, s{sNi}, 3
    s_mul_i32 s{sT2}, s{sNi}, 5
    s_sub_u32 s{sT2}, s{sT2}, 16
    s_cmp_eq_u32 s{sVar}, 0
    s_cselect_b32 s{sT}, s{sT}, s{sT2}
    s_cselect_b32 s{sT3}, 0, 2
    s_and_b32 s{sT2}, s{sT}, 1
    s_add_u32 s{sQd1}, s{sT}, s{sT2}
    s_add_u32 s{sQd2}, s{sQd1}, s{sT3}
    s_add_u32 s{sT3}, s{sT3}, 2
    s_cmp_eq_u32 s{sT2}, 0
    s_cselect_b32 s{sT3}, s{sT3}, 0
    s_add_u32 s{sQs}, s{sT}, s{sT3}
    s_min_u32 s{sQd1}, s{sQd1}, 58
    s_min_u32 s{sQd2}, s{sQd2}, 58
    s_min_u32 s{sQs}, s{sQs}, 59
    """)
    p(f"s_lshl_b32 s{sT3}, s{sMi}, 2\ns_add_u32 s{sT3}, s{sT3}, s{sW}\ns_mul_i32 s{sT}, s{sT3}, {54*2048}\ns_add_u32 s{sT}, s{sT}, {WS_H}")
    for j, (base, add) in enumerate(((sPd, 0), (sPd, 1), (sPs, 0), (sPs, 1))):
        p(f"s_add_u32 s{sT2}, s{base}, {add}\ns_min_u32 s{sT2}, s{sT2}, 53\ns_lshl_b32 s{sT2}, s{sT2}, 11\ns_add_u32 s{sHoff[j]}, s{sT2}, s{sT}")
    p(f"s_lshl_b32 s{sT}, s{sT3}, 8\ns_add_u32 s{sT}, s{sT}, {WS_QKV}")
    for j, (base, add) in enumerate(((sQd1, 0), (sQd1, 1), (sQd2, 0), (sQd2, 1), (sQs, 0))):
        p(f"s_add_u32 s{sT2}, s{base}, {add}\ns_lshl_b32 s{sT2}, s{sT2}, 17\ns_add_u32 s{sQoff[j]}, s{sT2}, s{sT}")
    sSp = 71
    p(f"""
    s_and_b32 s{sT}, s{sW}, 1
    s_and_b32 s{sSp}, s{sT}, s{sVar}
    s_cmp_eq_u32 s{sT}, 0
    s_cselect_b32 s{sT2}, s{sPd}, s{sPs}
    s_lshl_b32 s{sT2}, s{sT2}, 6
    s_lshr_b32 s{sT3}, s{sW}, 1
    s_mul_i32 s{sT}, s{sT3}, {16*S_G}
    s_add_u32 s{sT2}, s{sT2}, s{sT}
    s_mov_b32 s{sB[0]}, s{sT2}
    s_add_u32 s{sB[1]}, s{sT2}, {8*S_G}
    s_mov_b32 s{sB[2]}, s{sT2}
    s_add_u32 s{sB[3]}, s{sT2}, {8*S_G}
    s_lshl_b32 s{sT}, s{sQd1}, 6
    s_mul_i32 s{sT3}, s{sT3}, {16*S_Q}
    s_add_u32 s{sT}, s{sT}, s{sT3}
    s_add_u32 s{sT3}, s{sT}, {8*S_Q}
    s_cmp_eq_u32 s{sSp}, 1
    s_cselect_b32 s{sB[1]}, s{sT2}, s{sB[1]}
    s_cselect_b32 s{sB[2]}, s{sT}, s{sB[2]}
    s_cselect_b32 s{sB[3]}, s{sT3}, s{sB[3]}
    s_cselect_b32 s{S1}, s{SU}, s{SG}
    s_cselect_b32 s{S1+1}, s{SU+1}, s{SG+1}
    s_mov_b32 s{S1+2}, {640*S_G}
    s_mov_b32 s{S1+3}, 0x20000
    s_cselect_b32 s{S2}, s{SQ}, s{SU}
    s_cselect_b32 s{S2+1}, s{SQ+1}, s{SU+1}
    s_cselect_b32 s{S2+2}, s{SQ+2}, s{SU+2}
    s_mov_b32 s{S2+3}, 0x20000
    s_mov_b32 s{sK23}, {32*S_G}
    s_cselect_b32 s{sK23}, {32*S_Q}, s{sK23}
    s_mul_i32 s{sRG}, s{sRot}, {64*S_G}
    s_mul_i32 s{sRX}, s{sRot}, s{sK23}
    s_lshl_b32 s{sRX}, s{sRX}, 1
    """)
    for pr in range(cfg.get('wpf', 0)):
        t = vT
        p(f"""
        v_and_b32 v{t[0]}, 15, v{vLane}
        v_bfe_u32 v{t[1]}, v{vLane}, 4, 1
        v_lshl_add_u32 v{t[0]}, v{t[1]}, 5, v{t[0]}
        v_lshrrev_b32 v{t[1]}, 5, v{vLane}
        s_add_u32 s{sT}, s{sRot}, {2*pr}
        v_add_u32 v{t[1]}, s{sT}, v{t[1]}
        v_subrev_u32 v{t[2]}, 10, v{t[1]}
        v_min_u32 v{t[1]}, v{t[1]}, v{t[2]}
        v_lshl_add_u32 v{t[0]}, v{t[1]}, 6, v{t[0]}
        s_lshr_b32 s{sT}, s{sK23}, 5
        v_mul_u32_u24 v{t[1]}, {S_G}, v{t[0]}
        v_mul_u32_u24 v{t[2]}, s{sT}, v{t[0]}
        buffer_load_dword v27, v{t[1]}, s[{SG}:{SG+3}], s{sB[0]} offen
        buffer_load_dword v27, v{t[2]}, s[{S2}:{S2+3}], s{sB[2]} offen
        """, tag='pf')
    p(f"""
    s_and_b32 s{sT}, s{sW}, 1
    s_mul_i32 s{sT}, s{sT}, {32*S_Q}
    s_lshl_b32 s{sB2[0]}, s{sQd2}, 6
    s_add_u32 s{sB2[0]}, s{sB2[0]}, s{sT}
    s_lshl_b32 s{sB2[1]}, s{sQs}, 6
    s_add_u32 s{sB2[1]}, s{sB2[1]}, s{sT}
    s_lshr_b32 s{sT}, s{sW}, 1
    s_add_u32 s{sT}, s{sT}, s{sRot}
    s_cmp_ge_u32 s{sT}, 10
    s_cselect_b32 s{sT2}, 10, 0
    s_sub_u32 s{sT}, s{sT}, s{sT2}
    s_mul_i32 s{sR2}, s{sT}, {64*S_Q}
    s_mul_i32 s{sW6}, s{sW}, 6144
    s_mov_b32 s{sMask}, 0xffff0000
    s_mov_b32 s{sNL2E}, 0xbfb8aa3b
    """)
    t = vT
    p(f"""
    v_lshrrev_b32 v{t[0]}, 3, v{vLane}
    v_bfe_u32 v{t[1]}, v{vLane}, 4, 1
    v_lshlrev_b32 v{t[1]}, 2, v{t[1]}
    v_and_b32 v{t[2]}, 7, v{vLane}
    v_xor_b32 v{t[1]}, v{t[1]}, v{t[2]}
    v_lshlrev_b32 v{t[1]}, 4, v{t[1]}
    v_mul_u32_u24 v{t[2]}, {S_G}, v{t[0]}
    v_add_u32 v{t[2]}, v{t[2]}, v{t[1]}
    v_mul_u32_u24 v{vPq2}, {S_Q}, v{t[0]}
    v_add_u32 v{vPq2}, v{vPq2}, v{t[1]}
    v_bfe_u32 v{t[3]}, v{vLane}, 2, 2
    v_lshrrev_b32 v{t[4]}, 5, v{vLane}
    v_lshl_add_u32 v{t[3]}, v{t[4]}, 2, v{t[3]}
    v_bfe_u32 v{t[4]}, v{vLane}, 4, 1
    v_lshl_add_u32 v{t[3]}, v{t[4]}, 3, v{t[3]}
    v_and_b32 v{t[4]}, 3, v{vLane}
    v_lshlrev_b32 v{t[4]}, 4, v{t[4]}
    v_mul_u32_u24 v{t[5]}, {S_G}, v{t[3]}
    v_add_u32 v{t[5]}, v{t[5]}, v{t[4]}
    v_mul_u32_u24 v{vPs2}, {S_Q}, v{t[3]}
    v_add_u32 v{vPs2}, v{vPs2}, v{t[4]}
    s_cmp_eq_u32 s{sSp}, 1
    s_cselect_b64 vcc, -1, 0
    v_cndmask_b32 v{vP01}, v{t[2]}, v{t[5]}, vcc
    v_cndmask_b32 v{vP23}, v{t[2]}, v{vPq2}, vcc
    """)
    p(f"""
    v_lshrrev_b32 v{t[0]}, 5, v{vLane}
    v_bfe_u32 v{t[1]}, v{vLane}, 2, 2
    v_bfe_u32 v{t[2]}, v{vLane}, 4, 1
    v_lshlrev_b32 v{t[2]}, 5, v{t[2]}
    v_and_b32 v{t[3]}, 3, v{vLane}
    v_lshl_add_u32 v{t[2]}, v{t[3]}, 3, v{t[2]}
    v_lshl_add_u32 v{t[3]}, v{t[0]}, 3, v{t[1]}
    v_lshlrev_b32 v{t[3]}, 7, v{t[3]}
    v_bfe_u32 v{t[4]}, v{vLane}, 3, 1
    v_lshl_add_u32 v{t[3]}, v{t[4]}, 6, v{t[3]}
    v_add_u32 v{vDe}, v{t[3]}, v{t[2]}
    v_xor_b32 v{vDo}, 64, v{vDe}
    v_lshl_add_u32 v{t[3]}, v{t[0]}, 2, v{t[1]}
    v_lshl_add_u32 v{t[5]}, v{t[3]}, 6, v{t[2]}
    v_add_u32 v{vS}, 2048, v{t[5]}
    s_cmp_eq_u32 s{sVar}, 0
    s_cselect_b64 vcc, -1, 0
    v_add_u32 v{t[6]}, 4096, v{t[5]}
    v_add_u32 v{t[7]}, 4096, v{vDe}
    v_cndmask_b32 v{vU[0]}, v{t[6]}, v{t[7]}, vcc
    v_add_u32 v{t[6]}, 5120, v{t[5]}
    v_add_u32 v{t[7]}, 6144, v{vDe}
    v_cndmask_b32 v{vU[1]}, v{t[6]}, v{t[7]}, vcc
    v_add_u32 v{t[6]}, 6144, v{vDe}
    v_add_u32 v{t[7]}, 4096, v{vDo}
    v_cndmask_b32 v{vU[2]}, v{t[6]}, v{t[7]}, vcc
    v_add_u32 v{vU[3]}, 6144, v{vDo}
    v_lshlrev_b32 v{vL16}, 4, v{vLane}
    v_and_b32 v{t[1]}, 31, v{vLane}
    v_lshlrev_b32 v{t[2]}, 3, v{t[1]}
    v_lshl_add_u32 v{vQst}, v{t[0]}, 14, v{t[2]}
    """)
    p(f"v_bfe_u32 v{t[2]}, v{vLane}, 1, 3\nv_lshlrev_b32 v{t[3]}, 7, v{t[1]}")
    for jj in range(4):
        p(f"""
        v_add_u32 v{t[4]}, {2*jj}, v{t[0]}
        v_xor_b32 v{t[4]}, v{t[4]}, v{t[2]}
        v_lshl_add_u32 v{t[4]}, v{t[4]}, 4, v{t[3]}
        v_add_u32 v{vXA[jj]}, s{sXl}, v{t[4]}
        v_add_u32 v{vXB[jj]}, s{sWm}, v{t[4]}
        """)
    p(f"""
    v_and_b32 v{t[4]}, 7, v{vLane}
    v_bfe_u32 v{t[5]}, v{vLane}, 4, 1
    v_lshlrev_b32 v{t[5]}, 2, v{t[5]}
    v_cmp_eq_u32 vcc, v{t[4]}, v{t[5]}
    v_mov_b32 v{t[6]}, 0x3f803f80
    v_cndmask_b32 v{vOne}, 0, v{t[6]}, vcc
    v_mov_b32 v{vOne+1}, v{vOne}
    v_mov_b32 v{vOne+2}, v{vOne}
    v_mov_b32 v{vOne+3}, v{vOne}
    """)
    p(f"""
    v_mov_b32 v{t[0]}, 0
    v_mov_b32 v{t[1]}, 0
    v_mov_b32 v{t[2]}, 0
    v_mov_b32 v{t[3]}, 0
    v_mov_b32 v{t[4]}, 0
    s_lshl_b32 s{sT}, s2, 4
    s_add_u32 s{sT}, s{sT}, {WS_FLAG}
    s_mov_b64 exec, 1
    buffer_store_dwordx4 v[{t[0]}:{t[3]}], v{t[4]}, s[{SW}:{SW+3}], s{sT} offen sc1
    s_mov_b64 exec, -1
    """, tag='flagz')
    frags = []; chunks = []
    for c in range(10):
        chunks.append(dict(first=len(frags), pas=1))
        for sl in range(4):
            for u in range(8):
                blk = (len(chunks) - 1) % NSLOT * SLOT + sl * 8192
                va, o = {0: (vDe, 0), 1: (vDe, 2048), 2: (vDo, 0), 3: (vDo, 2048)}.get(u, (vU[u-4] if u >= 4 else None, 0))
                frags.append((1, u, 4*c + sl, len(chunks) - 1, va, blk + o))
    for c in range(5):
        chunks.append(dict(first=len(frags), pas=2))
        for sl in range(8):
            for u in range(3):
                blk = (len(chunks) - 1) % NSLOT * SLOT + sl * 3072
                frags.append((2, 8 + u, 8*c + sl, len(chunks) - 1, (vDe, vDo, vS)[u], blk))
    NF = len(frags)
    FOLD = cfg.get('fold', 1)
    vF = [vP01, vP23, vXe, vXo]
    def fold1():
        return [f"v_add_u32 v{vXe}, s{sB[2]}, v{vP23}", f"s_sub_u32 s{sT3}, s{sB[3]}, 1024", f"v_add_u32 v{vXo}, s{sT3}, v{vP23}",
                f"s_sub_u32 s{sT3}, s{sB[1]}, 1024", f"v_add_u32 v{vP23}, s{sT3}, v{vP01}", f"v_add_u32 v{vP01}, s{sB[0]}, v{vP01}"]
    def fold2():
        return [f"v_add_u32 v{vF[0]}, s{sB2[0]}, v{vPq2}", f"s_add_u32 s{sT3}, s{sB2[0]}, {8*S_Q - 1024}", f"v_add_u32 v{vF[1]}, s{sT3}, v{vPq2}",
                f"v_add_u32 v{vF[2]}, s{sB2[1]}, v{vPs2}"]
    def wdma(c):
        ch = chunks[c]; base = (c % NSLOT) * SLOT
        out = []
        if ch['pas'] == 1:
            for i in range(2):
                for d in range(4):
                    S = (SG, S1, S2, S2)[d]; va = vP01 if d < 2 else vP23
                    if FOLD:
                        if d % 2 == 0: out.append(f"s_add_u32 m0, s{sWm}, {base + i*16384 + d*1024}")
                        out.append(f"buffer_load_dwordx4 v{vF[d]}, s[{S}:{S+3}], s{sRG if d < 2 else sRX} offen offset:{1024*(d%2)} lds")
                    else:
                        out.append(f"s_add_u32 m0, s{sWm}, {base + i*16384 + d*1024}")
                        out.append(f"s_add_u32 s{sT3}, s{sB[d]}, s{sRG if d < 2 else sRX}")
                        out.append(f"buffer_load_dwordx4 v{va}, s[{S}:{S+3}], s{sT3} offen lds")
                if i == 0:
                    out.append(f"s_add_u32 s{sRG}, s{sRG}, {32*S_G}")
                    out.append(f"s_add_u32 s{sRX}, s{sRX}, s{sK23}")
            out += [f"s_add_u32 s{sRG}, s{sRG}, {32*S_G}", f"s_add_u32 s{sRX}, s{sRX}, s{sK23}",
                    f"s_cmp_ge_u32 s{sRG}, {640*S_G}", f"s_cselect_b32 s{sRG}, 0, s{sRG}", f"s_cselect_b32 s{sRX}, 0, s{sRX}"]
        else:
            if FOLD and c == 10: out += fold2()
            for i in range(2):
                if FOLD:
                    out.append(f"s_add_u32 m0, s{sW6}, {base + i*3072}")
                    out.append(f"buffer_load_dwordx4 v{vF[0]}, s[{SQ}:{SQ+3}], s{sR2} offen lds")
                    out.append(f"buffer_load_dwordx4 v{vF[1]}, s[{SQ}:{SQ+3}], s{sR2} offen offset:1024 lds")
                    out.append(f"s_add_u32 m0, s{sW6}, {base + i*3072 + 2048}")
                    out.append(f"buffer_load_dwordx4 v{vF[2]}, s[{SQ}:{SQ+3}], s{sR2} offen lds")
                    if i == 0: out.append(f"s_add_u32 s{sR2}, s{sR2}, {16*S_Q}")
                    continue
                for (va, b, extra, pos) in ((vPq2, sB2[0], 0, 0), (vPq2, sB2[0], 8*S_Q, 1024), (vPs2, sB2[1], 0, 2048)):
                    out.append(f"s_add_u32 m0, s{sW6}, {base + i*3072 + pos}")
                    out.append(f"s_add_u32 s{sT3}, s{b}, s{sR2}")
                    if extra + i*16*S_Q: out.append(f"s_add_u32 s{sT3}, s{sT3}, {extra + i*16*S_Q}")
                    out.append(f"buffer_load_dwordx4 v{va}, s[{SQ}:{SQ+3}], s{sT3} offen lds")
            adv = (112 if FOLD else 128) * S_Q
            out += [f"s_add_u32 s{sR2}, s{sR2}, {adv}", f"s_cmp_ge_u32 s{sR2}, {640*S_Q}", f"s_cselect_b32 s{sT3}, {640*S_Q}, 0", f"s_sub_u32 s{sR2}, s{sR2}, s{sT3}"]
        return out
    def stats_mfma(s, first):
        c0 = "0" if first else f"v[{GR}:{GR+15}]"
        c1 = "0" if first else f"v[{vSum}:{vSum+3}]"
        p(f"v_mfma_f32_32x32x16_bf16 v[{GR}:{GR+15}], {xr(s)}, {xr(s)}, {c0}")
        p(f"v_mfma_f32_16x16x32_bf16 v[{vSum}:{vSum+3}], v[{vOne}:{vOne+3}], {xr(s)}, {c1}")
    for c in range(10):
        p.waitvm(f'x{c}')
        if c == 0: stamp('x0 arrived')
        if c == 4: stamp('x4 arrived')
        kind, off = xplace[c]
        for jj in range(4):
            if kind == 'X': p(f"ds_read_b128 {xr(4*c+jj)}, v{vXA[jj]} offset:{off}", tag=f'xr{c}')
            else:
                if off >= 65536 and xplace[c-1][1] < 65536: p(f"v_add_u32 v{vXB[jj]}, 0x10000, v{vXB[jj]}")
                p(f"ds_read_b128 {xr(4*c+jj)}, v{vXB[jj]} offset:{off % 65536}", tag=f'xr{c}')
        if c + NF0 < 10: emit_stream(xdma(c + NF0), tag=f'x{c+NF0}')
        if c > 0:
            for jj in range(4): stats_mfma(4*(c-1)+jj, c == 1 and jj == 0)
        if c + NF0 == 9 + cfg.get('wdel', 0):
            p.waitlg('xr0'); p.waitlg('xr1')
            if FOLD: emit_stream(fold1())
            emit_stream(wdma(0), tag='w0')
        if c + NF0 == 10 + cfg.get('wdel', 0):
            p.waitlg('xr2'); p.waitlg('xr3')
            emit_stream(wdma(1), tag='w1')
    for jj in range(4): stats_mfma(36 + jj, False)
    stamp('x+stats')
    for va, hi in vHi.items(): p(f"v_add_u32 v{hi}, 0x10000, v{va}")
    for b, bit in enumerate((0, 1, 3, 4, 2)):
        p(f"v_bfe_u32 v{t[0]}, v{vLane}, {bit}, 1\nv_cmp_eq_u32 s[{sM[b]}:{sM[b]+1}], 1, v{t[0]}")
    G = lambda r: f"v{GR+r}"
    for i in range(8): p(f"v_cndmask_b32 v{t[i]}, {G(2*i)}, {G(2*i+1)}, s[{sM[0]}:{sM[0]+1}]")
    for i in range(4): p(f"v_cndmask_b32 v{t[i]}, v{t[2*i]}, v{t[2*i+1]}, s[{sM[1]}:{sM[1]+1}]")
    for i in range(2): p(f"v_cndmask_b32 v{t[i]}, v{t[2*i]}, v{t[2*i+1]}, s[{sM[2]}:{sM[2]+1}]")
    p(f"v_cndmask_b32 v{t[0]}, v{t[0]}, v{t[1]}, s[{sM[3]}:{sM[3]+1}]")
    p(f"""
    v_mov_b32 v{t[1]}, v{t[0]}
    v_permlane32_swap_b32 v{t[0]}, v{t[1]}
    v_cndmask_b32 v{t[0]}, v{t[0]}, v{t[1]}, s[{sM[4]}:{sM[4]+1}]
    v_mul_f32 v{t[2]}, {1.0/640!r}, v{vSum}
    v_mul_f32 v{t[0]}, {1.0/640!r}, v{t[0]}
    v_fma_f32 v{t[0]}, -v{t[2]}, v{t[2]}, v{t[0]}
    v_max_f32 v{t[0]}, 0, v{t[0]}
    v_add_f32 v{t[0]}, 0x3727c5ac, v{t[0]}
    v_rsq_f32 v{vRstd}, v{t[0]}
    v_mul_f32 v{vNmr}, v{t[2]}, v{vRstd}
    v_mul_f32 v{vNmr}, -1.0, v{vNmr}
    """)
    def norm_stream(s):
        out = []
        regs = [X0 + 4*s + i for i in range(4)]
        for h in range(2):
            a, b = regs[2*h], regs[2*h+1]
            t0, t1, t2, t3 = vT[4*h:4*h+4]
            out += [f"v_lshlrev_b32 v{t0}, 16, v{a}", f"v_and_b32 v{t1}, s{sMask}, v{a}",
                    f"v_lshlrev_b32 v{t2}, 16, v{b}", f"v_and_b32 v{t3}, s{sMask}, v{b}",
                    f"v_fma_f32 v{t0}, v{t0}, v{vRstd}, v{vNmr}", f"v_fma_f32 v{t1}, v{t1}, v{vRstd}, v{vNmr}",
                    f"v_fma_f32 v{t2}, v{t2}, v{vRstd}, v{vNmr}", f"v_fma_f32 v{t3}, v{t3}, v{vRstd}, v{vNmr}",
                    f"v_cvt_pk_bf16_f32 v{a}, v{t0}, v{t1}", f"v_cvt_pk_bf16_f32 v{b}, v{t2}, v{t3}"]
        return out
    accA = lambda u: 16 * u
    def glu_stream(ug, uu, soff):
        out = []
        for j in range(2):
            pk = vT[8 + 4*j: 12 + 4*j]
            for q in range(2):
                r0 = 8*j + 4*q
                g = vT[0:4]; u = vT[4:8]
                out += [f"v_accvgpr_read_b32 v{g[i]}, a{accA(ug)+r0+i}" for i in range(4)]
                out += [f"v_mul_f32 v{g[i]}, s{sNL2E}, v{g[i]}" for i in range(4)]
                out += [f"v_exp_f32 v{g[i]}, v{g[i]}" for i in range(4)]
                out += [f"v_accvgpr_read_b32 v{u[i]}, a{accA(uu)+r0+i}" for i in range(4)]
                out += [f"v_add_f32 v{g[i]}, 1.0, v{g[i]}" for i in range(4)]
                out += [f"v_rcp_f32 v{g[i]}, v{g[i]}" for i in range(4)]
                out += [f"v_mul_f32 v{g[i]}, v{g[i]}, v{u[i]}" for i in range(4)]
                out += [f"v_cvt_pk_bf16_f32 v{pk[2*q]}, v{g[0]}, v{g[1]}", f"v_cvt_pk_bf16_f32 v{pk[2*q+1]}, v{g[2]}, v{g[3]}"]
            out.append(f"buffer_store_dwordx4 v[{pk[0]}:{pk[3]}], v{vL16}, s[{SW}:{SW+3}], s{soff} offen offset:{1024*j} sc1")
        return out
    def qkv_stream(accbase, isA, soff):
        out = []
        for a in range(4):
            if isA:
                g = vT[4*(a%2): 4 + 4*(a%2)]
                out += [f"v_accvgpr_read_b32 v{g[i]}, a{accbase+4*a+i}" for i in range(4)]
                src = g; pk = vT[8 + 2*a: 10 + 2*a]
            else:
                src = [accbase + 4*a + i for i in range(4)]; pk = [accbase + 4*a, accbase + 4*a + 1]
            out += [f"v_cvt_pk_bf16_f32 v{pk[0]}, v{src[0]}, v{src[1]}", f"v_cvt_pk_bf16_f32 v{pk[1]}, v{src[2]}, v{src[3]}"]
            out.append(f"s_add_u32 s{sT2}, s{soff}, {a*32768}")
            out.append(f"buffer_store_dwordx2 v[{pk[0]}:{pk[1]}], v{vQst}, s[{SW}:{SW+3}], s{sT2} offen sc1")
        return out
    if cfg.get('nofill'):
        norm_stream = lambda s: []
        glu_stream = lambda a, b, c: []
    cost = lambda l: 2 if l.startswith(('v_exp', 'v_rcp')) else 1
    def wreg(i): return f"a[{WR0+4*(i%RING)}:{WR0+4*(i%RING)+3}]"
    def tr_reads(i):
        (pas, u, s, c, va, off) = frags[i]
        b = WR0 + 4 * (i % RING)
        if off >= 65536: va = vHi[va]; off -= 65536
        return [f"ds_read_b64_tr_b16 a[{b}:{b+1}], v{va} offset:{off}", f"ds_read_b64_tr_b16 a[{b+2}:{b+3}], v{va} offset:{off+512}"]
    def acc(u): return f"a[{accA(u)}:{accA(u)+15}]" if u < 8 else f"v[{ACC3+16*(u-8)}:{ACC3+16*(u-8)+15}]"
    def last_m0():
        x = p.ins[-1]
        return (not isinstance(x, tuple)) and ('x', 'm0') in x.dst
    DBL = cfg.get('dbl', 1); PW = cfg.get('pw', 1)
    DGAP = cfg.get('dgap', 2 if DBL else 3)
    def main(i0, i1, q):
        for i in range(i0, i1):
            (pas, u, s, c, va, off) = frags[i]
            cin = "0" if s == 0 else acc(u)
            if pas == 1 and u == 0:
                while q['norm'] and q['norm'][0][0] <= s: p(q['norm'].pop(0)[1])
            if PW and i % 2 == 0 and i + 1 < NF: p.waitlg(f'f{i+1}')
            p(f"v_mfma_f32_32x32x16_bf16 {acc(u)}, {wreg(i)}, {xr(s)}, {cin}")
            j = i + D
            if j < NF:
                cj = frags[j][3]
                if j == chunks[cj]['first'] and DBL and cj == 1:
                    if not cfg.get('nowait'): p.waitvm('w1')
                    if not cfg.get('nobar'): p("s_barrier")
                elif j == chunks[cj]['first'] and not (DBL and cj % 2 == 1):
                    while q['dma']:
                        l, tg = q['dma'].pop(0); p(l, tag=tg)
                    last = min(cj + 1, len(chunks) - 1) if DBL else cj
                    if not cfg.get('nowait'): p.waitvm(f'w{last}')
                    if not cfg.get('nobar'): p("s_barrier")
                    for cn in ((cj + 2, cj + 3) if DBL else (cj + 2,)):
                        if cn < len(chunks) and not cfg.get('nodma'):
                            q['dma'] += [(l, f'w{cn}') for l in wdma(cn)]
                    q['next_dma'] = i
                emit_stream(tr_reads(j), tag=f'f{j}')
            bud = BUD
            if pas == 1 and u == 0 and s + 1 < 40:
                q['norm'] += [(s + 1, l) for l in norm_stream(s + 1)]
            if q['dma'] and i >= q['next_dma']:
                while q['dma']:
                    l, tg = q['dma'].pop(0); p(l, tag=tg); bud -= 1
                    if l.startswith('buffer'): break
                while q['dma'] and q['dma'][0][0].startswith('s_'):
                    l, tg = q['dma'].pop(0); p(l, tag=tg); bud -= 1
                q['next_dma'] = i + DGAP
            if q['extra'] and q['extra'][0][0] <= i:
                grp = q['extra'].pop(0)[1]
                for (l, tg) in grp:
                    if l == 'WAITVM': p.waitvm(tg)
                    elif l == 'WAITLG': p.waitlg(tg)
                    else: p(l, tag=tg); bud -= 1
            while bud > 0:
                if q['norm']: p(q['norm'].pop(0)[1]); bud -= 1
                elif q['epi'] and q['epi'][0][0] <= i:
                    l = q['epi'].pop(0)[1]; p(l); bud -= cost(l)
                else: break
    extra = []
    if cfg.get('repack', 1):
        SR = S1
        SRP = 76
        sJ, sJb, sJs, sJo = 80, 81, 82, 83
        vJ = [vT[12], vT[13], vT[14], vT[15], vT[16]]
        vJa = vT[17]
        setup = []
        A = setup.append
        for l in f"""s_lshl_b32 s{sJ}, s2, 2
        s_add_u32 s{sJ}, s{sJ}, s{sW}
        s_cmp_ge_u32 s{sJ}, 592
        s_cselect_b32 s3, 1, 0
        s_cselect_b32 s{sT}, 592, 0
        s_sub_u32 s{sJ}, s{sJ}, s{sT}
        s_lshr_b32 s{sT}, s{sJ}, 2
        s_and_b32 s{sJo}, s{sJ}, 3
        s_sub_u32 s{sT2}, s{sT}, 108
        s_mul_i32 s{sJb}, s{sT2}, 6554
        s_lshr_b32 s{sJb}, s{sJb}, 16
        s_mul_i32 s{sJs}, s{sJb}, 10
        s_sub_u32 s{sJs}, s{sT2}, s{sJs}
        s_mul_i32 s{sJb}, s{sJb}, 160
        s_cmp_lt_u32 s{sJs}, 8
        s_cselect_b32 s{sT2}, 20, 80
        s_cselect_b32 s{sT3}, 0, 624
        s_mul_i32 s{sT2}, s{sT2}, s{sJs}
        s_cselect_b32 s{sJs}, 4, 20
        s_add_u32 s{sJb}, s{sJb}, s{sT2}
        s_sub_u32 s{sJb}, s{sJb}, s{sT3}
        s_mov_b32 s{SRP+3}, {640*1280}
        s_lshl_b32 s{sT2}, s{sT}, 4
        s_cmp_lt_u32 s{sT}, 108
        s_cselect_b32 s{SRP}, s74, s{sWo}
        s_cselect_b32 s{SRP+1}, s75, s{sWo+1}
        s_cselect_b32 s{SRP+2}, {1728*1280}, s{SRP+3}
        s_cselect_b32 s{sJb}, s{sT2}, s{sJb}
        s_cselect_b32 s{sJs}, 4, s{sJs}
        s_and_b32 s{SRP+1}, s{SRP+1}, 0xffff
        s_mov_b32 s{SRP+3}, 0x20000
        s_mul_i32 s{sJb}, s{sJb}, 1280
        s_mul_i32 s{sT2}, s{sJo}, 320
        s_add_u32 s{sJb}, s{sJb}, s{sT2}
        s_mul_i32 s{sJo}, s{sJo}, {2*148*2560}
        s_mul_i32 s{sT}, s{sT}, 2560
        s_add_u32 s{sJo}, s{sJo}, s{sT}
        s_add_u32 s{sJo}, s{sJo}, {WS_WF}""".split('\n'): A(l.strip())
        for i in range(5):
            for l in f"""v_add_u32 v{t[0]}, {64*i}, v{vLane}
            v_mul_u32_u24 v{t[1]}, 3277, v{t[0]}
            v_lshrrev_b32 v{t[1]}, 16, v{t[1]}
            v_mul_u32_u24 v{t[2]}, 20, v{t[1]}
            v_sub_u32 v{t[0]}, v{t[0]}, v{t[2]}
            v_lshrrev_b32 v{t[2]}, 2, v{t[1]}
            v_mul_u32_u24 v{t[2]}, s{sJs}, v{t[2]}
            v_and_b32 v{t[1]}, 3, v{t[1]}
            v_add_u32 v{t[1]}, v{t[1]}, v{t[2]}
            v_mul_u32_u24 v{t[1]}, 1280, v{t[1]}
            v_lshl_add_u32 v{vJ[i]}, v{t[0]}, 4, v{t[1]}""".split('\n'): A(l.strip())
        for l in f"""v_lshrrev_b32 v{t[0]}, 5, v{vLane}
        v_bfe_u32 v{t[1]}, v{vLane}, 2, 2
        v_lshl_add_u32 v{t[1]}, v{t[0]}, 2, v{t[1]}
        v_mul_u32_u24 v{t[1]}, 320, v{t[1]}
        v_bfe_u32 v{t[2]}, v{vLane}, 4, 1
        v_lshl_add_u32 v{t[1]}, v{t[2]}, 5, v{t[1]}
        v_and_b32 v{t[2]}, 3, v{vLane}
        v_lshl_add_u32 v{t[1]}, v{t[2]}, 3, v{t[1]}
        v_add_u32 v{vJa}, s{sXl}, v{t[1]}""".split('\n'): A(l.strip())
        emit_stream(setup)
        for i in range(5):
            p(f"s_add_u32 m0, s{sXl}, {1024*i}\ns_nop 0")
            p(f"buffer_load_dwordx4 v{vJ[i]}, s[{SRP}:{SRP+3}], s{sJb} offen lds", tag='rp')
        RR = ACC3
        grp = [('WAITVM', 'rp')]
        n = 0
        for nt in range(2):
            for u in range(3):
                off = nt*160 + u*64
                grp += [(f"ds_read_b64_tr_b16 v[{RR+4*n}:{RR+4*n+1}], v{vJa} offset:{off}", 'rpr'), (f"ds_read_b64_tr_b16 v[{RR+4*n+2}:{RR+4*n+3}], v{vJa} offset:{off+2560}", 'rpr')]
                n += 1
        i_rp = cfg.get('rp_at', 40)
        extra.append((i_rp, grp[:7])); extra.append((i_rp + 2, grp[7:]))
        st = []
        n = 0
        for nt in range(2):
            for u in range(3):
                skip = [("s_cmp_eq_u32 s3, 1", None), (f"s_cbranch_scc1 RPS{n}", None)]
                if u < 2:
                    st.append(skip + [(f"s_add_u32 s{sJb}, s{sJo}, {nt*148*2560 + u*1024}", None), (f"buffer_store_dwordx4 v[{RR+4*n}:{RR+4*n+3}], v{vL16}, s[{SW}:{SW+3}], s{sJb} offen sc1", 'nc'), (f"RPS{n}:", None)])
                else:
                    st.append(skip + [(f"v_lshrrev_b32 v{vJ[0]}, 5, v{vLane}", None), (f"v_and_b32 v{vJ[1]}, 15, v{vLane}", None), (f"v_lshl_add_u32 v{vJ[0]}, v{vJ[0]}, 4, v{vJ[1]}", None),
                               (f"v_lshlrev_b32 v{vJ[0]}, 4, v{vJ[0]}", None), (f"s_add_u32 s{sJb}, s{sJo}, {nt*148*2560 + 2048}", None),
                               (f"s_mov_b32 exec_lo, 0xffff", None), (f"s_mov_b32 exec_hi, 0xffff", None),
                               (f"buffer_store_dwordx4 v[{RR+4*n}:{RR+4*n+3}], v{vJ[0]}, s[{SW}:{SW+3}], s{sJb} offen sc1", 'nc'), (f"s_mov_b64 exec, -1", None), (f"RPS{n}:", None)])
                n += 1
        st[0] = [('WAITLG', 'rpr')] + st[0]
        for k, g in enumerate(st): extra.append((i_rp + 8 + 2*k, g))
    emit_stream(norm_stream(0))
    p.waitvm('w0')
    p("s_barrier")
    q = dict(dma=[(l, 'w2') for l in wdma(2)] + ([(l, 'w3') for l in wdma(3)] if DBL else []), norm=[], epi=[], extra=extra, next_dma=0)
    if cfg.get('nodma'): q['dma'] = []
    for j in range(D): emit_stream(tr_reads(j), tag=f'f{j}')
    n1 = 320
    stamp('main start')
    main(0, n1, q)
    stamp('pass1 end')
    q['epi'] += [(n1 + 1, l) for l in glu_stream(0, 1, sHoff[0])]
    q['epi'] += [(n1 + 1, l) for l in glu_stream(2, 3, sHoff[1])]
    q['epi'] += [(n1 + 1, l) for l in glu_stream(4, 5, sHoff[2])]
    nsplit = cfg.get('nsplit', n1 + 90)
    main(n1, nsplit, q)
    import copy
    p(f"s_cmp_lg_u32 s{sVar}, 0\ns_cbranch_scc1 K1_VARB")
    p.save('fork')
    for var in (0, 1):
        qq = copy.deepcopy(q)
        if var == 1:
            p("K1_VARB:")
            p.restore('fork')
            qq['epi'] += [(nsplit, l) for l in qkv_stream(accA(6), True, sQoff[0])]
            qq['epi'] += [(nsplit, l) for l in qkv_stream(accA(7), True, sQoff[1])]
        else:
            qq['epi'] += [(nsplit, l) for l in glu_stream(6, 7, sHoff[3])]
        main(nsplit, NF, qq)
        assert not qq['dma'] and not qq['norm'] and not qq['extra']
        left = [l for (_, l) in qq['epi']]
        if cfg.get('verbose'): print(f"; variant {var}: {len(left)} epilogue instrs left after main loop")
        n0 = nst[0]
        stamp('mfma done' if var == 0 else None)
        emit_stream(left)
        for j in range(3): emit_stream(qkv_stream(ACC3 + 16*j, False, sQoff[2 + j]))
        if prof:
            stamp('issued' if var == 0 else None)
            p("s_waitcnt vmcnt(0) lgkmcnt(0)")
            stamp('drained' if var == 0 else None)
            p(f"s_memrealtime s[{SP[nst[0]]}:{SP[nst[0]]+1}]\ns_waitcnt lgkmcnt(0)")
            vals = [SP[nst[0]]] + SP[:nst[0]]
            for n in range(16): p(f"v_mov_b32 v{100+n}, s{vals[n]}" if n < len(vals) else f"v_mov_b32 v{100+n}, 0")
            p(f"s_lshl_b32 s{sT}, s2, 2\ns_add_u32 s{sT}, s{sT}, s{sW}\ns_lshl_b32 s{sT}, s{sT}, 6\ns_add_u32 s{sT}, s{sT}, {WS_PROF}\nv_mov_b32 v116, 0\ns_mov_b64 exec, 1")
            for n in range(4): p(f"buffer_store_dwordx4 v[{100+4*n}:{103+4*n}], v116, s[{SW}:{SW+3}], s{sT} offen offset:{16*n}")
        nst[0] = n0
        p("s_endpgm")
    p("K1_END:")
    return p
```

```python
from asmlib import Prog
from k1 import srd, WS_QKV, WS_H, WS_O, WS_OT, WS_FLAG, WS_SIZE, WS_PROF

G_WO = 10 * 2560
G_LDS = G_WO + 2560
T_BASE = 4 * G_LDS
WS_WF = 20 << 20; WS_SIZE2 = 24 << 20
PS = 4096 + 32
KP = T_BASE
VP = KP + 6 * PS
SYNC = VP + 6 * PS + 64
K2_LDS = SYNC + 64
WS_PROF2 = (19 << 20) + (640 << 10)
NEG = 0xc7000000
C_SC = 1.4426950408889634 / (20 ** 0.5)

def gen_k2(cfg):
    p = Prog()
    prof = cfg.get('prof', 0)
    SXS, SWD, SWO, SWS, SOUT = 4, 8, 12, 16, 20
    sW, sMt, sNt, sHd, sM = 32, 33, 34, 35, 36
    sT, sT2, sT3 = 37, 38, 39
    sRot = 31
    SP = [88, 90, 92, 94, 96, 98, 100, 74, 76, 78, 80, 82, 84, 86]
    nst = [0]
    names = cfg.setdefault('_names2', [])
    def stamp(name=None):
        if not prof: return
        i = nst[0]; nst[0] += 1
        p(f's_memtime s[{SP[i]}:{SP[i]+1}]' if i else 's_memrealtime s[88:89]')
        if name: names.append(name)
    def prof_end(role):
        if not prof: return
        p("s_waitcnt vmcnt(0) lgkmcnt(0)")
        stamp('drained' if role == 'G' else None)
        k = nst[0]
        p(f"s_memrealtime s[{SP[k]}:{SP[k]+1}]\ns_waitcnt lgkmcnt(0)")
        vals = [SP[k]] + SP[:k]
        for n in range(16): p(f"v_mov_b32 v{100+n}, s{vals[n]}" if n < len(vals) else f"v_mov_b32 v{100+n}, 0")
        off = WS_PROF2 + (65536 if role == 'T' else 0)
        p(f"s_lshl_b32 s{sT}, s2, 2\ns_and_b32 s{sT2}, s{sW}, 3\ns_add_u32 s{sT}, s{sT}, s{sT2}\ns_lshl_b32 s{sT}, s{sT}, 6\ns_add_u32 s{sT}, s{sT}, {off}\nv_mov_b32 v116, 0\ns_mov_b64 exec, 1")
        for n in range(4): p(f"buffer_store_dwordx4 v[{100+4*n}:{103+4*n}], v116, s[{SWS}:{SWS+3}], s{sT} offen offset:{16*n}")
    vLane = 1
    stamp(); stamp()
    p(f"""
    s_cmp_ge_u32 s2, 256
    s_cbranch_scc1 K2_END
    s_load_dwordx2 s[62:63], s[0:1], 0
    s_load_dwordx2 s[64:65], s[0:1], 16
    s_load_dwordx4 s[68:71], s[0:1], 48
    s_load_dwordx2 s[66:67], s[0:1], 72
    v_and_b32 v{vLane}, 63, v0
    v_lshrrev_b32 v2, 6, v0
    s_nop 0
    v_readfirstlane_b32 s{sW}, v2
    s_and_b32 s{sT}, s2, 7
    s_lshr_b32 s{sT2}, s2, 3
    """)
    if cfg.get('map', 0) == 0:
        p(f"""
        s_lshl_b32 s{sHd}, s{sT}, 2
        s_and_b32 s{sT3}, s{sT2}, 3
        s_add_u32 s{sHd}, s{sHd}, s{sT3}
        s_lshr_b32 s{sM}, s{sT2}, 2
        s_lshr_b32 s{sMt}, s{sT}, 1
        s_lshl_b32 s{sMt}, s{sMt}, 3
        s_and_b32 s{sT3}, s{sT2}, 7
        s_add_u32 s{sMt}, s{sMt}, s{sT3}
        s_and_b32 s{sNt}, s{sT}, 1
        s_lshl_b32 s{sNt}, s{sNt}, 2
        s_lshr_b32 s{sRot}, s{sT2}, 3
        s_add_u32 s{sNt}, s{sNt}, s{sRot}
        s_mul_i32 s{sRot}, s{sRot}, {cfg.get('rn', 7)}
        s_mul_i32 s{sT3}, s{sT3}, {cfg.get('rm', 3)}
        s_add_u32 s{sRot}, s{sRot}, s{sT3}
        """)
    else:
        p(f"""
        s_mov_b32 s{sHd}, s{sT2}
        s_mov_b32 s{sM}, s{sT}
        s_and_b32 s{sT3}, s{sT2}, 3
        s_lshl_b32 s{sMt}, s{sT}, 2
        s_add_u32 s{sMt}, s{sMt}, s{sT3}
        s_lshr_b32 s{sNt}, s{sT2}, 2
        s_mul_i32 s{sRot}, s{sNt}, {cfg.get('rn', 3)}
        s_mul_i32 s{sT3}, s{sT3}, {cfg.get('rm', 7)}
        s_add_u32 s{sRot}, s{sRot}, s{sT3}
        """)
    p(f"""
    s_cmp_ge_u32 s{sRot}, 27
    s_cselect_b32 s{sT3}, 27, 0
    s_sub_u32 s{sRot}, s{sRot}, s{sT3}
    s_cmp_ge_u32 s{sRot}, 27
    s_cselect_b32 s{sT3}, 27, 0
    s_sub_u32 s{sRot}, s{sRot}, s{sT3}
    s_waitcnt lgkmcnt(0)
    """)
    srd(p, SWS, 66, 67, WS_SIZE2)
    if cfg.get('pf2', 1):
        p(f"""
        s_getpc_b64 s[86:87]
        K2_PFB:
        s_lshr_b32 s{sT}, s2, 3
        s_lshl_b32 s{sT}, s{sT}, 3
        s_add_u32 s{sT}, s{sT}, s{sW}
        s_lshl_b32 s{sT}, s{sT}, 7
        s_min_u32 s{sT}, s{sT}, TEXT_END-K2_PFB-4
        v_mov_b32 v3, s{sT}
        s_mov_b64 exec, 1
        global_load_dword v0, v3, s[86:87]
        s_mov_b64 exec, -1
        """, tag='pf')
    p(f"s_cmp_ge_u32 s{sW}, 4\ns_cbranch_scc1 K2_T")
    p.save('fork')
    vL16, vL16b, vU2, vOT = 2, 3, 4, 5
    vRow = [6, 7, 8]
    vSt, vLin, vLu2 = 9, 10, 11
    vT = list(range(12, 28)); vX = 28
    LA = 3; NS = 4
    U2R = 38
    ACT0 = 52; XR = 84; ACC = 96
    sLds, sWo, sAo, sFlag, sXo, sA1, sWb = 40, 41, 42, 46, 47, 48, 43
    sMlo, sMhi = 50, 52
    p(f"""
    s_mul_i32 s{sT}, s{sNt}, 148
    s_mul_i32 s{sT2}, s{sW}, 27
    s_add_u32 s{sT}, s{sT}, s{sT2}
    s_mul_i32 s{sWo}, s{sT}, 2560
    s_add_u32 s{sWo}, s{sWo}, {WS_WF}
    s_mul_i32 s{sAo}, s{sMt}, {2*108*1024}
    s_lshl_b32 s{sT2}, s{sT2}, 10
    s_add_u32 s{sAo}, s{sAo}, s{sT2}
    s_add_u32 s{sAo}, s{sAo}, {WS_H}
    v_lshlrev_b32 v{vL16}, 4, v{vLane}
    v_add_u32 v{vL16b}, {108*1024}, v{vL16}
    v_lshrrev_b32 v{vT[0]}, 5, v{vLane}
    v_and_b32 v{vT[1]}, 15, v{vLane}
    v_lshl_add_u32 v{vT[2]}, v{vT[0]}, 4, v{vT[1]}
    v_lshlrev_b32 v{vT[2]}, 4, v{vT[2]}
    v_bfe_u32 v{vT[3]}, v{vLane}, 4, 1
    v_mul_u32_u24 v{vT[3]}, 2560, v{vT[3]}
    v_add_u32 v{vU2}, v{vT[2]}, v{vT[3]}
    """)
    sw = f"s[{SWS}:{SWS+3}]"
    def h_loads(ki):
        if cfg.get('noact') and ki >= LA: return []
        b = 8 * (ki % NS); r = ACT0 + 8 * (ki % NS); tg = f'k{ki}'
        L = [(f"buffer_load_dwordx4 a[{b}:{b+3}], v{vL16}, {sw}, s{sWo} offen", tg),
             (f"buffer_load_dwordx4 v[{r}:{r+3}], v{vL16}, {sw}, s{sAo} offen", tg),
             (f"buffer_load_dwordx4 v[{r+4}:{r+7}], v{vL16b}, {sw}, s{sAo} offen", tg),
             (f"buffer_load_dwordx4 a[{b+4}:{b+7}], v{vL16}, {sw}, s{sWo} offen offset:1024", tg)]
        if ki % 2 == 0:
            u = U2R + 4 * ((ki // 2) % 3)
            L.append((f"buffer_load_dwordx4 v[{u}:{u+3}], v{vU2}, {sw}, s{sWo} offen offset:2048", tg))
        L.append((f"s_add_u32 s{sWo}, s{sWo}, 2560\ns_add_u32 s{sAo}, s{sAo}, 1024", None))
        return L
    def g_tables():
        srd(p, SXS, 62, 63, 2048 * 1280)
        srd(p, SOUT, 70, 71, 2048 * 1280)
        p(f"""
        s_mul_i32 s{sLds}, s{sW}, {G_LDS}
        v_add_u32 v{vLin}, s{sLds}, v{vL16}
        v_add_u32 v{vLu2}, s{sLds}, v{vT[2]}
        v_and_b32 v{vT[1]}, 31, v{vLane}
        v_mul_u32_u24 v{vT[2]}, 80, v{vT[1]}
        v_lshl_add_u32 v{vT[2]}, v{vT[0]}, 3, v{vT[2]}
        s_add_u32 s{sT}, s{sLds}, {G_WO}
        v_add_u32 v{vSt}, s{sT}, v{vT[2]}
        v_lshlrev_b32 v{vT[3]}, 3, v{vT[1]}
        v_lshl_add_u32 v{vOT}, v{vT[0]}, 8, v{vT[3]}
        s_mov_b32 s{sMlo}, 0x0000ffff
        s_mov_b32 s{sMlo+1}, 0x0000ffff
        s_mov_b32 s{sMhi}, 0xffff0000
        s_mov_b32 s{sMhi+1}, 0xffff0000
        """)
        for i in range(3):
            p(f"""
            v_add_u32 v{vT[0]}, {64*i}, v{vLane}
            v_min_u32 v{vT[0]}, 159, v{vT[0]}
            v_mul_u32_u24 v{vT[1]}, 13108, v{vT[0]}
            v_lshrrev_b32 v{vT[1]}, 16, v{vT[1]}
            v_mul_u32_u24 v{vT[2]}, 5, v{vT[1]}
            v_sub_u32 v{vT[2]}, v{vT[0]}, v{vT[2]}
            v_mul_u32_u24 v{vT[1]}, 1280, v{vT[1]}
            v_lshl_add_u32 v{vRow[i]}, v{vT[2]}, 4, v{vT[1]}
            """)
        p(f"""
        s_lshr_b32 s{sT}, s{sW}, 1
        s_lshl_b32 s{sT2}, s{sMt}, 1
        s_add_u32 s{sT}, s{sT}, s{sT2}
        s_mul_i32 s{sXo}, s{sT}, {32*1280}
        s_mul_i32 s{sT}, s{sNt}, 160
        s_add_u32 s{sXo}, s{sXo}, s{sT}
        s_and_b32 s{sT}, s{sW}, 1
        s_mul_i32 s{sT}, s{sT}, 80
        s_add_u32 s{sXo}, s{sXo}, s{sT}
        s_mul_i32 s{sT}, s{sNt}, 148
        s_mul_i32 s{sT2}, s{sW}, 10
        s_add_u32 s{sT}, s{sT}, s{sT2}
        s_add_u32 s{sT}, s{sT}, 108
        s_mul_i32 s{sOo}, s{sT}, 2560
        s_add_u32 s{sOo}, s{sOo}, {WS_WF}
        """)
    sOo = 49
    if cfg.get('tfirst', 1): g_tables()
    if cfg.get('tsync', 1): p("s_barrier")
    for ki in range(LA):
        for (l, tg) in h_loads(ki): p(l, tag=tg)
    stamp('G loads issued')
    if not cfg.get('tfirst', 1): g_tables()
    def wo_dma(n):
        L = []
        if n % 4 == 0:
            L.append((f"s_add_u32 m0, s{sLds}, {n*1024}", None))
            if n: L.append((f"s_add_u32 s{sOo}, s{sOo}, 4096", None))
        L.append((f"buffer_load_dwordx4 v{vL16}, {sw}, s{sOo} offen offset:{(n%4)*1024} lds", 'wo'))
        return L
    acc = lambda tb, u: f"v[{ACC+16*(3*tb+u)}:{ACC+16*(3*tb+u)+15}]"
    barrier_at = cfg.get('gbar', 1)
    WO0 = cfg.get('wo0', 1)
    nwo = 0
    osc = ' sc1' if cfg.get('osc1', 1) else ''
    OH = ['a56', 'v84', 'v76', 'a24', 'v52', 'a0', 'v60', 'a8', 'v68', 'a16']
    def oreg(j, i, n): return f"{OH[j][0]}[{int(OH[j][1:])+i}:{int(OH[j][1:])+i+n-1}]"
    sOa = [54, 55]; sOt = [56, 57]
    def o_loads(j):
        L = []
        if j < 8:
            for tb in range(2):
                L.append((f"buffer_load_dwordx4 {oreg(j, 4*tb, 4)}, v{vL16}, {sw}, s{sOa[tb]} offen offset:{(j % 4)*1024}{osc}", f'o{j}'))
            if j == 3: L.append((f"s_add_u32 s{sOa[0]}, s{sOa[0]}, 4096\ns_add_u32 s{sOa[1]}, s{sOa[1]}, 4096", None))
        else:
            g = j - 8
            for tb in range(2):
                for e in range(2):
                    L.append((f"buffer_load_dwordx2 {oreg(j, 4*tb + 2*e, 2)}, v{vOT}, {sw}, s{sOt[tb]} offen offset:{(4*g + 2*e)*256}{osc}", f'o{j}'))
        return L
    WR = 32
    def wo_reads(j):
        b = WR + 12 * (j % 2)
        return [(f"ds_read_b128 a[{b}:{b+3}], v{vLin} offset:{j*2560}", f'wr{j}'),
                (f"ds_read_b128 a[{b+4}:{b+7}], v{vLin} offset:{j*2560 + 1024}", f'wr{j}'),
                (f"ds_read_b128 a[{b+8}:{b+11}], v{vLu2} offset:{j*2560 + 2048}", f'wr{j}')]
    PK = cfg.get('PK', 24); assert PK == 24
    vFl = vT[9]; vFa = vT[8]
    def poll_setup():
        p(f"""
        s_lshl_b32 s{sT}, s{sMt}, 6
        s_lshl_b32 s{sT2}, s{sW}, 3
        s_add_u32 s{sT}, s{sT}, s{sT2}
        s_lshl_b32 s{sOa[0]}, s{sT}, 10
        s_add_u32 s{sOa[0]}, s{sOa[0]}, {WS_O}
        s_add_u32 s{sOa[1]}, s{sOa[0]}, {32*1024}
        s_lshl_b32 s{sOt[0]}, s{sT}, 8
        s_add_u32 s{sOt[0]}, s{sOt[0]}, {WS_OT}
        s_add_u32 s{sOt[1]}, s{sOt[0]}, {32*256}
        s_lshl_b32 s{sFlag}, s{sMt}, 7
        s_lshl_b32 s{sT}, s{sW}, 5
        s_add_u32 s{sFlag}, s{sFlag}, s{sT}
        s_add_u32 s{sFlag}, s{sFlag}, {WS_FLAG}
        v_and_b32 v{vFa}, 7, v{vLane}
        v_lshlrev_b32 v{vFa}, 2, v{vFa}
        s_mov_b32 s{sT3}, 200000
        """)
    for ki in range(27):
        b = 8 * (ki % NS); r = ACT0 + 8 * (ki % NS)
        if ki == barrier_at and not cfg.get('tsync', 1): p("s_barrier")
        if cfg.get('kst') and ki in (2, 8, 14, 20): stamp(f'k{ki}')
        q = h_loads(ki + LA) if ki + LA < 27 else []
        ex = []
        if ki >= WO0:
            for _ in range(cfg.get('wor', 2)):
                if nwo < 25: ex += wo_dma(nwo); nwo += 1
        if ki == 6:
            ex += [(f"buffer_load_dwordx4 v[{XR+4*i}:{XR+4*i+3}], v{vRow[i]}, s[{SXS}:{SXS+3}], s{sXo} offen", 'xr') for i in range(3)]
        if ki == 12:
            ex += [(f"ds_write_b128 v{vLin}, v[{XR+4*i}:{XR+4*i+3}] offset:{G_WO + 1024*i}", 'xw') for i in range(2)]
            ex += [(f"s_mov_b32 exec_hi, 0\nds_write_b128 v{vLin}, v[{XR+8}:{XR+11}] offset:{G_WO + 2048}\ns_mov_b64 exec, -1", 'xw')]
        if ki == 13:
            ex += [(f"ds_read_b64 v[{vX+2*i}:{vX+2*i+1}], v{vSt} offset:{16*i}", 'xd') for i in range(5)]
        if ki == PK - cfg.get('early', 0):
            poll_setup()
            if not cfg.get('noT') and cfg.get('early', 0):
                ex += [(f"buffer_load_dword v{vFl}, v{vFa}, {sw}, s{sFlag} offen sc1", 'fl')]
        if ki == PK:
            stamp('G before poll')
            if not cfg.get('noT'):
                if cfg.get('early', 0):
                    p(f"v_cmp_ne_u32 vcc, 1, v{vFl}\ns_cbranch_vccz G_POLLED")
                p.save('poll')
                p("G_POLL:")
                p(f"""
                buffer_load_dword v{vFl}, v{vFa}, {sw}, s{sFlag} offen sc1
                s_sub_u32 s{sT3}, s{sT3}, 1
                s_waitcnt vmcnt(0)
                v_cmp_ne_u32 vcc, 1, v{vFl}
                s_cmp_eq_u32 s{sT3}, 0
                s_cbranch_scc1 G_POLLED
                s_cbranch_vccnz G_POLL
                """)
                p("G_POLLED:")
                p.restore('poll')
            stamp('G polled')
            p.waitvm('wo')
            ex += o_loads(0) + o_loads(1) + o_loads(2) + o_loads(3) + wo_reads(0) + wo_reads(1)
        if ki == PK + 1: ex += o_loads(4) + o_loads(5)
        if ki == PK + 2: ex += o_loads(6) + o_loads(7)
        q = q + ex
        p.waitvm(f'k{ki}')
        u2 = U2R + 4 * ((ki // 2) % 3); tq = vT[4 * (ki % 2): 4 * (ki % 2) + 4]
        m = sMlo if ki % 2 == 0 else sMhi
        if cfg.get('lfirst', 1):
            while q:
                l, tg = q.pop(0); p(l, tag=tg)
        for i in range(4): p(f"v_cndmask_b32 v{tq[i]}, 0, v{u2+i}, s[{m}:{m+1}]")
        for u in range(3):
            for tb in range(2):
                cin = "0" if ki == 0 else acc(tb, u)
                wsrc = f"a[{b+4*u}:{b+4*u+3}]" if u < 2 else f"v[{tq[0]}:{tq[3]}]"
                p(f"v_mfma_f32_32x32x16_bf16 {acc(tb,u)}, {wsrc}, v[{r+4*tb}:{r+4*tb+3}], {cin}")
                nq = 2 if (u, tb) != (2, 1) else 99
                while q and nq > 0:
                    l, tg = q.pop(0); p(l, tag=tg); nq -= 1 if ('buffer' in l or 'ds_' in l) else 0
    assert nwo == 25
    for (l, tg) in o_loads(8) + o_loads(9): p(l, tag=tg)
    stamp('G h done')
    for tb in range(2):
        c = ACC + 16 * (3*tb + 2)
        for i in range(8): p(f"v_add_f32 v{c+i}, v{c+i}, v{c+8+i}")
    for j in range(10):
        b = WR + 12 * (j % 2)
        p.waitvm(f'o{j}')
        for u in range(3):
            for tb in range(2):
                p(f"v_mfma_f32_32x32x16_bf16 {acc(tb,u)}, a[{b+4*u}:{b+4*u+3}], {oreg(j, 4*tb, 4)}, {acc(tb,u)}")
        if j + 2 < 10:
            for (l, tg) in wo_reads(j + 2): p(l, tag=tg)
    stamp('G main done')
    def greg(tb, a): return ACC + 16*(3*tb + a//4) + 4*(a % 4)
    for wv in range(4):
        if wv < 3: p(f"s_cmp_lg_u32 s{sW}, {wv}\ns_cbranch_scc1 G_RED{wv+1}")
        if wv == 0: p.save('red')
        for tb in range(2):
            for a in range(10):
                own = 2*tb + (1 if a >= 5 else 0)
                if own == wv: continue
                slot = ((own - wv) % 4 - 1) * 5 + a % 5
                r = greg(tb, a)
                p(f"ds_write_b128 v{vLin}, v[{r}:{r+3}] offset:{slot*1024}")
        p("s_waitcnt lgkmcnt(0)\ns_barrier")
        tbo, a0 = wv >> 1, 5 * (wv & 1)
        R = 12
        stg = [38 + 4*n for n in range(14)] + [12]
        n = 0
        for src in range(1, 4):
            sw_ = (wv + src) % 4
            rel = (wv - sw_) % 4
            p(f"v_add_u32 v{vT[4+src]}, {sw_*G_LDS}, v{vL16}")
            for i in range(5):
                p(f"ds_read_b128 v[{stg[n]}:{stg[n]+3}], v{vT[4+src]} offset:{((rel-1)*5 + i)*1024}"); n += 1
        for i in range(5):
            r = greg(tbo, a0 + i)
            x0, x1 = vX + 2*i, vX + 2*i + 1
            t = vT[8:12]
            p(f"""
            v_lshlrev_b32 v{t[0]}, 16, v{x0}
            v_and_b32 v{t[1]}, 0xffff0000, v{x0}
            v_lshlrev_b32 v{t[2]}, 16, v{x1}
            v_and_b32 v{t[3]}, 0xffff0000, v{x1}
            """)
            for e in range(4): p(f"v_add_f32 v{r+e}, v{r+e}, v{t[e]}")
        for src in range(3):
            for i in range(5):
                r = greg(tbo, a0 + i)
                for e in range(4): p(f"v_add_f32 v{r+e}, v{r+e}, v{stg[5*src+i]+e}")
                if src == 2:
                    p(f"""
                    v_cvt_pk_bf16_f32 v{r}, v{r}, v{r+1}
                    v_cvt_pk_bf16_f32 v{r+1}, v{r+2}, v{r+3}
                    ds_write_b64 v{vSt}, v[{r}:{r+1}] offset:{16*i}
                    """, tag='ow')
        p.waitlg('ow')
        for i in range(3): p(f"ds_read_b128 v[{48+4*i}:{51+4*i}], v{vLin} offset:{G_WO + 1024*i}")
        om = cfg.get('outmod', '')
        for i in range(2): p(f"buffer_store_dwordx4 v[{48+4*i}:{51+4*i}], v{vRow[i]}, s[{SOUT}:{SOUT+3}], s{sXo} offen {om}")
        p(f"s_mov_b32 exec_hi, 0\nbuffer_store_dwordx4 v[56:59], v{vRow[2]}, s[{SOUT}:{SOUT+3}], s{sXo} offen {om}")
        n0 = nst[0]
        if prof:
            p("s_mov_b64 exec, -1")
            stamp('G out issued' if wv == 0 else None)
            prof_end('G' if wv == 0 else 'G2')
            nst[0] = n0
        p("s_endpgm")
        if wv < 3:
            p(f"G_RED{wv+1}:")
            p.restore('red')
    p("K2_T:")
    p.restore('fork')
    nst[0] = 2
    tnames = []
    vKa, vVa, vQo, vHH = 2, 3, 4, 5
    vT = list(range(6, 16)); vQ = 16
    vMx, vMc, vDen = 28, 29, 30
    S0 = 48
    sTw, sKo, sMk = 40, 41, 42
    p(f"""
    s_sub_u32 s{sTw}, s{sW}, 4
    s_lshl_b32 s{sT}, s{sM}, 8
    s_sub_u32 s{sT}, s{sT}, 256
    s_lshl_b32 s{sT}, s{sT}, 3
    s_mul_i32 s{sT2}, s{sHd}, {5*16384}
    s_add_u32 s{sKo}, s{sT}, s{sT2}
    s_add_u32 s{sKo}, s{sKo}, {160*16384 + WS_QKV}
    v_lshlrev_b32 v{vT[0]}, 4, v{vLane}
    """)
    if cfg.get('noT') == 1:
        p("s_barrier\ns_endpgm")
    assert not (cfg.get('noT') == 2 and cfg.get('tsync', 1))
    p(f"s_lshl_b32 s{sT2}, s{sTw}, 10\ns_add_u32 s{sKo}, s{sKo}, s{sT2}")
    for kv in range(2):
        for G in range(5):
            base = (KP if kv == 0 else VP) + G * PS
            p(f"s_add_u32 m0, s{sT2}, {base}\ns_add_u32 s{sT}, s{sKo}, {kv*160*16384 + G*16384}")
            p(f"buffer_load_dwordx4 v{vT[0]}, s[{SWS}:{SWS+3}], s{sT} offen lds", tag='kv')
    vSy = 47
    if cfg.get('tsync', 1):
        p(f"""
        s_lshl_b32 s{sT}, s{sTw}, 2
        s_add_u32 s{sT}, s{sT}, {SYNC}
        v_mov_b32 v{vSy}, s{sT}
        v_mov_b32 v{vT[1]}, 0
        ds_write_b32 v{vSy}, v{vT[1]}
        s_waitcnt lgkmcnt(0)
        s_barrier
        """)
    if cfg.get('tprio', 2): p(f"s_setprio {cfg.get('tprio', 2)}")
    p(f"""
    v_lshrrev_b32 v{vHH}, 5, v{vLane}
    v_and_b32 v{vT[1]}, 31, v{vLane}
    v_lshlrev_b32 v{vT[2]}, 3, v{vT[1]}
    v_lshl_add_u32 v{vQo}, v{vHH}, 15, v{vT[2]}
    s_lshl_b32 s{sT}, s{sM}, 3
    s_lshl_b32 s{sT3}, s{sTw}, 1
    s_add_u32 s{sT}, s{sT}, s{sT3}
    s_lshl_b32 s{sT}, s{sT}, 8
    s_mul_i32 s{sT3}, s{sHd}, {5*16384}
    s_add_u32 s{sT}, s{sT}, s{sT3}
    s_add_u32 s{sT}, s{sT}, {WS_QKV}
    """)
    for qb in range(2):
        q = vQ + 6*qb
        p(f"""
        s_add_u32 s{sT3}, s{sT}, {qb*256}
        buffer_load_dwordx2 v[{q}:{q+1}], v{vQo}, s[{SWS}:{SWS+3}], s{sT3} offen
        s_add_u32 s{sT3}, s{sT}, {qb*256 + 16384}
        buffer_load_dwordx2 v[{q+2}:{q+3}], v{vQo}, s[{SWS}:{SWS+3}], s{sT3} offen
        s_add_u32 s{sT3}, s{sT}, {qb*256 + 4*16384}
        buffer_load_dwordx2 v[{q+4}:{q+5}], v{vT[2]}, s[{SWS}:{SWS+3}], s{sT3} offen
        """)
    vPa, vPi, vPd = 44, 45, 46
    P = cfg.get('P', 4); nW = (20 * P + 7) // 8; nA = 4 * P; NPF = (27 + P - 1) // P
    assert nW + nA <= 64
    t = vT[3:8]
    if cfg.get('pft', 0):
        p(f"""
        s_and_b32 s{sT}, s{sMt}, 7
        s_mul_i32 s{sT}, s{sT}, {nW}
        v_add_u32 v{t[0]}, s{sT}, v{vLane}
        v_min_u32 v{t[0]}, {20*P - 1}, v{t[0]}
        v_lshlrev_b32 v{t[0]}, 7, v{t[0]}
        s_mul_i32 s{sT}, s{sNt}, 148
        s_mul_i32 s{sT3}, s{sTw}, 27
        s_add_u32 s{sT}, s{sT}, s{sT3}
        s_mul_i32 s{sT}, s{sT}, 2560
        s_add_u32 s{sT}, s{sT}, {WS_WF}
        v_add_u32 v{t[0]}, s{sT}, v{t[0]}
        v_subrev_u32 v{t[1]}, {nW}, v{vLane}
        v_cmp_le_i32 vcc, {2*P}, v{t[1]}
        v_cndmask_b32 v{t[2]}, 0, 1, vcc
        v_mul_u32_u24 v{t[3]}, {2*P}, v{t[2]}
        v_sub_u32 v{t[1]}, v{t[1]}, v{t[3]}
        s_and_b32 s{sT}, s{sNt}, 3
        s_mul_i32 s{sT}, s{sT}, {2*P}
        v_add_u32 v{t[1]}, s{sT}, v{t[1]}
        v_lshlrev_b32 v{t[1]}, 7, v{t[1]}
        v_mul_u32_u24 v{t[2]}, {108*1024}, v{t[2]}
        v_add_u32 v{t[1]}, v{t[1]}, v{t[2]}
        s_mul_i32 s{sT}, s{sMt}, {2*108*1024}
        s_lshl_b32 s{sT3}, s{sT3}, 10
        s_add_u32 s{sT}, s{sT}, s{sT3}
        s_add_u32 s{sT}, s{sT}, {WS_H}
        v_add_u32 v{t[1]}, s{sT}, v{t[1]}
        v_cmp_gt_u32 vcc, {nW}, v{vLane}
        v_cndmask_b32 v{vPa}, v{t[1]}, v{t[0]}, vcc
        v_mov_b32 v{t[0]}, {P*2560}
        v_mov_b32 v{t[1]}, {P*1024}
        v_cndmask_b32 v{vPi}, v{t[1]}, v{t[0]}, vcc
        s_bfm_b64 s[24:25], {nW + nA}, 0
        """)
    npf = [0]
    def pf(n=1):
        if not cfg.get('pft', 0): return
        for _ in range(n):
            j = npf[0]
            if j < NPF:
                if j >= cfg.get('pf0', 1):
                    p(f"s_mov_b64 exec, s[24:25]\nbuffer_load_dword v{vPd}, v{vPa}, s[{SWS}:{SWS+3}], 0 offen\ns_mov_b64 exec, -1", tag='pf')
                p(f"v_add_u32 v{vPa}, v{vPa}, v{vPi}")
            elif j == NPF and cfg.get('pfo', 1):
                p(f"""
                s_and_b32 s26, s{sMt}, 7
                s_mul_i32 s26, s26, 25
                v_add_u32 v{vPa}, s26, v{vLane}
                v_lshlrev_b32 v{vPa}, 7, v{vPa}
                s_mul_i32 s26, s{sNt}, 148
                s_mul_i32 s27, s{sTw}, 10
                s_add_u32 s26, s26, s27
                s_add_u32 s26, s26, 108
                s_mul_i32 s26, s26, 2560
                s_add_u32 s26, s26, {WS_WF}
                s_mov_b64 exec, 0x1ffffff
                buffer_load_dword v{vPd}, v{vPa}, s[{SWS}:{SWS+3}], s26 offen
                s_mov_b64 exec, -1
                """, tag='pf')
            npf[0] += 1
    pf(cfg.get('pfa', 3))
    if cfg.get('noT') == 2:
        pf(12)
        p("s_barrier\ns_waitcnt vmcnt(0)\ns_endpgm")
    p(f"""
    s_cmp_eq_u32 s{sM}, 0
    s_cselect_b32 s{sT}, 0xc700, 0
    s_cmp_lt_u32 s{sTw}, 2
    s_cselect_b32 s{sT}, s{sT}, 0
    v_mov_b32 v{vT[4]}, s{sT}
    v_mov_b32 v{vT[5]}, 0
    v_mov_b32 v{vT[6]}, s{sT}
    v_mov_b32 v{vT[7]}, 0
    v_add_u32 v{vT[3]}, s{sT2}, v{vT[0]}
    v_add_u32 v{vT[3]}, {KP + 5*PS}, v{vT[3]}
    ds_write_b128 v{vT[3]}, v[{vT[4]}:{vT[7]}]
    """)
    assert vT[4] % 2 == 0
    p(f"""
    v_mov_b32 v{vT[4]}, 0x3f80
    v_mov_b32 v{vT[6]}, 0x3f80
    ds_write_b128 v{vT[3]}, v[{vT[4]}:{vT[7]}] offset:{VP - KP}
    """)
    p(f"""
    v_mul_u32_u24 v{vT[3]}, {2*PS}, v{vHH}
    v_lshl_add_u32 v{vT[3]}, v{vT[1]}, 3, v{vT[3]}
    s_lshl_b32 s{sT}, s{sTw}, 9
    s_add_u32 s{sT}, s{sT}, {KP}
    v_add_u32 v{vKa}, s{sT}, v{vT[3]}
    v_mul_u32_u24 v{vT[3]}, {PS}, v{vHH}
    v_lshl_add_u32 v{vT[3]}, v{vT[1]}, 3, v{vT[3]}
    s_add_u32 s{sT3}, s{sT}, {4*PS}
    v_add_u32 v{vT[8]}, s{sT3}, v{vT[3]}
    """)
    vKt = vT[8]
    p(f"""
    v_bfe_u32 v{vT[3]}, v{vLane}, 4, 1
    v_and_b32 v{vT[4]}, 3, v{vLane}
    v_lshl_add_u32 v{vT[3]}, v{vT[3]}, 2, v{vT[4]}
    v_min_u32 v{vT[3]}, 5, v{vT[3]}
    v_mul_u32_u24 v{vT[3]}, {PS}, v{vT[3]}
    v_bfe_u32 v{vT[4]}, v{vLane}, 2, 2
    v_lshl_add_u32 v{vT[4]}, v{vHH}, 2, v{vT[4]}
    v_lshl_add_u32 v{vT[3]}, v{vT[4]}, 3, v{vT[3]}
    s_add_u32 s{sT3}, s{sT}, {VP - KP}
    v_add_u32 v{vVa}, s{sT3}, v{vT[3]}
    """)
    p(f"v_lshlrev_b32 v{vT[3]}, 2, v{vHH}\nv_sub_u32 v{vT[3]}, v{vT[1]}, v{vT[3]}")
    for r in range(16):
        p(f"v_cmp_le_i32 s[{sMk+2*r}:{sMk+2*r+1}], {8*(r>>2) + (r&3)}, v{vT[3]}")
    p(f"v_cmp_eq_u32 vcc, 1, v{vHH}")
    for qb in range(2):
        q = vQ + 6*qb
        p(f"v_mov_b32 v{vT[4]}, 0x3f80\nv_cndmask_b32 v{q+4}, v{q+4}, v{vT[4]}, vcc\nv_cndmask_b32 v{q+5}, v{q+5}, 0, vcc".replace(f"v_cndmask_b32 v{q+5}, v{q+5}, 0, vcc", f"v_mov_b32 v{vT[5]}, 0\nv_cndmask_b32 v{q+5}, v{q+5}, v{vT[5]}, vcc"))
    p(f"v_mov_b32 v{vT[9]}, {NEG}")
    vNeg = vT[9]
    p.waitvm('kv')
    if cfg.get('tsync', 1):
        p(f"""
        s_waitcnt lgkmcnt(0)
        v_mov_b32 v{vT[4]}, 1
        ds_write_b32 v{vSy}, v{vT[4]}
        v_mov_b32 v{vSy}, {SYNC}
        s_mov_b32 s{sT3}, 1000000
        """)
        p("T_SYNC:")
        p(f"""
        ds_read_b128 v[32:35], v{vSy}
        s_sub_u32 s{sT3}, s{sT3}, 1
        s_waitcnt lgkmcnt(0)
        v_and_b32 v32, v32, v33
        v_and_b32 v34, v34, v35
        v_and_b32 v32, v32, v34
        v_cmp_ne_u32 vcc, 1, v32
        s_cmp_eq_u32 s{sT3}, 0
        s_cbranch_scc1 T_SYNCED
        s_cbranch_vccnz T_SYNC
        """)
        p("T_SYNCED:")
    else:
        p("s_waitcnt lgkmcnt(0)\ns_barrier")
    stamp()
    if cfg.get('noT') == 3: p("s_endpgm")
    KF = 16
    VF = 40
    OA = 0
    St = lambda n: S0 + 16*n
    def kread(qb, n):
        b = KF + 8 * (n % 3)
        off = (qb + n) * 256
        p(f"ds_read_b64 a[{b}:{b+1}], v{vKa} offset:{off}\nds_read_b64 a[{b+2}:{b+3}], v{vKa} offset:{off+PS}\nds_read_b64 a[{b+4}:{b+5}], v{vKt} offset:{off}")
    def smfma(qb, n):
        b = KF + 8 * (n % 3); q = vQ + 6*qb; s = St(n)
        cin = "0"
        if n == 0 or n == 8:
            for r in range(16):
                m = f"s[{sMk+2*r}:{sMk+2*r+1}]"
                if n == 8: p(f"v_cndmask_b32 v{s+r}, v{vNeg}, 0, {m}")
                else: p(f"v_cndmask_b32 v{s+r}, 0, v{vNeg}, {m}")
            cin = f"v[{s}:{s+15}]"
        if cfg.get('nosm'): return
        p(f"v_mfma_f32_32x32x16_bf16 v[{s}:{s+15}], a[{b}:{b+3}], v[{q}:{q+3}], {cin}")
        p(f"v_mfma_f32_32x32x8_bf16 v[{s}:{s+15}], a[{b+4}:{b+5}], v[{q+4}:{q+5}], v[{s}:{s+15}]")
    def vread(qb, n):
        for j in range(2):
            b = VF + 4 * ((2*n + j) % 6)
            off = (qb + n) * 256 + j * 128
            p(f"ds_read_b64_tr_b16 a[{b}:{b+1}], v{vVa} offset:{off}\nds_read_b64_tr_b16 a[{b+2}:{b+3}], v{vVa} offset:{off+64}")
    sC = 39
    p(f"s_mov_b32 s{sC}, {C_SC!r}")
    for qb in range(2):
        kread(qb, 0); kread(qb, 1)
        for n in range(9):
            if n + 2 < 9: kread(qb, n + 2)
            smfma(qb, n)
            if qb == 0 and n % cfg.get('pfs', 2) == 0: pf(1)
        for n in range(9):
            s = St(n)
            for r in range(0, 16, 2):
                if n == 0 and r == 0: p(f"v_max_f32 v{vMx}, v{s}, v{s+1}")
                else: p(f"v_max3_f32 v{vMx}, v{vMx}, v{s+r}, v{s+r+1}")
        p(f"""
        v_mov_b32 v{vMc}, v{vMx}
        v_permlane32_swap_b32 v{vMx}, v{vMc}
        v_max_f32 v{vMx}, v{vMx}, v{vMc}
        v_mul_f32 v{vMc}, s{sC}, v{vMx}
        """)
        vread(qb, 0); vread(qb, 1)
        for n in range(9):
            s = St(n)
            if n + 2 < 9: vread(qb, n + 2)
            for r in range(16): p(f"v_fma_f32 v{s+r}, v{s+r}, s{sC}, -v{vMc}")
            for r in range(16 if not cfg.get('noexp') else 0): p(f"v_exp_f32 v{s+r}, v{s+r}")
            for r in range(8): p(f"v_cvt_pk_bf16_f32 v{s+r}, v{s+2*r}, v{s+2*r+1}")
            for j in range(2):
                b = VF + 4 * ((2*n + j) % 6)
                cin = "0" if (n == 0 and j == 0) else f"a[{OA}:{OA+15}]"
                p(f"v_mfma_f32_32x32x16_bf16 a[{OA}:{OA+15}], a[{b}:{b+3}], v[{s+4*j}:{s+4*j+3}], {cin}")
        o = list(range(32, 44))
        p(f"v_accvgpr_read_b32 v{vDen}, a{OA+12}")
        for r in range(12): p(f"v_accvgpr_read_b32 v{o[r]}, a{OA+r}")
        p(f"v_rcp_f32 v{vDen}, v{vDen}")
        for r in range(12): p(f"v_mul_f32 v{o[r]}, v{o[r]}, v{vDen}")
        for r in range(6): p(f"v_cvt_pk_bf16_f32 v{o[r]}, v{o[2*r]}, v{o[2*r+1]}")
        p(f"""
        s_lshl_b32 s{sT}, s{sM}, 3
        s_lshl_b32 s{sT2}, s{sTw}, 1
        s_add_u32 s{sT}, s{sT}, s{sT2}
        s_add_u32 s{sT}, s{sT}, {qb}
        s_lshl_b32 s{sT}, s{sT}, 5
        s_add_u32 s{sT}, s{sT}, s{sHd}
        s_lshl_b32 s{sT2}, s{sT}, 10
        s_add_u32 s{sT2}, s{sT2}, {WS_O}
        s_lshl_b32 s{sT}, s{sT}, 8
        s_add_u32 s{sT}, s{sT}, {WS_OT}
        v_lshlrev_b32 v{vT[0]}, 4, v{vLane}
        v_lshlrev_b32 v{vT[2]}, 3, v{vLane}
        buffer_store_dwordx4 v[{o[0]}:{o[3]}], v{vT[0]}, s[{SWS}:{SWS+3}], s{sT2} offen sc1
        s_mov_b32 exec_hi, 0
        buffer_store_dwordx2 v[{o[4]}:{o[5]}], v{vT[2]}, s[{SWS}:{SWS+3}], s{sT} offen sc1
        s_mov_b64 exec, -1
        """)
        stamp()
    p(f"""
    s_lshl_b32 s{sT}, s{sM}, 2
    s_add_u32 s{sT}, s{sT}, s{sTw}
    s_lshl_b32 s{sT}, s{sT}, 5
    s_add_u32 s{sT}, s{sT}, s{sHd}
    s_lshl_b32 s{sT}, s{sT}, 2
    s_add_u32 s{sT}, s{sT}, {WS_FLAG}
    v_mov_b32 v{vT[4]}, 1
    v_mov_b32 v{vT[5]}, 0
    s_waitcnt vmcnt(0)
    s_mov_b64 exec, 1
    buffer_store_dword v{vT[4]}, v{vT[5]}, s[{SWS}:{SWS+3}], s{sT} offen sc1
    """)
    if prof:
        p("s_mov_b64 exec, -1")
        while nst[0] < 2 + len(names) - 1: stamp()
        prof_end('T')
    p("s_endpgm")
    p("K2_END:")
    return p
```

```python
from asmlib import Prog
from k1 import srd, WS_QKV, WS_H, WS_O, WS_OT, WS_FLAG, WS_SIZE, WS_PROF, S_G, S_Q
WS_WF = 20 << 20
WS_SIZE2 = 24 << 20
SLOT = 32 * 1024; NSLOT = 4
XB = NSLOT * SLOT

def gen_k1(cfg):
    D = cfg.get('D', 5); RING = cfg.get('RING', 8); BUD = cfg.get('BUD', 4)
    ROT = cfg.get('rot', 1)
    p = Prog()
    prof = cfg.get('prof', 0)
    SP = [88, 90, 92, 94, 96, 98, 100, 74, 76, 78, 80, 82, 84, 86]
    nst = [0]
    def stamp(name=None):
        if not prof: return
        i = nst[0]; nst[0] += 1
        p(f's_memtime s[{SP[i]}:{SP[i]+1}]' if i else 's_memrealtime s[88:89]')
        if name: cfg.setdefault('_names', []).append(name)
    SX, SQ, SG, SU, SW, S1, S2 = 4, 8, 12, 16, 20, 24, 28
    sW, sMi, sNi, sVar = 32, 33, 34, 35
    sXoff = 36
    sB = [37, 38, 39, 40]
    sRG, sRX, sK23 = 41, 42, 43
    sB2 = [44, 45]
    sR2 = 46
    sWm, sW6 = 47, 48
    sMask, sT, sT2, sT3 = 49, 50, 51, 52
    sHoff = [53, 54, 55, 56]
    sQoff = [57, 58, 59, 60, 61]
    sXl, sNL2E, sRot = 62, 63, 64
    sWo = 2 * 0 + 86
    sM = [66, 68, 70, 72, 84]
    vLane, vXe, vXo = 1, 2, 3
    vXA = [4, 5, 6, 7]; vXB = [8, 9, 10, 11]
    vDe, vDo, vS = 12, 13, 14
    vU = [15, 16, 17, 18]
    vP01, vP23, vPq2, vPs2 = 19, 20, 21, 22
    vL16, vQst, vRstd, vNmr = 23, 24, 25, 26
    vT = list(range(28, 48))
    vHi = {vDe: 4, vDo: 5, vS: 6, vU[0]: 7, vU[1]: 8, vU[2]: 9, vU[3]: 10}
    vSum = 44; vOne = 40
    ACC3 = 48; X0 = 96; WR0 = 128
    GR = ACC3 + 32
    xr = lambda s: f"v[{X0+4*s}:{X0+4*s+3}]"
    stamp(); stamp()
    p(f"""
    s_cmp_ge_u32 s2, 256
    s_cbranch_scc1 K1_END
    s_load_dwordx4 s[76:79], s[0:1], 0
    s_load_dwordx4 s[80:83], s[0:1], 32
    s_load_dwordx2 s[84:85], s[0:1], 72
    s_load_dwordx2 s[74:75], s[0:1], 48
    s_load_dwordx2 s[{sWo}:{sWo+1}], s[0:1], 16
    v_and_b32 v{vLane}, 63, v0
    v_lshrrev_b32 v{vT[0]}, 6, v0
    s_and_b32 s{sT}, s2, 3
    v_readfirstlane_b32 s{sW}, v{vT[0]}
    s_lshl_b32 s{sT}, s{sT}, 2
    s_bfe_u32 s{sT2}, s2, 0x20003
    s_add_u32 s{sMi}, s{sT}, s{sT2}
    s_bfe_u32 s{sT}, s2, 0x10002
    s_lshl_b32 s{sT}, s{sT}, 3
    s_lshr_b32 s{sT3}, s2, 5
    s_add_u32 s{sNi}, s{sT}, s{sT3}
    """)
    if ROT == 2:
        p(f"s_mul_i32 s{sRot}, s{sT3}, 5\ns_lshr_b32 s{sRot}, s{sRot}, 2")
    elif ROT == 3:
        p(f"s_and_b32 s{sT}, s{sT2}, 1\ns_mul_i32 s{sT}, s{sT}, 5\ns_add_u32 s{sRot}, s{sT}, s{sT3}\ns_cmp_ge_u32 s{sRot}, 10\ns_cselect_b32 s{sT}, 10, 0\ns_sub_u32 s{sRot}, s{sRot}, s{sT}")
    elif ROT:
        p(f"""
        s_mul_i32 s{sT}, s{sT2}, 5
        s_lshr_b32 s{sT}, s{sT}, 1
        s_add_u32 s{sRot}, s{sT}, s{sT3}
        s_cmp_ge_u32 s{sRot}, 10
        s_cselect_b32 s{sT}, 10, 0
        s_sub_u32 s{sRot}, s{sRot}, s{sT}
        """)
    else:
        p(f"s_mov_b32 s{sRot}, 0")
    p(f"""
    s_lshr_b32 s{sVar}, s{sNi}, 3
    s_lshl_b32 s{sT}, s{sMi}, 2
    s_add_u32 s{sT}, s{sT}, s{sW}
    s_mul_i32 s{sXoff}, s{sT}, {32*1280}
    s_lshl_b32 s{sXl}, s{sW}, 13
    s_add_u32 s{sXl}, s{sXl}, {XB}
    s_lshr_b32 s{sT}, s{sW}, 1
    s_lshl_b32 s{sWm}, s{sT}, 13
    s_and_b32 s{sT}, s{sW}, 1
    s_lshl_b32 s{sT}, s{sT}, 12
    s_add_u32 s{sWm}, s{sWm}, s{sT}
    v_lshrrev_b32 v{vT[0]}, 3, v{vLane}
    v_mul_u32_u24 v{vT[0]}, 1280, v{vT[0]}
    v_lshrrev_b32 v{vT[1]}, 4, v{vLane}
    v_and_b32 v{vT[2]}, 7, v{vLane}
    v_xor_b32 v{vT[3]}, v{vT[2]}, v{vT[1]}
    v_xor_b32 v{vT[4]}, 4, v{vT[3]}
    v_lshl_add_u32 v{vXe}, v{vT[3]}, 4, v{vT[0]}
    v_lshl_add_u32 v{vXo}, v{vT[4]}, 4, v{vT[0]}
    s_lshl_b32 s{sT3}, s{sRot}, 7
    s_waitcnt lgkmcnt(0)
    """)
    srd(p, SX, 76, 77, 2048 * 1280)
    if cfg.get('dbgt'):
        p(f"""
        s_load_dwordx2 s[92:93], s[0:1], 64
        s_memrealtime s[90:91]
        s_waitcnt lgkmcnt(0)
        s_not_b32 s90, s90
        v_mov_b32 v{vT[8]}, s90
        v_mov_b32 v{vT[9]}, 0
        s_mov_b64 exec, 1
        global_atomic_umax v{vT[9]}, v{vT[8]}, s[92:93]
        s_mov_b64 exec, -1
        """, tag='pf')
    sXc = 65
    p(f"s_mov_b32 s{sXc}, s{sT3}")
    xplace = [('W', 0), ('W', 16384), ('W', SLOT), ('W', SLOT + 16384), ('W', 2*SLOT), ('W', 2*SLOT + 16384), ('W', 3*SLOT), ('W', 3*SLOT + 16384), ('X', 0), ('X', 4096)]
    def xdma(c):
        kind, off = xplace[c]
        out = [f"s_add_u32 s{sT2}, s{sXoff}, s{sXc}"]
        for i in range(4):
            out.append(f"s_add_u32 m0, s{sXl if kind == 'X' else sWm}, {off + i*1024}")
            out.append(f"s_add_u32 s{sT}, s{sT2}, {8*i*1280}")
            out.append(f"buffer_load_dwordx4 v{vXe if i%2==0 else vXo}, s[{SX}:{SX+3}], s{sT} offen lds")
        out += [f"s_add_u32 s{sXc}, s{sXc}, 128", f"s_cmp_ge_u32 s{sXc}, 1280", f"s_cselect_b32 s{sT}, 1280, 0", f"s_sub_u32 s{sXc}, s{sXc}, s{sT}"]
        return out
    def emit_stream(lines, tag=None):
        for l in lines: p(l, tag=tag)
    NF0 = cfg.get('nfirst', 3)
    for c in range(NF0): emit_stream(xdma(c), tag=f'x{c}')
    stamp('x issued')
    srd(p, SQ, 78, 79, 640 * S_Q)
    srd(p, SG, 80, 81, 640 * S_G)
    srd(p, SU, 82, 83, 640 * S_G)
    srd(p, SW, 84, 85, WS_SIZE2)
    if cfg.get('pf', 2) == 1:
        p(f"""
        s_getpc_b64 s[76:77]
        v_lshlrev_b32 v{vT[5]}, 7, v0
        s_and_b32 s76, s76, 0xffffff00
        global_load_dword v27, v{vT[5]}, s[76:77]
        """, tag='pf')
    if cfg.get('pf', 2) >= 2:
        end = 'TEXT_END' if cfg.get('pf', 2) == 2 else 'K1_END'
        p(f"""
        s_getpc_b64 s[76:77]
        K1_PFB:
        s_lshr_b32 s{sT}, s2, 3
        s_lshl_b32 s{sT}, s{sT}, 2
        s_add_u32 s{sT}, s{sT}, s{sW}
        s_lshl_b32 s{sT}, s{sT}, 2
        s_mov_b32 s{sT2}, {end}-K1_PFB-4
        v_add_u32 v{vT[5]}, s{sT}, v{vLane}
        v_lshlrev_b32 v{vT[5]}, 7, v{vT[5]}
        v_min_u32 v{vT[5]}, s{sT2}, v{vT[5]}
        s_mov_b64 exec, 15
        global_load_dword v27, v{vT[5]}, s[76:77]
        s_mov_b64 exec, -1
        """, tag='pf')
    sPd, sPs = 66, 67
    sQd1, sQd2, sQs = 68, 69, 70
    p(f"""
    s_mul_i32 s{sT}, s{sNi}, 3
    s_add_u32 s{sT}, s{sT}, 8
    s_and_b32 s{sT2}, s{sT}, 1
    s_add_u32 s{sPd}, s{sT}, s{sT2}
    s_min_u32 s{sPd}, s{sPd}, 52
    s_xor_b32 s{sT2}, s{sT2}, 1
    s_lshl_b32 s{sT2}, s{sT2}, 1
    s_add_u32 s{sPs}, s{sT}, s{sT2}
    s_min_u32 s{sPs}, s{sPs}, 53
    s_lshl_b32 s{sT}, s{sNi}, 2
    s_add_u32 s{sT2}, s{sT}, 2
    s_cmp_eq_u32 s{sVar}, 0
    s_cselect_b32 s{sPd}, s{sT}, s{sPd}
    s_cselect_b32 s{sPs}, s{sT2}, s{sPs}
    """)
    p(f"""
    s_mul_i32 s{sT}, s{sNi}, 3
    s_mul_i32 s{sT2}, s{sNi}, 5
    s_sub_u32 s{sT2}, s{sT2}, 16
    s_cmp_eq_u32 s{sVar}, 0
    s_cselect_b32 s{sT}, s{sT}, s{sT2}
    s_cselect_b32 s{sT3}, 0, 2
    s_and_b32 s{sT2}, s{sT}, 1
    s_add_u32 s{sQd1}, s{sT}, s{sT2}
    s_add_u32 s{sQd2}, s{sQd1}, s{sT3}
    s_add_u32 s{sT3}, s{sT3}, 2
    s_cmp_eq_u32 s{sT2}, 0
    s_cselect_b32 s{sT3}, s{sT3}, 0
    s_add_u32 s{sQs}, s{sT}, s{sT3}
    s_min_u32 s{sQd1}, s{sQd1}, 58
    s_min_u32 s{sQd2}, s{sQd2}, 58
    s_min_u32 s{sQs}, s{sQs}, 59
    """)
    p(f"s_lshl_b32 s{sT3}, s{sMi}, 2\ns_add_u32 s{sT3}, s{sT3}, s{sW}\ns_mul_i32 s{sT}, s{sT3}, {54*2048}\ns_add_u32 s{sT}, s{sT}, {WS_H}")
    for j, (base, add) in enumerate(((sPd, 0), (sPd, 1), (sPs, 0), (sPs, 1))):
        p(f"s_add_u32 s{sT2}, s{base}, {add}\ns_min_u32 s{sT2}, s{sT2}, 53\ns_lshl_b32 s{sT2}, s{sT2}, 11\ns_add_u32 s{sHoff[j]}, s{sT2}, s{sT}")
    p(f"s_lshl_b32 s{sT}, s{sT3}, 8\ns_add_u32 s{sT}, s{sT}, {WS_QKV}")
    for j, (base, add) in enumerate(((sQd1, 0), (sQd1, 1), (sQd2, 0), (sQd2, 1), (sQs, 0))):
        p(f"s_add_u32 s{sT2}, s{base}, {add}\ns_lshl_b32 s{sT2}, s{sT2}, 17\ns_add_u32 s{sQoff[j]}, s{sT2}, s{sT}")
    sSp = 71
    p(f"""
    s_and_b32 s{sT}, s{sW}, 1
    s_and_b32 s{sSp}, s{sT}, s{sVar}
    s_cmp_eq_u32 s{sT}, 0
    s_cselect_b32 s{sT2}, s{sPd}, s{sPs}
    s_lshl_b32 s{sT2}, s{sT2}, 6
    s_lshr_b32 s{sT3}, s{sW}, 1
    s_mul_i32 s{sT}, s{sT3}, {16*S_G}
    s_add_u32 s{sT2}, s{sT2}, s{sT}
    s_mov_b32 s{sB[0]}, s{sT2}
    s_add_u32 s{sB[1]}, s{sT2}, {8*S_G}
    s_mov_b32 s{sB[2]}, s{sT2}
    s_add_u32 s{sB[3]}, s{sT2}, {8*S_G}
    s_lshl_b32 s{sT}, s{sQd1}, 6
    s_mul_i32 s{sT3}, s{sT3}, {16*S_Q}
    s_add_u32 s{sT}, s{sT}, s{sT3}
    s_add_u32 s{sT3}, s{sT}, {8*S_Q}
    s_cmp_eq_u32 s{sSp}, 1
    s_cselect_b32 s{sB[1]}, s{sT2}, s{sB[1]}
    s_cselect_b32 s{sB[2]}, s{sT}, s{sB[2]}
    s_cselect_b32 s{sB[3]}, s{sT3}, s{sB[3]}
    s_cselect_b32 s{S1}, s{SU}, s{SG}
    s_cselect_b32 s{S1+1}, s{SU+1}, s{SG+1}
    s_mov_b32 s{S1+2}, {640*S_G}
    s_mov_b32 s{S1+3}, 0x20000
    s_cselect_b32 s{S2}, s{SQ}, s{SU}
    s_cselect_b32 s{S2+1}, s{SQ+1}, s{SU+1}
    s_cselect_b32 s{S2+2}, s{SQ+2}, s{SU+2}
    s_mov_b32 s{S2+3}, 0x20000
    s_mov_b32 s{sK23}, {32*S_G}
    s_cselect_b32 s{sK23}, {32*S_Q}, s{sK23}
    s_mul_i32 s{sRG}, s{sRot}, {64*S_G}
    s_mul_i32 s{sRX}, s{sRot}, s{sK23}
    s_lshl_b32 s{sRX}, s{sRX}, 1
    """)
    for pr in range(cfg.get('wpf', 0)):
        t = vT
        p(f"""
        v_and_b32 v{t[0]}, 15, v{vLane}
        v_bfe_u32 v{t[1]}, v{vLane}, 4, 1
        v_lshl_add_u32 v{t[0]}, v{t[1]}, 5, v{t[0]}
        v_lshrrev_b32 v{t[1]}, 5, v{vLane}
        s_add_u32 s{sT}, s{sRot}, {2*pr}
        v_add_u32 v{t[1]}, s{sT}, v{t[1]}
        v_subrev_u32 v{t[2]}, 10, v{t[1]}
        v_min_u32 v{t[1]}, v{t[1]}, v{t[2]}
        v_lshl_add_u32 v{t[0]}, v{t[1]}, 6, v{t[0]}
        s_lshr_b32 s{sT}, s{sK23}, 5
        v_mul_u32_u24 v{t[1]}, {S_G}, v{t[0]}
        v_mul_u32_u24 v{t[2]}, s{sT}, v{t[0]}
        buffer_load_dword v27, v{t[1]}, s[{SG}:{SG+3}], s{sB[0]} offen
        buffer_load_dword v27, v{t[2]}, s[{S2}:{S2+3}], s{sB[2]} offen
        """, tag='pf')
    p(f"""
    s_and_b32 s{sT}, s{sW}, 1
    s_mul_i32 s{sT}, s{sT}, {32*S_Q}
    s_lshl_b32 s{sB2[0]}, s{sQd2}, 6
    s_add_u32 s{sB2[0]}, s{sB2[0]}, s{sT}
    s_lshl_b32 s{sB2[1]}, s{sQs}, 6
    s_add_u32 s{sB2[1]}, s{sB2[1]}, s{sT}
    s_lshr_b32 s{sT}, s{sW}, 1
    s_add_u32 s{sT}, s{sT}, s{sRot}
    s_cmp_ge_u32 s{sT}, 10
    s_cselect_b32 s{sT2}, 10, 0
    s_sub_u32 s{sT}, s{sT}, s{sT2}
    s_mul_i32 s{sR2}, s{sT}, {64*S_Q}
    s_mul_i32 s{sW6}, s{sW}, 6144
    s_mov_b32 s{sMask}, 0xffff0000
    s_mov_b32 s{sNL2E}, 0xbfb8aa3b
    """)
    t = vT
    p(f"""
    v_lshrrev_b32 v{t[0]}, 3, v{vLane}
    v_bfe_u32 v{t[1]}, v{vLane}, 4, 1
    v_lshlrev_b32 v{t[1]}, 2, v{t[1]}
    v_and_b32 v{t[2]}, 7, v{vLane}
    v_xor_b32 v{t[1]}, v{t[1]}, v{t[2]}
    v_lshlrev_b32 v{t[1]}, 4, v{t[1]}
    v_mul_u32_u24 v{t[2]}, {S_G}, v{t[0]}
    v_add_u32 v{t[2]}, v{t[2]}, v{t[1]}
    v_mul_u32_u24 v{vPq2}, {S_Q}, v{t[0]}
    v_add_u32 v{vPq2}, v{vPq2}, v{t[1]}
    v_bfe_u32 v{t[3]}, v{vLane}, 2, 2
    v_lshrrev_b32 v{t[4]}, 5, v{vLane}
    v_lshl_add_u32 v{t[3]}, v{t[4]}, 2, v{t[3]}
    v_bfe_u32 v{t[4]}, v{vLane}, 4, 1
    v_lshl_add_u32 v{t[3]}, v{t[4]}, 3, v{t[3]}
    v_and_b32 v{t[4]}, 3, v{vLane}
    v_lshlrev_b32 v{t[4]}, 4, v{t[4]}
    v_mul_u32_u24 v{t[5]}, {S_G}, v{t[3]}
    v_add_u32 v{t[5]}, v{t[5]}, v{t[4]}
    v_mul_u32_u24 v{vPs2}, {S_Q}, v{t[3]}
    v_add_u32 v{vPs2}, v{vPs2}, v{t[4]}
    s_cmp_eq_u32 s{sSp}, 1
    s_cselect_b64 vcc, -1, 0
    v_cndmask_b32 v{vP01}, v{t[2]}, v{t[5]}, vcc
    v_cndmask_b32 v{vP23}, v{t[2]}, v{vPq2}, vcc
    """)
    p(f"""
    v_lshrrev_b32 v{t[0]}, 5, v{vLane}
    v_bfe_u32 v{t[1]}, v{vLane}, 2, 2
    v_bfe_u32 v{t[2]}, v{vLane}, 4, 1
    v_lshlrev_b32 v{t[2]}, 5, v{t[2]}
    v_and_b32 v{t[3]}, 3, v{vLane}
    v_lshl_add_u32 v{t[2]}, v{t[3]}, 3, v{t[2]}
    v_lshl_add_u32 v{t[3]}, v{t[0]}, 3, v{t[1]}
    v_lshlrev_b32 v{t[3]}, 7, v{t[3]}
    v_bfe_u32 v{t[4]}, v{vLane}, 3, 1
    v_lshl_add_u32 v{t[3]}, v{t[4]}, 6, v{t[3]}
    v_add_u32 v{vDe}, v{t[3]}, v{t[2]}
    v_xor_b32 v{vDo}, 64, v{vDe}
    v_lshl_add_u32 v{t[3]}, v{t[0]}, 2, v{t[1]}
    v_lshl_add_u32 v{t[5]}, v{t[3]}, 6, v{t[2]}
    v_add_u32 v{vS}, 2048, v{t[5]}
    s_cmp_eq_u32 s{sVar}, 0
    s_cselect_b64 vcc, -1, 0
    v_add_u32 v{t[6]}, 4096, v{t[5]}
    v_add_u32 v{t[7]}, 4096, v{vDe}
    v_cndmask_b32 v{vU[0]}, v{t[6]}, v{t[7]}, vcc
    v_add_u32 v{t[6]}, 5120, v{t[5]}
    v_add_u32 v{t[7]}, 6144, v{vDe}
    v_cndmask_b32 v{vU[1]}, v{t[6]}, v{t[7]}, vcc
    v_add_u32 v{t[6]}, 6144, v{vDe}
    v_add_u32 v{t[7]}, 4096, v{vDo}
    v_cndmask_b32 v{vU[2]}, v{t[6]}, v{t[7]}, vcc
    v_add_u32 v{vU[3]}, 6144, v{vDo}
    v_lshlrev_b32 v{vL16}, 4, v{vLane}
    v_and_b32 v{t[1]}, 31, v{vLane}
    v_lshlrev_b32 v{t[2]}, 3, v{t[1]}
    v_lshl_add_u32 v{vQst}, v{t[0]}, 14, v{t[2]}
    """)
    p(f"v_bfe_u32 v{t[2]}, v{vLane}, 1, 3\nv_lshlrev_b32 v{t[3]}, 7, v{t[1]}")
    for jj in range(4):
        p(f"""
        v_add_u32 v{t[4]}, {2*jj}, v{t[0]}
        v_xor_b32 v{t[4]}, v{t[4]}, v{t[2]}
        v_lshl_add_u32 v{t[4]}, v{t[4]}, 4, v{t[3]}
        v_add_u32 v{vXA[jj]}, s{sXl}, v{t[4]}
        v_add_u32 v{vXB[jj]}, s{sWm}, v{t[4]}
        """)
    p(f"""
    v_and_b32 v{t[4]}, 7, v{vLane}
    v_bfe_u32 v{t[5]}, v{vLane}, 4, 1
    v_lshlrev_b32 v{t[5]}, 2, v{t[5]}
    v_cmp_eq_u32 vcc, v{t[4]}, v{t[5]}
    v_mov_b32 v{t[6]}, 0x3f803f80
    v_cndmask_b32 v{vOne}, 0, v{t[6]}, vcc
    v_mov_b32 v{vOne+1}, v{vOne}
    v_mov_b32 v{vOne+2}, v{vOne}
    v_mov_b32 v{vOne+3}, v{vOne}
    """)
    p(f"""
    v_mov_b32 v{t[0]}, 0
    v_mov_b32 v{t[1]}, 0
    v_mov_b32 v{t[2]}, 0
    v_mov_b32 v{t[3]}, 0
    v_mov_b32 v{t[4]}, 0
    s_lshl_b32 s{sT}, s2, 4
    s_add_u32 s{sT}, s{sT}, {WS_FLAG}
    s_mov_b64 exec, 1
    buffer_store_dwordx4 v[{t[0]}:{t[3]}], v{t[4]}, s[{SW}:{SW+3}], s{sT} offen sc1
    s_mov_b64 exec, -1
    """, tag='flagz')
    frags = []; chunks = []
    for c in range(10):
        chunks.append(dict(first=len(frags), pas=1))
        for sl in range(4):
            for u in range(8):
                blk = (len(chunks) - 1) % NSLOT * SLOT + sl * 8192
                va, o = {0: (vDe, 0), 1: (vDe, 2048), 2: (vDo, 0), 3: (vDo, 2048)}.get(u, (vU[u-4] if u >= 4 else None, 0))
                frags.append((1, u, 4*c + sl, len(chunks) - 1, va, blk + o))
    for c in range(5):
        chunks.append(dict(first=len(frags), pas=2))
        for sl in range(8):
            for u in range(3):
                blk = (len(chunks) - 1) % NSLOT * SLOT + sl * 3072
                frags.append((2, 8 + u, 8*c + sl, len(chunks) - 1, (vDe, vDo, vS)[u], blk))
    NF = len(frags)
    FOLD = cfg.get('fold', 1)
    vF = [vP01, vP23, vXe, vXo]
    def fold1():
        return [f"v_add_u32 v{vXe}, s{sB[2]}, v{vP23}", f"s_sub_u32 s{sT3}, s{sB[3]}, 1024", f"v_add_u32 v{vXo}, s{sT3}, v{vP23}",
                f"s_sub_u32 s{sT3}, s{sB[1]}, 1024", f"v_add_u32 v{vP23}, s{sT3}, v{vP01}", f"v_add_u32 v{vP01}, s{sB[0]}, v{vP01}"]
    def fold2():
        return [f"v_add_u32 v{vF[0]}, s{sB2[0]}, v{vPq2}", f"s_add_u32 s{sT3}, s{sB2[0]}, {8*S_Q - 1024}", f"v_add_u32 v{vF[1]}, s{sT3}, v{vPq2}",
                f"v_add_u32 v{vF[2]}, s{sB2[1]}, v{vPs2}"]
    def wdma(c):
        ch = chunks[c]; base = (c % NSLOT) * SLOT
        out = []
        if ch['pas'] == 1:
            for i in range(2):
                for d in range(4):
                    S = (SG, S1, S2, S2)[d]; va = vP01 if d < 2 else vP23
                    if FOLD:
                        if d % 2 == 0: out.append(f"s_add_u32 m0, s{sWm}, {base + i*16384 + d*1024}")
                        out.append(f"buffer_load_dwordx4 v{vF[d]}, s[{S}:{S+3}], s{sRG if d < 2 else sRX} offen offset:{1024*(d%2)} lds")
                    else:
                        out.append(f"s_add_u32 m0, s{sWm}, {base + i*16384 + d*1024}")
                        out.append(f"s_add_u32 s{sT3}, s{sB[d]}, s{sRG if d < 2 else sRX}")
                        out.append(f"buffer_load_dwordx4 v{va}, s[{S}:{S+3}], s{sT3} offen lds")
                if i == 0:
                    out.append(f"s_add_u32 s{sRG}, s{sRG}, {32*S_G}")
                    out.append(f"s_add_u32 s{sRX}, s{sRX}, s{sK23}")
            out += [f"s_add_u32 s{sRG}, s{sRG}, {32*S_G}", f"s_add_u32 s{sRX}, s{sRX}, s{sK23}",
                    f"s_cmp_ge_u32 s{sRG}, {640*S_G}", f"s_cselect_b32 s{sRG}, 0, s{sRG}", f"s_cselect_b32 s{sRX}, 0, s{sRX}"]
        else:
            if FOLD and c == 10: out += fold2()
            for i in range(2):
                if FOLD:
                    out.append(f"s_add_u32 m0, s{sW6}, {base + i*3072}")
                    out.append(f"buffer_load_dwordx4 v{vF[0]}, s[{SQ}:{SQ+3}], s{sR2} offen lds")
                    out.append(f"buffer_load_dwordx4 v{vF[1]}, s[{SQ}:{SQ+3}], s{sR2} offen offset:1024 lds")
                    out.append(f"s_add_u32 m0, s{sW6}, {base + i*3072 + 2048}")
                    out.append(f"buffer_load_dwordx4 v{vF[2]}, s[{SQ}:{SQ+3}], s{sR2} offen lds")
                    if i == 0: out.append(f"s_add_u32 s{sR2}, s{sR2}, {16*S_Q}")
                    continue
                for (va, b, extra, pos) in ((vPq2, sB2[0], 0, 0), (vPq2, sB2[0], 8*S_Q, 1024), (vPs2, sB2[1], 0, 2048)):
                    out.append(f"s_add_u32 m0, s{sW6}, {base + i*3072 + pos}")
                    out.append(f"s_add_u32 s{sT3}, s{b}, s{sR2}")
                    if extra + i*16*S_Q: out.append(f"s_add_u32 s{sT3}, s{sT3}, {extra + i*16*S_Q}")
                    out.append(f"buffer_load_dwordx4 v{va}, s[{SQ}:{SQ+3}], s{sT3} offen lds")
            adv = (112 if FOLD else 128) * S_Q
            out += [f"s_add_u32 s{sR2}, s{sR2}, {adv}", f"s_cmp_ge_u32 s{sR2}, {640*S_Q}", f"s_cselect_b32 s{sT3}, {640*S_Q}, 0", f"s_sub_u32 s{sR2}, s{sR2}, s{sT3}"]
        return out
    def stats_mfma(s, first):
        c0 = "0" if first else f"v[{GR}:{GR+15}]"
        c1 = "0" if first else f"v[{vSum}:{vSum+3}]"
        p(f"v_mfma_f32_32x32x16_bf16 v[{GR}:{GR+15}], {xr(s)}, {xr(s)}, {c0}")
        p(f"v_mfma_f32_16x16x32_bf16 v[{vSum}:{vSum+3}], v[{vOne}:{vOne+3}], {xr(s)}, {c1}")
    for c in range(10):
        p.waitvm(f'x{c}')
        if c == 0: stamp('x0 arrived')
        if c == 4: stamp('x4 arrived')
        kind, off = xplace[c]
        for jj in range(4):
            if kind == 'X': p(f"ds_read_b128 {xr(4*c+jj)}, v{vXA[jj]} offset:{off}", tag=f'xr{c}')
            else:
                if off >= 65536 and xplace[c-1][1] < 65536: p(f"v_add_u32 v{vXB[jj]}, 0x10000, v{vXB[jj]}")
                p(f"ds_read_b128 {xr(4*c+jj)}, v{vXB[jj]} offset:{off % 65536}", tag=f'xr{c}')
        if c + NF0 < 10: emit_stream(xdma(c + NF0), tag=f'x{c+NF0}')
        if c > 0:
            for jj in range(4): stats_mfma(4*(c-1)+jj, c == 1 and jj == 0)
        if c + NF0 == 9 + cfg.get('wdel', 0):
            p.waitlg('xr0'); p.waitlg('xr1')
            if FOLD: emit_stream(fold1())
            emit_stream(wdma(0), tag='w0')
        if c + NF0 == 10 + cfg.get('wdel', 0):
            p.waitlg('xr2'); p.waitlg('xr3')
            emit_stream(wdma(1), tag='w1')
    for jj in range(4): stats_mfma(36 + jj, False)
    stamp('x+stats')
    for va, hi in vHi.items(): p(f"v_add_u32 v{hi}, 0x10000, v{va}")
    for b, bit in enumerate((0, 1, 3, 4, 2)):
        p(f"v_bfe_u32 v{t[0]}, v{vLane}, {bit}, 1\nv_cmp_eq_u32 s[{sM[b]}:{sM[b]+1}], 1, v{t[0]}")
    G = lambda r: f"v{GR+r}"
    for i in range(8): p(f"v_cndmask_b32 v{t[i]}, {G(2*i)}, {G(2*i+1)}, s[{sM[0]}:{sM[0]+1}]")
    for i in range(4): p(f"v_cndmask_b32 v{t[i]}, v{t[2*i]}, v{t[2*i+1]}, s[{sM[1]}:{sM[1]+1}]")
    for i in range(2): p(f"v_cndmask_b32 v{t[i]}, v{t[2*i]}, v{t[2*i+1]}, s[{sM[2]}:{sM[2]+1}]")
    p(f"v_cndmask_b32 v{t[0]}, v{t[0]}, v{t[1]}, s[{sM[3]}:{sM[3]+1}]")
    p(f"""
    v_mov_b32 v{t[1]}, v{t[0]}
    v_permlane32_swap_b32 v{t[0]}, v{t[1]}
    v_cndmask_b32 v{t[0]}, v{t[0]}, v{t[1]}, s[{sM[4]}:{sM[4]+1}]
    v_mul_f32 v{t[2]}, {1.0/640!r}, v{vSum}
    v_mul_f32 v{t[0]}, {1.0/640!r}, v{t[0]}
    v_fma_f32 v{t[0]}, -v{t[2]}, v{t[2]}, v{t[0]}
    v_max_f32 v{t[0]}, 0, v{t[0]}
    v_add_f32 v{t[0]}, 0x3727c5ac, v{t[0]}
    v_rsq_f32 v{vRstd}, v{t[0]}
    v_mul_f32 v{vNmr}, v{t[2]}, v{vRstd}
    v_mul_f32 v{vNmr}, -1.0, v{vNmr}
    """)
    def norm_stream(s):
        out = []
        regs = [X0 + 4*s + i for i in range(4)]
        for h in range(2):
            a, b = regs[2*h], regs[2*h+1]
            t0, t1, t2, t3 = vT[4*h:4*h+4]
            out += [f"v_lshlrev_b32 v{t0}, 16, v{a}", f"v_and_b32 v{t1}, s{sMask}, v{a}",
                    f"v_lshlrev_b32 v{t2}, 16, v{b}", f"v_and_b32 v{t3}, s{sMask}, v{b}",
                    f"v_fma_f32 v{t0}, v{t0}, v{vRstd}, v{vNmr}", f"v_fma_f32 v{t1}, v{t1}, v{vRstd}, v{vNmr}",
                    f"v_fma_f32 v{t2}, v{t2}, v{vRstd}, v{vNmr}", f"v_fma_f32 v{t3}, v{t3}, v{vRstd}, v{vNmr}",
                    f"v_cvt_pk_bf16_f32 v{a}, v{t0}, v{t1}", f"v_cvt_pk_bf16_f32 v{b}, v{t2}, v{t3}"]
        return out
    accA = lambda u: 16 * u
    def glu_stream(ug, uu, soff):
        out = []
        for j in range(2):
            pk = vT[8 + 4*j: 12 + 4*j]
            for q in range(2):
                r0 = 8*j + 4*q
                g = vT[0:4]; u = vT[4:8]
                out += [f"v_accvgpr_read_b32 v{g[i]}, a{accA(ug)+r0+i}" for i in range(4)]
                out += [f"v_mul_f32 v{g[i]}, s{sNL2E}, v{g[i]}" for i in range(4)]
                out += [f"v_exp_f32 v{g[i]}, v{g[i]}" for i in range(4)]
                out += [f"v_accvgpr_read_b32 v{u[i]}, a{accA(uu)+r0+i}" for i in range(4)]
                out += [f"v_add_f32 v{g[i]}, 1.0, v{g[i]}" for i in range(4)]
                out += [f"v_rcp_f32 v{g[i]}, v{g[i]}" for i in range(4)]
                out += [f"v_mul_f32 v{g[i]}, v{g[i]}, v{u[i]}" for i in range(4)]
                out += [f"v_cvt_pk_bf16_f32 v{pk[2*q]}, v{g[0]}, v{g[1]}", f"v_cvt_pk_bf16_f32 v{pk[2*q+1]}, v{g[2]}, v{g[3]}"]
            out.append(f"buffer_store_dwordx4 v[{pk[0]}:{pk[3]}], v{vL16}, s[{SW}:{SW+3}], s{soff} offen offset:{1024*j} sc1")
        return out
    def qkv_stream(accbase, isA, soff):
        out = []
        for a in range(4):
            if isA:
                g = vT[4*(a%2): 4 + 4*(a%2)]
                out += [f"v_accvgpr_read_b32 v{g[i]}, a{accbase+4*a+i}" for i in range(4)]
                src = g; pk = vT[8 + 2*a: 10 + 2*a]
            else:
                src = [accbase + 4*a + i for i in range(4)]; pk = [accbase + 4*a, accbase + 4*a + 1]
            out += [f"v_cvt_pk_bf16_f32 v{pk[0]}, v{src[0]}, v{src[1]}", f"v_cvt_pk_bf16_f32 v{pk[1]}, v{src[2]}, v{src[3]}"]
            out.append(f"s_add_u32 s{sT2}, s{soff}, {a*32768}")
            out.append(f"buffer_store_dwordx2 v[{pk[0]}:{pk[1]}], v{vQst}, s[{SW}:{SW+3}], s{sT2} offen sc1")
        return out
    if cfg.get('nofill'):
        norm_stream = lambda s: []
        glu_stream = lambda a, b, c: []
    cost = lambda l: 2 if l.startswith(('v_exp', 'v_rcp')) else 1
    def wreg(i): return f"a[{WR0+4*(i%RING)}:{WR0+4*(i%RING)+3}]"
    def tr_reads(i):
        (pas, u, s, c, va, off) = frags[i]
        b = WR0 + 4 * (i % RING)
        if off >= 65536: va = vHi[va]; off -= 65536
        return [f"ds_read_b64_tr_b16 a[{b}:{b+1}], v{va} offset:{off}", f"ds_read_b64_tr_b16 a[{b+2}:{b+3}], v{va} offset:{off+512}"]
    def acc(u): return f"a[{accA(u)}:{accA(u)+15}]" if u < 8 else f"v[{ACC3+16*(u-8)}:{ACC3+16*(u-8)+15}]"
    def last_m0():
        x = p.ins[-1]
        return (not isinstance(x, tuple)) and ('x', 'm0') in x.dst
    DBL = cfg.get('dbl', 1); PW = cfg.get('pw', 1)
    DGAP = cfg.get('dgap', 2 if DBL else 3)
    def main(i0, i1, q):
        for i in range(i0, i1):
            (pas, u, s, c, va, off) = frags[i]
            cin = "0" if s == 0 else acc(u)
            if pas == 1 and u == 0:
                while q['norm'] and q['norm'][0][0] <= s: p(q['norm'].pop(0)[1])
            if PW and i % 2 == 0 and i + 1 < NF: p.waitlg(f'f{i+1}')
            p(f"v_mfma_f32_32x32x16_bf16 {acc(u)}, {wreg(i)}, {xr(s)}, {cin}")
            j = i + D
            if j < NF:
                cj = frags[j][3]
                if j == chunks[cj]['first'] and DBL and cj == 1:
                    if not cfg.get('nowait'): p.waitvm('w1')
                    if not cfg.get('nobar'): p("s_barrier")
                elif j == chunks[cj]['first'] and not (DBL and cj % 2 == 1):
                    while q['dma']:
                        l, tg = q['dma'].pop(0); p(l, tag=tg)
                    last = min(cj + 1, len(chunks) - 1) if DBL else cj
                    if not cfg.get('nowait'): p.waitvm(f'w{last}')
                    if not cfg.get('nobar'): p("s_barrier")
                    for cn in ((cj + 2, cj + 3) if DBL else (cj + 2,)):
                        if cn < len(chunks) and not cfg.get('nodma'):
                            q['dma'] += [(l, f'w{cn}') for l in wdma(cn)]
                    q['next_dma'] = i
                emit_stream(tr_reads(j), tag=f'f{j}')
            bud = BUD
            if pas == 1 and u == 0 and s + 1 < 40:
                q['norm'] += [(s + 1, l) for l in norm_stream(s + 1)]
            if q['dma'] and i >= q['next_dma']:
                while q['dma']:
                    l, tg = q['dma'].pop(0); p(l, tag=tg); bud -= 1
                    if l.startswith('buffer'): break
                while q['dma'] and q['dma'][0][0].startswith('s_'):
                    l, tg = q['dma'].pop(0); p(l, tag=tg); bud -= 1
                q['next_dma'] = i + DGAP
            if q['extra'] and q['extra'][0][0] <= i:
                grp = q['extra'].pop(0)[1]
                for (l, tg) in grp:
                    if l == 'WAITVM': p.waitvm(tg)
                    elif l == 'WAITLG': p.waitlg(tg)
                    else: p(l, tag=tg); bud -= 1
            while bud > 0:
                if q['norm']: p(q['norm'].pop(0)[1]); bud -= 1
                elif q['epi'] and q['epi'][0][0] <= i:
                    l = q['epi'].pop(0)[1]; p(l); bud -= cost(l)
                else: break
    extra = []
    if cfg.get('repack', 1):
        SR = S1
        SRP = 76
        sJ, sJb, sJs, sJo = 80, 81, 82, 83
        vJ = [vT[12], vT[13], vT[14], vT[15], vT[16]]
        vJa = vT[17]
        setup = []
        A = setup.append
        for l in f"""s_lshl_b32 s{sJ}, s2, 2
        s_add_u32 s{sJ}, s{sJ}, s{sW}
        s_cmp_ge_u32 s{sJ}, 592
        s_cselect_b32 s3, 1, 0
        s_cselect_b32 s{sT}, 592, 0
        s_sub_u32 s{sJ}, s{sJ}, s{sT}
        s_lshr_b32 s{sT}, s{sJ}, 2
        s_and_b32 s{sJo}, s{sJ}, 3
        s_sub_u32 s{sT2}, s{sT}, 108
        s_mul_i32 s{sJb}, s{sT2}, 6554
        s_lshr_b32 s{sJb}, s{sJb}, 16
        s_mul_i32 s{sJs}, s{sJb}, 10
        s_sub_u32 s{sJs}, s{sT2}, s{sJs}
        s_mul_i32 s{sJb}, s{sJb}, 160
        s_cmp_lt_u32 s{sJs}, 8
        s_cselect_b32 s{sT2}, 20, 80
        s_cselect_b32 s{sT3}, 0, 624
        s_mul_i32 s{sT2}, s{sT2}, s{sJs}
        s_cselect_b32 s{sJs}, 4, 20
        s_add_u32 s{sJb}, s{sJb}, s{sT2}
        s_sub_u32 s{sJb}, s{sJb}, s{sT3}
        s_mov_b32 s{SRP+3}, {640*1280}
        s_lshl_b32 s{sT2}, s{sT}, 4
        s_cmp_lt_u32 s{sT}, 108
        s_cselect_b32 s{SRP}, s74, s{sWo}
        s_cselect_b32 s{SRP+1}, s75, s{sWo+1}
        s_cselect_b32 s{SRP+2}, {1728*1280}, s{SRP+3}
        s_cselect_b32 s{sJb}, s{sT2}, s{sJb}
        s_cselect_b32 s{sJs}, 4, s{sJs}
        s_and_b32 s{SRP+1}, s{SRP+1}, 0xffff
        s_mov_b32 s{SRP+3}, 0x20000
        s_mul_i32 s{sJb}, s{sJb}, 1280
        s_mul_i32 s{sT2}, s{sJo}, 320
        s_add_u32 s{sJb}, s{sJb}, s{sT2}
        s_mul_i32 s{sJo}, s{sJo}, {2*148*2560}
        s_mul_i32 s{sT}, s{sT}, 2560
        s_add_u32 s{sJo}, s{sJo}, s{sT}
        s_add_u32 s{sJo}, s{sJo}, {WS_WF}""".split('\n'): A(l.strip())
        for i in range(5):
            for l in f"""v_add_u32 v{t[0]}, {64*i}, v{vLane}
            v_mul_u32_u24 v{t[1]}, 3277, v{t[0]}
            v_lshrrev_b32 v{t[1]}, 16, v{t[1]}
            v_mul_u32_u24 v{t[2]}, 20, v{t[1]}
            v_sub_u32 v{t[0]}, v{t[0]}, v{t[2]}
            v_lshrrev_b32 v{t[2]}, 2, v{t[1]}
            v_mul_u32_u24 v{t[2]}, s{sJs}, v{t[2]}
            v_and_b32 v{t[1]}, 3, v{t[1]}
            v_add_u32 v{t[1]}, v{t[1]}, v{t[2]}
            v_mul_u32_u24 v{t[1]}, 1280, v{t[1]}
            v_lshl_add_u32 v{vJ[i]}, v{t[0]}, 4, v{t[1]}""".split('\n'): A(l.strip())
        for l in f"""v_lshrrev_b32 v{t[0]}, 5, v{vLane}
        v_bfe_u32 v{t[1]}, v{vLane}, 2, 2
        v_lshl_add_u32 v{t[1]}, v{t[0]}, 2, v{t[1]}
        v_mul_u32_u24 v{t[1]}, 320, v{t[1]}
        v_bfe_u32 v{t[2]}, v{vLane}, 4, 1
        v_lshl_add_u32 v{t[1]}, v{t[2]}, 5, v{t[1]}
        v_and_b32 v{t[2]}, 3, v{vLane}
        v_lshl_add_u32 v{t[1]}, v{t[2]}, 3, v{t[1]}
        v_add_u32 v{vJa}, s{sXl}, v{t[1]}""".split('\n'): A(l.strip())
        emit_stream(setup)
        for i in range(5):
            p(f"s_add_u32 m0, s{sXl}, {1024*i}\ns_nop 0")
            p(f"buffer_load_dwordx4 v{vJ[i]}, s[{SRP}:{SRP+3}], s{sJb} offen lds", tag='rp')
        RR = ACC3
        grp = [('WAITVM', 'rp')]
        n = 0
        for nt in range(2):
            for u in range(3):
                off = nt*160 + u*64
                grp += [(f"ds_read_b64_tr_b16 v[{RR+4*n}:{RR+4*n+1}], v{vJa} offset:{off}", 'rpr'), (f"ds_read_b64_tr_b16 v[{RR+4*n+2}:{RR+4*n+3}], v{vJa} offset:{off+2560}", 'rpr')]
                n += 1
        i_rp = cfg.get('rp_at', 40)
        extra.append((i_rp, grp[:7])); extra.append((i_rp + 2, grp[7:]))
        st = []
        n = 0
        for nt in range(2):
            for u in range(3):
                skip = [("s_cmp_eq_u32 s3, 1", None), (f"s_cbranch_scc1 RPS{n}", None)]
                if u < 2:
                    st.append(skip + [(f"s_add_u32 s{sJb}, s{sJo}, {nt*148*2560 + u*1024}", None), (f"buffer_store_dwordx4 v[{RR+4*n}:{RR+4*n+3}], v{vL16}, s[{SW}:{SW+3}], s{sJb} offen sc1", 'nc'), (f"RPS{n}:", None)])
                else:
                    st.append(skip + [(f"v_lshrrev_b32 v{vJ[0]}, 5, v{vLane}", None), (f"v_and_b32 v{vJ[1]}, 15, v{vLane}", None), (f"v_lshl_add_u32 v{vJ[0]}, v{vJ[0]}, 4, v{vJ[1]}", None),
                               (f"v_lshlrev_b32 v{vJ[0]}, 4, v{vJ[0]}", None), (f"s_add_u32 s{sJb}, s{sJo}, {nt*148*2560 + 2048}", None),
                               (f"s_mov_b32 exec_lo, 0xffff", None), (f"s_mov_b32 exec_hi, 0xffff", None),
                               (f"buffer_store_dwordx4 v[{RR+4*n}:{RR+4*n+3}], v{vJ[0]}, s[{SW}:{SW+3}], s{sJb} offen sc1", 'nc'), (f"s_mov_b64 exec, -1", None), (f"RPS{n}:", None)])
                n += 1
        st[0] = [('WAITLG', 'rpr')] + st[0]
        for k, g in enumerate(st): extra.append((i_rp + 8 + 2*k, g))
    emit_stream(norm_stream(0))
    p.waitvm('w0')
    p("s_barrier")
    q = dict(dma=[(l, 'w2') for l in wdma(2)] + ([(l, 'w3') for l in wdma(3)] if DBL else []), norm=[], epi=[], extra=extra, next_dma=0)
    if cfg.get('nodma'): q['dma'] = []
    for j in range(D): emit_stream(tr_reads(j), tag=f'f{j}')
    n1 = 320
    stamp('main start')
    main(0, n1, q)
    stamp('pass1 end')
    q['epi'] += [(n1 + 1, l) for l in glu_stream(0, 1, sHoff[0])]
    q['epi'] += [(n1 + 1, l) for l in glu_stream(2, 3, sHoff[1])]
    q['epi'] += [(n1 + 1, l) for l in glu_stream(4, 5, sHoff[2])]
    nsplit = cfg.get('nsplit', n1 + 90)
    main(n1, nsplit, q)
    import copy
    p(f"s_cmp_lg_u32 s{sVar}, 0\ns_cbranch_scc1 K1_VARB")
    p.save('fork')
    for var in (0, 1):
        qq = copy.deepcopy(q)
        if var == 1:
            p("K1_VARB:")
            p.restore('fork')
            qq['epi'] += [(nsplit, l) for l in qkv_stream(accA(6), True, sQoff[0])]
            qq['epi'] += [(nsplit, l) for l in qkv_stream(accA(7), True, sQoff[1])]
        else:
            qq['epi'] += [(nsplit, l) for l in glu_stream(6, 7, sHoff[3])]
        main(nsplit, NF, qq)
        assert not qq['dma'] and not qq['norm'] and not qq['extra']
        left = [l for (_, l) in qq['epi']]
        if cfg.get('verbose'): print(f"; variant {var}: {len(left)} epilogue instrs left after main loop")
        n0 = nst[0]
        stamp('mfma done' if var == 0 else None)
        emit_stream(left)
        for j in range(3): emit_stream(qkv_stream(ACC3 + 16*j, False, sQoff[2 + j]))
        if prof:
            stamp('issued' if var == 0 else None)
            p("s_waitcnt vmcnt(0) lgkmcnt(0)")
            stamp('drained' if var == 0 else None)
            p(f"s_memrealtime s[{SP[nst[0]]}:{SP[nst[0]]+1}]\ns_waitcnt lgkmcnt(0)")
            vals = [SP[nst[0]]] + SP[:nst[0]]
            for n in range(16): p(f"v_mov_b32 v{100+n}, s{vals[n]}" if n < len(vals) else f"v_mov_b32 v{100+n}, 0")
            p(f"s_lshl_b32 s{sT}, s2, 2\ns_add_u32 s{sT}, s{sT}, s{sW}\ns_lshl_b32 s{sT}, s{sT}, 6\ns_add_u32 s{sT}, s{sT}, {WS_PROF}\nv_mov_b32 v116, 0\ns_mov_b64 exec, 1")
            for n in range(4): p(f"buffer_store_dwordx4 v[{100+4*n}:{103+4*n}], v116, s[{SW}:{SW+3}], s{sT} offen offset:{16*n}")
        nst[0] = n0
        if cfg.get('dbgt'):
            p(f"""
            s_waitcnt vmcnt(0)
            s_memrealtime s[90:91]
            s_waitcnt lgkmcnt(0)
            v_mov_b32 v{vT[8]}, s90
            v_mov_b32 v{vT[9]}, 4
            s_mov_b64 exec, 1
            global_atomic_umax v{vT[9]}, v{vT[8]}, s[92:93]
            """)
        p("s_endpgm")
    p("K1_END:")
    return p
```

```python
from asmlib import Prog
from k1 import srd, WS_QKV, WS_H, WS_O, WS_OT, WS_FLAG, WS_SIZE, WS_PROF

G_WO = 10 * 2560
G_LDS = G_WO + 2560
T_BASE = 4 * G_LDS
WS_WF = 20 << 20; WS_SIZE2 = 24 << 20
PS = 4096 + 32
KP = T_BASE
VP = KP + 6 * PS
SYNC = VP + 6 * PS + 64
K2_LDS = SYNC + 64
WS_PROF2 = (19 << 20) + (640 << 10)
NEG = 0xc7000000
C_SC = 1.4426950408889634 / (20 ** 0.5)

def gen_k2(cfg):
    p = Prog()
    prof = cfg.get('prof', 0)
    SXS, SWD, SWO, SWS, SOUT = 4, 8, 12, 16, 20
    sW, sMt, sNt, sHd, sM = 32, 33, 34, 35, 36
    sT, sT2, sT3 = 37, 38, 39
    sRot = 31
    SP = [88, 90, 92, 94, 96, 98, 100, 74, 76, 78, 80, 82, 84, 86]
    nst = [0]
    names = cfg.setdefault('_names2', [])
    def stamp(name=None):
        if not prof: return
        i = nst[0]; nst[0] += 1
        p(f's_memtime s[{SP[i]}:{SP[i]+1}]' if i else 's_memrealtime s[88:89]')
        if name: names.append(name)
    def prof_end(role):
        if not prof: return
        p("s_waitcnt vmcnt(0) lgkmcnt(0)")
        stamp('drained' if role == 'G' else None)
        k = nst[0]
        p(f"s_memrealtime s[{SP[k]}:{SP[k]+1}]\ns_waitcnt lgkmcnt(0)")
        vals = [SP[k]] + SP[:k]
        for n in range(16): p(f"v_mov_b32 v{100+n}, s{vals[n]}" if n < len(vals) else f"v_mov_b32 v{100+n}, 0")
        off = WS_PROF2 + (65536 if role == 'T' else 0)
        p(f"s_lshl_b32 s{sT}, s2, 2\ns_and_b32 s{sT2}, s{sW}, 3\ns_add_u32 s{sT}, s{sT}, s{sT2}\ns_lshl_b32 s{sT}, s{sT}, 6\ns_add_u32 s{sT}, s{sT}, {off}\nv_mov_b32 v116, 0\ns_mov_b64 exec, 1")
        for n in range(4): p(f"buffer_store_dwordx4 v[{100+4*n}:{103+4*n}], v116, s[{SWS}:{SWS+3}], s{sT} offen offset:{16*n}")
    vLane = 1
    stamp(); stamp()
    p(f"""
    s_cmp_ge_u32 s2, 256
    s_cbranch_scc1 K2_END
    s_load_dwordx2 s[62:63], s[0:1], 0
    s_load_dwordx2 s[64:65], s[0:1], 16
    s_load_dwordx4 s[68:71], s[0:1], 48
    s_load_dwordx2 s[66:67], s[0:1], 72
    v_and_b32 v{vLane}, 63, v0
    v_lshrrev_b32 v2, 6, v0
    s_nop 0
    v_readfirstlane_b32 s{sW}, v2
    s_and_b32 s{sT}, s2, 7
    s_lshr_b32 s{sT2}, s2, 3
    """)
    if cfg.get('map', 0) == 0:
        p(f"""
        s_lshl_b32 s{sHd}, s{sT}, 2
        s_and_b32 s{sT3}, s{sT2}, 3
        s_add_u32 s{sHd}, s{sHd}, s{sT3}
        s_lshr_b32 s{sM}, s{sT2}, 2
        s_lshr_b32 s{sMt}, s{sT}, 1
        s_lshl_b32 s{sMt}, s{sMt}, 3
        s_and_b32 s{sT3}, s{sT2}, 7
        s_add_u32 s{sMt}, s{sMt}, s{sT3}
        s_and_b32 s{sNt}, s{sT}, 1
        s_lshl_b32 s{sNt}, s{sNt}, 2
        s_lshr_b32 s{sRot}, s{sT2}, 3
        s_add_u32 s{sNt}, s{sNt}, s{sRot}
        s_mul_i32 s{sRot}, s{sRot}, {cfg.get('rn', 7)}
        s_mul_i32 s{sT3}, s{sT3}, {cfg.get('rm', 3)}
        s_add_u32 s{sRot}, s{sRot}, s{sT3}
        """)
    else:
        p(f"""
        s_mov_b32 s{sHd}, s{sT2}
        s_mov_b32 s{sM}, s{sT}
        s_and_b32 s{sT3}, s{sT2}, 3
        s_lshl_b32 s{sMt}, s{sT}, 2
        s_add_u32 s{sMt}, s{sMt}, s{sT3}
        s_lshr_b32 s{sNt}, s{sT2}, 2
        s_mul_i32 s{sRot}, s{sNt}, {cfg.get('rn', 3)}
        s_mul_i32 s{sT3}, s{sT3}, {cfg.get('rm', 7)}
        s_add_u32 s{sRot}, s{sRot}, s{sT3}
        """)
    p(f"""
    s_cmp_ge_u32 s{sRot}, 27
    s_cselect_b32 s{sT3}, 27, 0
    s_sub_u32 s{sRot}, s{sRot}, s{sT3}
    s_cmp_ge_u32 s{sRot}, 27
    s_cselect_b32 s{sT3}, 27, 0
    s_sub_u32 s{sRot}, s{sRot}, s{sT3}
    s_waitcnt lgkmcnt(0)
    """)
    srd(p, SWS, 66, 67, WS_SIZE2)
    if cfg.get('dbgt'):
        p(f"""
        s_load_dwordx2 s[92:93], s[0:1], 64
        s_memrealtime s[90:91]
        s_waitcnt lgkmcnt(0)
        s_not_b32 s90, s90
        v_mov_b32 v12, s90
        v_mov_b32 v13, 8
        s_mov_b64 exec, 1
        global_atomic_umax v13, v12, s[92:93]
        s_mov_b64 exec, -1
        """, tag='pf')
    if cfg.get('pf2', 1):
        p(f"""
        s_getpc_b64 s[86:87]
        K2_PFB:
        s_lshr_b32 s{sT}, s2, 3
        s_lshl_b32 s{sT}, s{sT}, 3
        s_add_u32 s{sT}, s{sT}, s{sW}
        s_lshl_b32 s{sT}, s{sT}, 7
        s_min_u32 s{sT}, s{sT}, TEXT_END-K2_PFB-4
        v_mov_b32 v3, s{sT}
        s_mov_b64 exec, 1
        global_load_dword v0, v3, s[86:87]
        s_mov_b64 exec, -1
        """, tag='pf')
    p(f"s_cmp_ge_u32 s{sW}, 4\ns_cbranch_scc1 K2_T")
    p.save('fork')
    vL16, vL16b, vU2, vOT = 2, 3, 4, 5
    vRow = [6, 7, 8]
    vSt, vLin, vLu2 = 9, 10, 11
    vT = list(range(12, 28)); vX = 28
    LA = 3; NS = 4
    U2R = 38
    ACT0 = 52; XR = 84; ACC = 96
    sLds, sWo, sAo, sFlag, sXo, sA1, sWb = 40, 41, 42, 46, 47, 48, 43
    sMlo, sMhi = 50, 52
    p(f"""
    s_mul_i32 s{sT}, s{sNt}, 148
    s_mul_i32 s{sT2}, s{sW}, 27
    s_add_u32 s{sT}, s{sT}, s{sT2}
    s_mul_i32 s{sWo}, s{sT}, 2560
    s_add_u32 s{sWo}, s{sWo}, {WS_WF}
    s_mul_i32 s{sAo}, s{sMt}, {2*108*1024}
    s_lshl_b32 s{sT2}, s{sT2}, 10
    s_add_u32 s{sAo}, s{sAo}, s{sT2}
    s_add_u32 s{sAo}, s{sAo}, {WS_H}
    v_lshlrev_b32 v{vL16}, 4, v{vLane}
    v_add_u32 v{vL16b}, {108*1024}, v{vL16}
    v_lshrrev_b32 v{vT[0]}, 5, v{vLane}
    v_and_b32 v{vT[1]}, 15, v{vLane}
    v_lshl_add_u32 v{vT[2]}, v{vT[0]}, 4, v{vT[1]}
    v_lshlrev_b32 v{vT[2]}, 4, v{vT[2]}
    v_bfe_u32 v{vT[3]}, v{vLane}, 4, 1
    v_mul_u32_u24 v{vT[3]}, 2560, v{vT[3]}
    v_add_u32 v{vU2}, v{vT[2]}, v{vT[3]}
    """)
    sw = f"s[{SWS}:{SWS+3}]"
    def h_loads(ki):
        if cfg.get('noact') and ki >= LA: return []
        b = 8 * (ki % NS); r = ACT0 + 8 * (ki % NS); tg = f'k{ki}'
        L = [(f"buffer_load_dwordx4 a[{b}:{b+3}], v{vL16}, {sw}, s{sWo} offen", tg),
             (f"buffer_load_dwordx4 v[{r}:{r+3}], v{vL16}, {sw}, s{sAo} offen", tg),
             (f"buffer_load_dwordx4 v[{r+4}:{r+7}], v{vL16b}, {sw}, s{sAo} offen", tg),
             (f"buffer_load_dwordx4 a[{b+4}:{b+7}], v{vL16}, {sw}, s{sWo} offen offset:1024", tg)]
        if ki % 2 == 0:
            u = U2R + 4 * ((ki // 2) % 3)
            L.append((f"buffer_load_dwordx4 v[{u}:{u+3}], v{vU2}, {sw}, s{sWo} offen offset:2048", tg))
        L.append((f"s_add_u32 s{sWo}, s{sWo}, 2560\ns_add_u32 s{sAo}, s{sAo}, 1024", None))
        return L
    def g_tables():
        srd(p, SXS, 62, 63, 2048 * 1280)
        srd(p, SOUT, 70, 71, 2048 * 1280)
        p(f"""
        s_mul_i32 s{sLds}, s{sW}, {G_LDS}
        v_add_u32 v{vLin}, s{sLds}, v{vL16}
        v_add_u32 v{vLu2}, s{sLds}, v{vT[2]}
        v_and_b32 v{vT[1]}, 31, v{vLane}
        v_mul_u32_u24 v{vT[2]}, 80, v{vT[1]}
        v_lshl_add_u32 v{vT[2]}, v{vT[0]}, 3, v{vT[2]}
        s_add_u32 s{sT}, s{sLds}, {G_WO}
        v_add_u32 v{vSt}, s{sT}, v{vT[2]}
        v_lshlrev_b32 v{vT[3]}, 3, v{vT[1]}
        v_lshl_add_u32 v{vOT}, v{vT[0]}, 8, v{vT[3]}
        s_mov_b32 s{sMlo}, 0x0000ffff
        s_mov_b32 s{sMlo+1}, 0x0000ffff
        s_mov_b32 s{sMhi}, 0xffff0000
        s_mov_b32 s{sMhi+1}, 0xffff0000
        """)
        for i in range(3):
            p(f"""
            v_add_u32 v{vT[0]}, {64*i}, v{vLane}
            v_min_u32 v{vT[0]}, 159, v{vT[0]}
            v_mul_u32_u24 v{vT[1]}, 13108, v{vT[0]}
            v_lshrrev_b32 v{vT[1]}, 16, v{vT[1]}
            v_mul_u32_u24 v{vT[2]}, 5, v{vT[1]}
            v_sub_u32 v{vT[2]}, v{vT[0]}, v{vT[2]}
            v_mul_u32_u24 v{vT[1]}, 1280, v{vT[1]}
            v_lshl_add_u32 v{vRow[i]}, v{vT[2]}, 4, v{vT[1]}
            """)
        p(f"""
        s_lshr_b32 s{sT}, s{sW}, 1
        s_lshl_b32 s{sT2}, s{sMt}, 1
        s_add_u32 s{sT}, s{sT}, s{sT2}
        s_mul_i32 s{sXo}, s{sT}, {32*1280}
        s_mul_i32 s{sT}, s{sNt}, 160
        s_add_u32 s{sXo}, s{sXo}, s{sT}
        s_and_b32 s{sT}, s{sW}, 1
        s_mul_i32 s{sT}, s{sT}, 80
        s_add_u32 s{sXo}, s{sXo}, s{sT}
        s_mul_i32 s{sT}, s{sNt}, 148
        s_mul_i32 s{sT2}, s{sW}, 10
        s_add_u32 s{sT}, s{sT}, s{sT2}
        s_add_u32 s{sT}, s{sT}, 108
        s_mul_i32 s{sOo}, s{sT}, 2560
        s_add_u32 s{sOo}, s{sOo}, {WS_WF}
        """)
    sOo = 49
    if cfg.get('tfirst', 1): g_tables()
    if cfg.get('tsync', 1): p("s_barrier")
    for ki in range(LA):
        for (l, tg) in h_loads(ki): p(l, tag=tg)
    stamp('G loads issued')
    if not cfg.get('tfirst', 1): g_tables()
    def wo_dma(n):
        L = []
        if n % 4 == 0:
            L.append((f"s_add_u32 m0, s{sLds}, {n*1024}", None))
            if n: L.append((f"s_add_u32 s{sOo}, s{sOo}, 4096", None))
        L.append((f"buffer_load_dwordx4 v{vL16}, {sw}, s{sOo} offen offset:{(n%4)*1024} lds", 'wo'))
        return L
    acc = lambda tb, u: f"v[{ACC+16*(3*tb+u)}:{ACC+16*(3*tb+u)+15}]"
    barrier_at = cfg.get('gbar', 1)
    WO0 = cfg.get('wo0', 1)
    nwo = 0
    osc = ' sc1' if cfg.get('osc1', 1) else ''
    OH = ['a56', 'v84', 'v76', 'a24', 'v52', 'a0', 'v60', 'a8', 'v68', 'a16']
    def oreg(j, i, n): return f"{OH[j][0]}[{int(OH[j][1:])+i}:{int(OH[j][1:])+i+n-1}]"
    sOa = [54, 55]; sOt = [56, 57]
    def o_loads(j):
        L = []
        if j < 8:
            for tb in range(2):
                L.append((f"buffer_load_dwordx4 {oreg(j, 4*tb, 4)}, v{vL16}, {sw}, s{sOa[tb]} offen offset:{(j % 4)*1024}{osc}", f'o{j}'))
            if j == 3: L.append((f"s_add_u32 s{sOa[0]}, s{sOa[0]}, 4096\ns_add_u32 s{sOa[1]}, s{sOa[1]}, 4096", None))
        else:
            g = j - 8
            for tb in range(2):
                for e in range(2):
                    L.append((f"buffer_load_dwordx2 {oreg(j, 4*tb + 2*e, 2)}, v{vOT}, {sw}, s{sOt[tb]} offen offset:{(4*g + 2*e)*256}{osc}", f'o{j}'))
        return L
    WR = 32
    def wo_reads(j):
        b = WR + 12 * (j % 2)
        return [(f"ds_read_b128 a[{b}:{b+3}], v{vLin} offset:{j*2560}", f'wr{j}'),
                (f"ds_read_b128 a[{b+4}:{b+7}], v{vLin} offset:{j*2560 + 1024}", f'wr{j}'),
                (f"ds_read_b128 a[{b+8}:{b+11}], v{vLu2} offset:{j*2560 + 2048}", f'wr{j}')]
    PK = cfg.get('PK', 24); assert PK == 24
    vFl = vT[9]; vFa = vT[8]
    def poll_setup():
        p(f"""
        s_lshl_b32 s{sT}, s{sMt}, 6
        s_lshl_b32 s{sT2}, s{sW}, 3
        s_add_u32 s{sT}, s{sT}, s{sT2}
        s_lshl_b32 s{sOa[0]}, s{sT}, 10
        s_add_u32 s{sOa[0]}, s{sOa[0]}, {WS_O}
        s_add_u32 s{sOa[1]}, s{sOa[0]}, {32*1024}
        s_lshl_b32 s{sOt[0]}, s{sT}, 8
        s_add_u32 s{sOt[0]}, s{sOt[0]}, {WS_OT}
        s_add_u32 s{sOt[1]}, s{sOt[0]}, {32*256}
        s_lshl_b32 s{sFlag}, s{sMt}, 7
        s_lshl_b32 s{sT}, s{sW}, 5
        s_add_u32 s{sFlag}, s{sFlag}, s{sT}
        s_add_u32 s{sFlag}, s{sFlag}, {WS_FLAG}
        v_and_b32 v{vFa}, 7, v{vLane}
        v_lshlrev_b32 v{vFa}, 2, v{vFa}
        s_mov_b32 s{sT3}, 200000
        """)
    for ki in range(27):
        b = 8 * (ki % NS); r = ACT0 + 8 * (ki % NS)
        if ki == barrier_at and not cfg.get('tsync', 1): p("s_barrier")
        if cfg.get('kst') and ki in (2, 8, 14, 20): stamp(f'k{ki}')
        q = h_loads(ki + LA) if ki + LA < 27 else []
        ex = []
        if ki >= WO0:
            for _ in range(cfg.get('wor', 2)):
                if nwo < 25: ex += wo_dma(nwo); nwo += 1
        if ki == 6:
            ex += [(f"buffer_load_dwordx4 v[{XR+4*i}:{XR+4*i+3}], v{vRow[i]}, s[{SXS}:{SXS+3}], s{sXo} offen", 'xr') for i in range(3)]
        if ki == 12:
            ex += [(f"ds_write_b128 v{vLin}, v[{XR+4*i}:{XR+4*i+3}] offset:{G_WO + 1024*i}", 'xw') for i in range(2)]
            ex += [(f"s_mov_b32 exec_hi, 0\nds_write_b128 v{vLin}, v[{XR+8}:{XR+11}] offset:{G_WO + 2048}\ns_mov_b64 exec, -1", 'xw')]
        if ki == 13:
            ex += [(f"ds_read_b64 v[{vX+2*i}:{vX+2*i+1}], v{vSt} offset:{16*i}", 'xd') for i in range(5)]
        if ki == PK - cfg.get('early', 0):
            poll_setup()
            if not cfg.get('noT') and cfg.get('early', 0):
                ex += [(f"buffer_load_dword v{vFl}, v{vFa}, {sw}, s{sFlag} offen sc1", 'fl')]
        if ki == PK:
            stamp('G before poll')
            if not cfg.get('noT'):
                if cfg.get('early', 0):
                    p(f"v_cmp_ne_u32 vcc, 1, v{vFl}\ns_cbranch_vccz G_POLLED")
                p.save('poll')
                p("G_POLL:")
                p(f"""
                buffer_load_dword v{vFl}, v{vFa}, {sw}, s{sFlag} offen sc1
                s_sub_u32 s{sT3}, s{sT3}, 1
                s_waitcnt vmcnt(0)
                v_cmp_ne_u32 vcc, 1, v{vFl}
                s_cmp_eq_u32 s{sT3}, 0
                s_cbranch_scc1 G_POLLED
                s_cbranch_vccnz G_POLL
                """)
                p("G_POLLED:")
                p.restore('poll')
            stamp('G polled')
            p.waitvm('wo')
            ex += o_loads(0) + o_loads(1) + o_loads(2) + o_loads(3) + wo_reads(0) + wo_reads(1)
        if ki == PK + 1: ex += o_loads(4) + o_loads(5)
        if ki == PK + 2: ex += o_loads(6) + o_loads(7)
        q = q + ex
        p.waitvm(f'k{ki}')
        u2 = U2R + 4 * ((ki // 2) % 3); tq = vT[4 * (ki % 2): 4 * (ki % 2) + 4]
        m = sMlo if ki % 2 == 0 else sMhi
        if cfg.get('lfirst', 1):
            while q:
                l, tg = q.pop(0); p(l, tag=tg)
        for i in range(4): p(f"v_cndmask_b32 v{tq[i]}, 0, v{u2+i}, s[{m}:{m+1}]")
        for u in range(3):
            for tb in range(2):
                cin = "0" if ki == 0 else acc(tb, u)
                wsrc = f"a[{b+4*u}:{b+4*u+3}]" if u < 2 else f"v[{tq[0]}:{tq[3]}]"
                p(f"v_mfma_f32_32x32x16_bf16 {acc(tb,u)}, {wsrc}, v[{r+4*tb}:{r+4*tb+3}], {cin}")
                nq = 2 if (u, tb) != (2, 1) else 99
                while q and nq > 0:
                    l, tg = q.pop(0); p(l, tag=tg); nq -= 1 if ('buffer' in l or 'ds_' in l) else 0
    assert nwo == 25
    for (l, tg) in o_loads(8) + o_loads(9): p(l, tag=tg)
    stamp('G h done')
    for tb in range(2):
        c = ACC + 16 * (3*tb + 2)
        for i in range(8): p(f"v_add_f32 v{c+i}, v{c+i}, v{c+8+i}")
    for j in range(10):
        b = WR + 12 * (j % 2)
        p.waitvm(f'o{j}')
        for u in range(3):
            for tb in range(2):
                p(f"v_mfma_f32_32x32x16_bf16 {acc(tb,u)}, a[{b+4*u}:{b+4*u+3}], {oreg(j, 4*tb, 4)}, {acc(tb,u)}")
        if j + 2 < 10:
            for (l, tg) in wo_reads(j + 2): p(l, tag=tg)
    stamp('G main done')
    def greg(tb, a): return ACC + 16*(3*tb + a//4) + 4*(a % 4)
    for wv in range(4):
        if wv < 3: p(f"s_cmp_lg_u32 s{sW}, {wv}\ns_cbranch_scc1 G_RED{wv+1}")
        if wv == 0: p.save('red')
        for tb in range(2):
            for a in range(10):
                own = 2*tb + (1 if a >= 5 else 0)
                if own == wv: continue
                slot = ((own - wv) % 4 - 1) * 5 + a % 5
                r = greg(tb, a)
                p(f"ds_write_b128 v{vLin}, v[{r}:{r+3}] offset:{slot*1024}")
        p("s_waitcnt lgkmcnt(0)\ns_barrier")
        tbo, a0 = wv >> 1, 5 * (wv & 1)
        R = 12
        stg = [38 + 4*n for n in range(14)] + [12]
        n = 0
        for src in range(1, 4):
            sw_ = (wv + src) % 4
            rel = (wv - sw_) % 4
            p(f"v_add_u32 v{vT[4+src]}, {sw_*G_LDS}, v{vL16}")
            for i in range(5):
                p(f"ds_read_b128 v[{stg[n]}:{stg[n]+3}], v{vT[4+src]} offset:{((rel-1)*5 + i)*1024}"); n += 1
        for i in range(5):
            r = greg(tbo, a0 + i)
            x0, x1 = vX + 2*i, vX + 2*i + 1
            t = vT[8:12]
            p(f"""
            v_lshlrev_b32 v{t[0]}, 16, v{x0}
            v_and_b32 v{t[1]}, 0xffff0000, v{x0}
            v_lshlrev_b32 v{t[2]}, 16, v{x1}
            v_and_b32 v{t[3]}, 0xffff0000, v{x1}
            """)
            for e in range(4): p(f"v_add_f32 v{r+e}, v{r+e}, v{t[e]}")
        for src in range(3):
            for i in range(5):
                r = greg(tbo, a0 + i)
                for e in range(4): p(f"v_add_f32 v{r+e}, v{r+e}, v{stg[5*src+i]+e}")
                if src == 2:
                    p(f"""
                    v_cvt_pk_bf16_f32 v{r}, v{r}, v{r+1}
                    v_cvt_pk_bf16_f32 v{r+1}, v{r+2}, v{r+3}
                    ds_write_b64 v{vSt}, v[{r}:{r+1}] offset:{16*i}
                    """, tag='ow')
        p.waitlg('ow')
        for i in range(3): p(f"ds_read_b128 v[{48+4*i}:{51+4*i}], v{vLin} offset:{G_WO + 1024*i}")
        om = cfg.get('outmod', '')
        for i in range(2): p(f"buffer_store_dwordx4 v[{48+4*i}:{51+4*i}], v{vRow[i]}, s[{SOUT}:{SOUT+3}], s{sXo} offen {om}")
        p(f"s_mov_b32 exec_hi, 0\nbuffer_store_dwordx4 v[56:59], v{vRow[2]}, s[{SOUT}:{SOUT+3}], s{sXo} offen {om}")
        n0 = nst[0]
        if cfg.get('dbgt'):
            p(f"""
            s_waitcnt vmcnt(0)
            s_memrealtime s[90:91]
            s_waitcnt lgkmcnt(0)
            v_mov_b32 v12, s90
            v_mov_b32 v13, 12
            s_mov_b64 exec, 1
            global_atomic_umax v13, v12, s[92:93]
            """)
        if prof:
            p("s_mov_b64 exec, -1")
            stamp('G out issued' if wv == 0 else None)
            prof_end('G' if wv == 0 else 'G2')
            nst[0] = n0
        p("s_endpgm")
        if wv < 3:
            p(f"G_RED{wv+1}:")
            p.restore('red')
    p("K2_T:")
    p.restore('fork')
    nst[0] = 2
    tnames = []
    vKa, vVa, vQo, vHH = 2, 3, 4, 5
    vT = list(range(6, 16)); vQ = 16
    vMx, vMc, vDen = 28, 29, 30
    S0 = 48
    sTw, sKo, sMk = 40, 41, 42
    p(f"""
    s_sub_u32 s{sTw}, s{sW}, 4
    s_lshl_b32 s{sT}, s{sM}, 8
    s_sub_u32 s{sT}, s{sT}, 256
    s_lshl_b32 s{sT}, s{sT}, 3
    s_mul_i32 s{sT2}, s{sHd}, {5*16384}
    s_add_u32 s{sKo}, s{sT}, s{sT2}
    s_add_u32 s{sKo}, s{sKo}, {160*16384 + WS_QKV}
    v_lshlrev_b32 v{vT[0]}, 4, v{vLane}
    """)
    if cfg.get('noT') == 1:
        p("s_barrier\ns_endpgm")
    assert not (cfg.get('noT') == 2 and cfg.get('tsync', 1))
    p(f"s_lshl_b32 s{sT2}, s{sTw}, 10\ns_add_u32 s{sKo}, s{sKo}, s{sT2}")
    for kv in range(2):
        for G in range(5):
            base = (KP if kv == 0 else VP) + G * PS
            p(f"s_add_u32 m0, s{sT2}, {base}\ns_add_u32 s{sT}, s{sKo}, {kv*160*16384 + G*16384}")
            p(f"buffer_load_dwordx4 v{vT[0]}, s[{SWS}:{SWS+3}], s{sT} offen lds", tag='kv')
    vSy = 47
    if cfg.get('tsync', 1):
        p(f"""
        s_lshl_b32 s{sT}, s{sTw}, 2
        s_add_u32 s{sT}, s{sT}, {SYNC}
        v_mov_b32 v{vSy}, s{sT}
        v_mov_b32 v{vT[1]}, 0
        ds_write_b32 v{vSy}, v{vT[1]}
        s_waitcnt lgkmcnt(0)
        s_barrier
        """)
    if cfg.get('tprio', 2): p(f"s_setprio {cfg.get('tprio', 2)}")
    p(f"""
    v_lshrrev_b32 v{vHH}, 5, v{vLane}
    v_and_b32 v{vT[1]}, 31, v{vLane}
    v_lshlrev_b32 v{vT[2]}, 3, v{vT[1]}
    v_lshl_add_u32 v{vQo}, v{vHH}, 15, v{vT[2]}
    s_lshl_b32 s{sT}, s{sM}, 3
    s_lshl_b32 s{sT3}, s{sTw}, 1
    s_add_u32 s{sT}, s{sT}, s{sT3}
    s_lshl_b32 s{sT}, s{sT}, 8
    s_mul_i32 s{sT3}, s{sHd}, {5*16384}
    s_add_u32 s{sT}, s{sT}, s{sT3}
    s_add_u32 s{sT}, s{sT}, {WS_QKV}
    """)
    for qb in range(2):
        q = vQ + 6*qb
        p(f"""
        s_add_u32 s{sT3}, s{sT}, {qb*256}
        buffer_load_dwordx2 v[{q}:{q+1}], v{vQo}, s[{SWS}:{SWS+3}], s{sT3} offen
        s_add_u32 s{sT3}, s{sT}, {qb*256 + 16384}
        buffer_load_dwordx2 v[{q+2}:{q+3}], v{vQo}, s[{SWS}:{SWS+3}], s{sT3} offen
        s_add_u32 s{sT3}, s{sT}, {qb*256 + 4*16384}
        buffer_load_dwordx2 v[{q+4}:{q+5}], v{vT[2]}, s[{SWS}:{SWS+3}], s{sT3} offen
        """)
    vPa, vPi, vPd = 44, 45, 46
    P = cfg.get('P', 4); nW = (20 * P + 7) // 8; nA = 4 * P; NPF = (27 + P - 1) // P
    assert nW + nA <= 64
    t = vT[3:8]
    if cfg.get('pft', 0):
        p(f"""
        s_and_b32 s{sT}, s{sMt}, 7
        s_mul_i32 s{sT}, s{sT}, {nW}
        v_add_u32 v{t[0]}, s{sT}, v{vLane}
        v_min_u32 v{t[0]}, {20*P - 1}, v{t[0]}
        v_lshlrev_b32 v{t[0]}, 7, v{t[0]}
        s_mul_i32 s{sT}, s{sNt}, 148
        s_mul_i32 s{sT3}, s{sTw}, 27
        s_add_u32 s{sT}, s{sT}, s{sT3}
        s_mul_i32 s{sT}, s{sT}, 2560
        s_add_u32 s{sT}, s{sT}, {WS_WF}
        v_add_u32 v{t[0]}, s{sT}, v{t[0]}
        v_subrev_u32 v{t[1]}, {nW}, v{vLane}
        v_cmp_le_i32 vcc, {2*P}, v{t[1]}
        v_cndmask_b32 v{t[2]}, 0, 1, vcc
        v_mul_u32_u24 v{t[3]}, {2*P}, v{t[2]}
        v_sub_u32 v{t[1]}, v{t[1]}, v{t[3]}
        s_and_b32 s{sT}, s{sNt}, 3
        s_mul_i32 s{sT}, s{sT}, {2*P}
        v_add_u32 v{t[1]}, s{sT}, v{t[1]}
        v_lshlrev_b32 v{t[1]}, 7, v{t[1]}
        v_mul_u32_u24 v{t[2]}, {108*1024}, v{t[2]}
        v_add_u32 v{t[1]}, v{t[1]}, v{t[2]}
        s_mul_i32 s{sT}, s{sMt}, {2*108*1024}
        s_lshl_b32 s{sT3}, s{sT3}, 10
        s_add_u32 s{sT}, s{sT}, s{sT3}
        s_add_u32 s{sT}, s{sT}, {WS_H}
        v_add_u32 v{t[1]}, s{sT}, v{t[1]}
        v_cmp_gt_u32 vcc, {nW}, v{vLane}
        v_cndmask_b32 v{vPa}, v{t[1]}, v{t[0]}, vcc
        v_mov_b32 v{t[0]}, {P*2560}
        v_mov_b32 v{t[1]}, {P*1024}
        v_cndmask_b32 v{vPi}, v{t[1]}, v{t[0]}, vcc
        s_bfm_b64 s[24:25], {nW + nA}, 0
        """)
    npf = [0]
    def pf(n=1):
        if not cfg.get('pft', 0): return
        for _ in range(n):
            j = npf[0]
            if j < NPF:
                if j >= cfg.get('pf0', 1):
                    p(f"s_mov_b64 exec, s[24:25]\nbuffer_load_dword v{vPd}, v{vPa}, s[{SWS}:{SWS+3}], 0 offen\ns_mov_b64 exec, -1", tag='pf')
                p(f"v_add_u32 v{vPa}, v{vPa}, v{vPi}")
            elif j == NPF and cfg.get('pfo', 1):
                p(f"""
                s_and_b32 s26, s{sMt}, 7
                s_mul_i32 s26, s26, 25
                v_add_u32 v{vPa}, s26, v{vLane}
                v_lshlrev_b32 v{vPa}, 7, v{vPa}
                s_mul_i32 s26, s{sNt}, 148
                s_mul_i32 s27, s{sTw}, 10
                s_add_u32 s26, s26, s27
                s_add_u32 s26, s26, 108
                s_mul_i32 s26, s26, 2560
                s_add_u32 s26, s26, {WS_WF}
                s_mov_b64 exec, 0x1ffffff
                buffer_load_dword v{vPd}, v{vPa}, s[{SWS}:{SWS+3}], s26 offen
                s_mov_b64 exec, -1
                """, tag='pf')
            npf[0] += 1
    pf(cfg.get('pfa', 3))
    if cfg.get('noT') == 2:
        pf(12)
        p("s_barrier\ns_waitcnt vmcnt(0)\ns_endpgm")
    p(f"""
    s_cmp_eq_u32 s{sM}, 0
    s_cselect_b32 s{sT}, 0xc700, 0
    s_cmp_lt_u32 s{sTw}, 2
    s_cselect_b32 s{sT}, s{sT}, 0
    v_mov_b32 v{vT[4]}, s{sT}
    v_mov_b32 v{vT[5]}, 0
    v_mov_b32 v{vT[6]}, s{sT}
    v_mov_b32 v{vT[7]}, 0
    v_add_u32 v{vT[3]}, s{sT2}, v{vT[0]}
    v_add_u32 v{vT[3]}, {KP + 5*PS}, v{vT[3]}
    ds_write_b128 v{vT[3]}, v[{vT[4]}:{vT[7]}]
    """)
    assert vT[4] % 2 == 0
    p(f"""
    v_mov_b32 v{vT[4]}, 0x3f80
    v_mov_b32 v{vT[6]}, 0x3f80
    ds_write_b128 v{vT[3]}, v[{vT[4]}:{vT[7]}] offset:{VP - KP}
    """)
    p(f"""
    v_mul_u32_u24 v{vT[3]}, {2*PS}, v{vHH}
    v_lshl_add_u32 v{vT[3]}, v{vT[1]}, 3, v{vT[3]}
    s_lshl_b32 s{sT}, s{sTw}, 9
    s_add_u32 s{sT}, s{sT}, {KP}
    v_add_u32 v{vKa}, s{sT}, v{vT[3]}
    v_mul_u32_u24 v{vT[3]}, {PS}, v{vHH}
    v_lshl_add_u32 v{vT[3]}, v{vT[1]}, 3, v{vT[3]}
    s_add_u32 s{sT3}, s{sT}, {4*PS}
    v_add_u32 v{vT[8]}, s{sT3}, v{vT[3]}
    """)
    vKt = vT[8]
    p(f"""
    v_bfe_u32 v{vT[3]}, v{vLane}, 4, 1
    v_and_b32 v{vT[4]}, 3, v{vLane}
    v_lshl_add_u32 v{vT[3]}, v{vT[3]}, 2, v{vT[4]}
    v_min_u32 v{vT[3]}, 5, v{vT[3]}
    v_mul_u32_u24 v{vT[3]}, {PS}, v{vT[3]}
    v_bfe_u32 v{vT[4]}, v{vLane}, 2, 2
    v_lshl_add_u32 v{vT[4]}, v{vHH}, 2, v{vT[4]}
    v_lshl_add_u32 v{vT[3]}, v{vT[4]}, 3, v{vT[3]}
    s_add_u32 s{sT3}, s{sT}, {VP - KP}
    v_add_u32 v{vVa}, s{sT3}, v{vT[3]}
    """)
    p(f"v_lshlrev_b32 v{vT[3]}, 2, v{vHH}\nv_sub_u32 v{vT[3]}, v{vT[1]}, v{vT[3]}")
    for r in range(16):
        p(f"v_cmp_le_i32 s[{sMk+2*r}:{sMk+2*r+1}], {8*(r>>2) + (r&3)}, v{vT[3]}")
    p(f"v_cmp_eq_u32 vcc, 1, v{vHH}")
    for qb in range(2):
        q = vQ + 6*qb
        p(f"v_mov_b32 v{vT[4]}, 0x3f80\nv_cndmask_b32 v{q+4}, v{q+4}, v{vT[4]}, vcc\nv_cndmask_b32 v{q+5}, v{q+5}, 0, vcc".replace(f"v_cndmask_b32 v{q+5}, v{q+5}, 0, vcc", f"v_mov_b32 v{vT[5]}, 0\nv_cndmask_b32 v{q+5}, v{q+5}, v{vT[5]}, vcc"))
    p(f"v_mov_b32 v{vT[9]}, {NEG}")
    vNeg = vT[9]
    p.waitvm('kv')
    if cfg.get('tsync', 1):
        p(f"""
        s_waitcnt lgkmcnt(0)
        v_mov_b32 v{vT[4]}, 1
        ds_write_b32 v{vSy}, v{vT[4]}
        v_mov_b32 v{vSy}, {SYNC}
        s_mov_b32 s{sT3}, 1000000
        """)
        p("T_SYNC:")
        p(f"""
        ds_read_b128 v[32:35], v{vSy}
        s_sub_u32 s{sT3}, s{sT3}, 1
        s_waitcnt lgkmcnt(0)
        v_and_b32 v32, v32, v33
        v_and_b32 v34, v34, v35
        v_and_b32 v32, v32, v34
        v_cmp_ne_u32 vcc, 1, v32
        s_cmp_eq_u32 s{sT3}, 0
        s_cbranch_scc1 T_SYNCED
        s_cbranch_vccnz T_SYNC
        """)
        p("T_SYNCED:")
    else:
        p("s_waitcnt lgkmcnt(0)\ns_barrier")
    stamp()
    if cfg.get('noT') == 3: p("s_endpgm")
    KF = 16
    VF = 40
    OA = 0
    St = lambda n: S0 + 16*n
    def kread(qb, n):
        b = KF + 8 * (n % 3)
        off = (qb + n) * 256
        p(f"ds_read_b64 a[{b}:{b+1}], v{vKa} offset:{off}\nds_read_b64 a[{b+2}:{b+3}], v{vKa} offset:{off+PS}\nds_read_b64 a[{b+4}:{b+5}], v{vKt} offset:{off}")
    def smfma(qb, n):
        b = KF + 8 * (n % 3); q = vQ + 6*qb; s = St(n)
        cin = "0"
        if n == 0 or n == 8:
            for r in range(16):
                m = f"s[{sMk+2*r}:{sMk+2*r+1}]"
                if n == 8: p(f"v_cndmask_b32 v{s+r}, v{vNeg}, 0, {m}")
                else: p(f"v_cndmask_b32 v{s+r}, 0, v{vNeg}, {m}")
            cin = f"v[{s}:{s+15}]"
        if cfg.get('nosm'): return
        p(f"v_mfma_f32_32x32x16_bf16 v[{s}:{s+15}], a[{b}:{b+3}], v[{q}:{q+3}], {cin}")
        p(f"v_mfma_f32_32x32x8_bf16 v[{s}:{s+15}], a[{b+4}:{b+5}], v[{q+4}:{q+5}], v[{s}:{s+15}]")
    def vread(qb, n):
        for j in range(2):
            b = VF + 4 * ((2*n + j) % 6)
            off = (qb + n) * 256 + j * 128
            p(f"ds_read_b64_tr_b16 a[{b}:{b+1}], v{vVa} offset:{off}\nds_read_b64_tr_b16 a[{b+2}:{b+3}], v{vVa} offset:{off+64}")
    sC = 39
    p(f"s_mov_b32 s{sC}, {C_SC!r}")
    for qb in range(2):
        kread(qb, 0); kread(qb, 1)
        for n in range(9):
            if n + 2 < 9: kread(qb, n + 2)
            smfma(qb, n)
            if qb == 0 and n % cfg.get('pfs', 2) == 0: pf(1)
        for n in range(9):
            s = St(n)
            for r in range(0, 16, 2):
                if n == 0 and r == 0: p(f"v_max_f32 v{vMx}, v{s}, v{s+1}")
                else: p(f"v_max3_f32 v{vMx}, v{vMx}, v{s+r}, v{s+r+1}")
        p(f"""
        v_mov_b32 v{vMc}, v{vMx}
        v_permlane32_swap_b32 v{vMx}, v{vMc}
        v_max_f32 v{vMx}, v{vMx}, v{vMc}
        v_mul_f32 v{vMc}, s{sC}, v{vMx}
        """)
        vread(qb, 0); vread(qb, 1)
        for n in range(9):
            s = St(n)
            if n + 2 < 9: vread(qb, n + 2)
            for r in range(16): p(f"v_fma_f32 v{s+r}, v{s+r}, s{sC}, -v{vMc}")
            for r in range(16 if not cfg.get('noexp') else 0): p(f"v_exp_f32 v{s+r}, v{s+r}")
            for r in range(8): p(f"v_cvt_pk_bf16_f32 v{s+r}, v{s+2*r}, v{s+2*r+1}")
            for j in range(2):
                b = VF + 4 * ((2*n + j) % 6)
                cin = "0" if (n == 0 and j == 0) else f"a[{OA}:{OA+15}]"
                p(f"v_mfma_f32_32x32x16_bf16 a[{OA}:{OA+15}], a[{b}:{b+3}], v[{s+4*j}:{s+4*j+3}], {cin}")
        o = list(range(32, 44))
        p(f"v_accvgpr_read_b32 v{vDen}, a{OA+12}")
        for r in range(12): p(f"v_accvgpr_read_b32 v{o[r]}, a{OA+r}")
        p(f"v_rcp_f32 v{vDen}, v{vDen}")
        for r in range(12): p(f"v_mul_f32 v{o[r]}, v{o[r]}, v{vDen}")
        for r in range(6): p(f"v_cvt_pk_bf16_f32 v{o[r]}, v{o[2*r]}, v{o[2*r+1]}")
        p(f"""
        s_lshl_b32 s{sT}, s{sM}, 3
        s_lshl_b32 s{sT2}, s{sTw}, 1
        s_add_u32 s{sT}, s{sT}, s{sT2}
        s_add_u32 s{sT}, s{sT}, {qb}
        s_lshl_b32 s{sT}, s{sT}, 5
        s_add_u32 s{sT}, s{sT}, s{sHd}
        s_lshl_b32 s{sT2}, s{sT}, 10
        s_add_u32 s{sT2}, s{sT2}, {WS_O}
        s_lshl_b32 s{sT}, s{sT}, 8
        s_add_u32 s{sT}, s{sT}, {WS_OT}
        v_lshlrev_b32 v{vT[0]}, 4, v{vLane}
        v_lshlrev_b32 v{vT[2]}, 3, v{vLane}
        buffer_store_dwordx4 v[{o[0]}:{o[3]}], v{vT[0]}, s[{SWS}:{SWS+3}], s{sT2} offen sc1
        s_mov_b32 exec_hi, 0
        buffer_store_dwordx2 v[{o[4]}:{o[5]}], v{vT[2]}, s[{SWS}:{SWS+3}], s{sT} offen sc1
        s_mov_b64 exec, -1
        """)
        stamp()
    p(f"""
    s_lshl_b32 s{sT}, s{sM}, 2
    s_add_u32 s{sT}, s{sT}, s{sTw}
    s_lshl_b32 s{sT}, s{sT}, 5
    s_add_u32 s{sT}, s{sT}, s{sHd}
    s_lshl_b32 s{sT}, s{sT}, 2
    s_add_u32 s{sT}, s{sT}, {WS_FLAG}
    v_mov_b32 v{vT[4]}, 1
    v_mov_b32 v{vT[5]}, 0
    s_waitcnt vmcnt(0)
    s_mov_b64 exec, 1
    buffer_store_dword v{vT[4]}, v{vT[5]}, s[{SWS}:{SWS+3}], s{sT} offen sc1
    """)
    if prof:
        p("s_mov_b64 exec, -1")
        while nst[0] < 2 + len(names) - 1: stamp()
        prof_end('T')
    p("s_endpgm")
    p("K2_END:")
    return p
```

```python
from asmlib import Prog
from k1 import srd, WS_QKV, WS_H, WS_O, WS_OT, WS_FLAG, WS_SIZE, WS_PROF, S_G, S_Q
WS_WF = 20 << 20
WS_SIZE2 = 24 << 20
SLOT = 32 * 1024; NSLOT = 4
XB = NSLOT * SLOT

def gen_k1(cfg):
    D = cfg.get('D', 5); RING = cfg.get('RING', 8); BUD = cfg.get('BUD', 4)
    ROT = cfg.get('rot', 1)
    p = Prog()
    prof = cfg.get('prof', 0)
    SP = [88, 90, 92, 94, 96, 98, 100, 74, 76, 78, 80, 82, 84, 86]
    nst = [0]
    def stamp(name=None):
        if not prof: return
        i = nst[0]; nst[0] += 1
        p(f's_memtime s[{SP[i]}:{SP[i]+1}]' if i else 's_memrealtime s[88:89]')
        if name: cfg.setdefault('_names', []).append(name)
    SX, SQ, SG, SU, SW, S1, S2 = 4, 8, 12, 16, 20, 24, 28
    sW, sMi, sNi, sVar = 32, 33, 34, 35
    sXoff = 36
    sB = [37, 38, 39, 40]
    sRG, sRX, sK23 = 41, 42, 43
    sB2 = [44, 45]
    sR2 = 46
    sWm, sW6 = 47, 48
    sMask, sT, sT2, sT3 = 49, 50, 51, 52
    sHoff = [53, 54, 55, 56]
    sQoff = [57, 58, 59, 60, 61]
    sXl, sNL2E, sRot = 62, 63, 64
    sWo = 2 * 0 + 86
    sM = [66, 68, 70, 72, 84]
    vLane, vXe, vXo = 1, 2, 3
    vXA = [4, 5, 6, 7]; vXB = [8, 9, 10, 11]
    vDe, vDo, vS = 12, 13, 14
    vU = [15, 16, 17, 18]
    vP01, vP23, vPq2, vPs2 = 19, 20, 21, 22
    vL16, vQst, vRstd, vNmr = 23, 24, 25, 26
    vT = list(range(28, 48))
    vHi = {vDe: 4, vDo: 5, vS: 6, vU[0]: 7, vU[1]: 8, vU[2]: 9, vU[3]: 10}
    vSum = 44; vOne = 40
    ACC3 = 48; X0 = 96; WR0 = 128
    GR = ACC3 + 32
    xr = lambda s: f"v[{X0+4*s}:{X0+4*s+3}]"
    stamp(); stamp()
    p(f"""
    s_cmp_ge_u32 s2, 256
    s_cbranch_scc1 K1_END
    s_load_dwordx4 s[76:79], s[0:1], 0
    s_load_dwordx4 s[80:83], s[0:1], 32
    s_load_dwordx2 s[84:85], s[0:1], 72
    s_load_dwordx2 s[74:75], s[0:1], 48
    s_load_dwordx2 s[{sWo}:{sWo+1}], s[0:1], 16
    v_and_b32 v{vLane}, 63, v0
    v_lshrrev_b32 v{vT[0]}, 6, v0
    s_and_b32 s{sT}, s2, 3
    v_readfirstlane_b32 s{sW}, v{vT[0]}
    s_lshl_b32 s{sT}, s{sT}, 2
    s_bfe_u32 s{sT2}, s2, 0x20003
    s_add_u32 s{sMi}, s{sT}, s{sT2}
    s_bfe_u32 s{sT}, s2, 0x10002
    s_lshl_b32 s{sT}, s{sT}, 3
    s_lshr_b32 s{sT3}, s2, 5
    s_add_u32 s{sNi}, s{sT}, s{sT3}
    """)
    if ROT == 2:
        p(f"s_mul_i32 s{sRot}, s{sT3}, 5\ns_lshr_b32 s{sRot}, s{sRot}, 2")
    elif ROT == 3:
        p(f"s_and_b32 s{sT}, s{sT2}, 1\ns_mul_i32 s{sT}, s{sT}, 5\ns_add_u32 s{sRot}, s{sT}, s{sT3}\ns_cmp_ge_u32 s{sRot}, 10\ns_cselect_b32 s{sT}, 10, 0\ns_sub_u32 s{sRot}, s{sRot}, s{sT}")
    elif ROT:
        p(f"""
        s_mul_i32 s{sT}, s{sT2}, 5
        s_lshr_b32 s{sT}, s{sT}, 1
        s_add_u32 s{sRot}, s{sT}, s{sT3}
        s_cmp_ge_u32 s{sRot}, 10
        s_cselect_b32 s{sT}, 10, 0
        s_sub_u32 s{sRot}, s{sRot}, s{sT}
        """)
    else:
        p(f"s_mov_b32 s{sRot}, 0")
    p(f"""
    s_lshr_b32 s{sVar}, s{sNi}, 3
    s_lshl_b32 s{sT}, s{sMi}, 2
    s_add_u32 s{sT}, s{sT}, s{sW}
    s_mul_i32 s{sXoff}, s{sT}, {32*1280}
    s_lshl_b32 s{sXl}, s{sW}, 13
    s_add_u32 s{sXl}, s{sXl}, {XB}
    s_lshr_b32 s{sT}, s{sW}, 1
    s_lshl_b32 s{sWm}, s{sT}, 13
    s_and_b32 s{sT}, s{sW}, 1
    s_lshl_b32 s{sT}, s{sT}, 12
    s_add_u32 s{sWm}, s{sWm}, s{sT}
    v_lshrrev_b32 v{vT[0]}, 3, v{vLane}
    v_mul_u32_u24 v{vT[0]}, 1280, v{vT[0]}
    v_lshrrev_b32 v{vT[1]}, 4, v{vLane}
    v_and_b32 v{vT[2]}, 7, v{vLane}
    v_xor_b32 v{vT[3]}, v{vT[2]}, v{vT[1]}
    v_xor_b32 v{vT[4]}, 4, v{vT[3]}
    v_lshl_add_u32 v{vXe}, v{vT[3]}, 4, v{vT[0]}
    v_lshl_add_u32 v{vXo}, v{vT[4]}, 4, v{vT[0]}
    s_lshl_b32 s{sT3}, s{sRot}, 7
    s_waitcnt lgkmcnt(0)
    """)
    srd(p, SX, 76, 77, 2048 * 1280)
    if cfg.get('dbgt'):
        p(f"""
        s_load_dwordx2 s[92:93], s[0:1], 64
        s_memrealtime s[94:95]
        s_waitcnt lgkmcnt(0)
        """)
    sXc = 65
    p(f"s_mov_b32 s{sXc}, s{sT3}")
    xplace = [('W', 0), ('W', 16384), ('W', SLOT), ('W', SLOT + 16384), ('W', 2*SLOT), ('W', 2*SLOT + 16384), ('W', 3*SLOT), ('W', 3*SLOT + 16384), ('X', 0), ('X', 4096)]
    def xdma(c):
        kind, off = xplace[c]
        out = [f"s_add_u32 s{sT2}, s{sXoff}, s{sXc}"]
        for i in range(4):
            out.append(f"s_add_u32 m0, s{sXl if kind == 'X' else sWm}, {off + i*1024}")
            out.append(f"s_add_u32 s{sT}, s{sT2}, {8*i*1280}")
            out.append(f"buffer_load_dwordx4 v{vXe if i%2==0 else vXo}, s[{SX}:{SX+3}], s{sT} offen lds")
        out += [f"s_add_u32 s{sXc}, s{sXc}, 128", f"s_cmp_ge_u32 s{sXc}, 1280", f"s_cselect_b32 s{sT}, 1280, 0", f"s_sub_u32 s{sXc}, s{sXc}, s{sT}"]
        return out
    def emit_stream(lines, tag=None):
        for l in lines: p(l, tag=tag)
    NF0 = cfg.get('nfirst', 3)
    for c in range(NF0): emit_stream(xdma(c), tag=f'x{c}')
    stamp('x issued')
    srd(p, SQ, 78, 79, 640 * S_Q)
    srd(p, SG, 80, 81, 640 * S_G)
    srd(p, SU, 82, 83, 640 * S_G)
    srd(p, SW, 84, 85, WS_SIZE2)
    if cfg.get('pf', 2) == 1:
        p(f"""
        s_getpc_b64 s[76:77]
        v_lshlrev_b32 v{vT[5]}, 7, v0
        s_and_b32 s76, s76, 0xffffff00
        global_load_dword v27, v{vT[5]}, s[76:77]
        """, tag='pf')
    if cfg.get('pf', 2) >= 2:
        end = 'TEXT_END' if cfg.get('pf', 2) == 2 else 'K1_END'
        p(f"""
        s_getpc_b64 s[76:77]
        K1_PFB:
        s_lshr_b32 s{sT}, s2, 3
        s_lshl_b32 s{sT}, s{sT}, 2
        s_add_u32 s{sT}, s{sT}, s{sW}
        s_lshl_b32 s{sT}, s{sT}, 2
        s_mov_b32 s{sT2}, {end}-K1_PFB-4
        v_add_u32 v{vT[5]}, s{sT}, v{vLane}
        v_lshlrev_b32 v{vT[5]}, 7, v{vT[5]}
        v_min_u32 v{vT[5]}, s{sT2}, v{vT[5]}
        s_mov_b64 exec, 15
        global_load_dword v27, v{vT[5]}, s[76:77]
        s_mov_b64 exec, -1
        """, tag='pf')
    sPd, sPs = 66, 67
    sQd1, sQd2, sQs = 68, 69, 70
    p(f"""
    s_mul_i32 s{sT}, s{sNi}, 3
    s_add_u32 s{sT}, s{sT}, 8
    s_and_b32 s{sT2}, s{sT}, 1
    s_add_u32 s{sPd}, s{sT}, s{sT2}
    s_min_u32 s{sPd}, s{sPd}, 52
    s_xor_b32 s{sT2}, s{sT2}, 1
    s_lshl_b32 s{sT2}, s{sT2}, 1
    s_add_u32 s{sPs}, s{sT}, s{sT2}
    s_min_u32 s{sPs}, s{sPs}, 53
    s_lshl_b32 s{sT}, s{sNi}, 2
    s_add_u32 s{sT2}, s{sT}, 2
    s_cmp_eq_u32 s{sVar}, 0
    s_cselect_b32 s{sPd}, s{sT}, s{sPd}
    s_cselect_b32 s{sPs}, s{sT2}, s{sPs}
    """)
    p(f"""
    s_mul_i32 s{sT}, s{sNi}, 3
    s_mul_i32 s{sT2}, s{sNi}, 5
    s_sub_u32 s{sT2}, s{sT2}, 16
    s_cmp_eq_u32 s{sVar}, 0
    s_cselect_b32 s{sT}, s{sT}, s{sT2}
    s_cselect_b32 s{sT3}, 0, 2
    s_and_b32 s{sT2}, s{sT}, 1
    s_add_u32 s{sQd1}, s{sT}, s{sT2}
    s_add_u32 s{sQd2}, s{sQd1}, s{sT3}
    s_add_u32 s{sT3}, s{sT3}, 2
    s_cmp_eq_u32 s{sT2}, 0
    s_cselect_b32 s{sT3}, s{sT3}, 0
    s_add_u32 s{sQs}, s{sT}, s{sT3}
    s_min_u32 s{sQd1}, s{sQd1}, 58
    s_min_u32 s{sQd2}, s{sQd2}, 58
    s_min_u32 s{sQs}, s{sQs}, 59
    """)
    p(f"s_lshl_b32 s{sT3}, s{sMi}, 2\ns_add_u32 s{sT3}, s{sT3}, s{sW}\ns_mul_i32 s{sT}, s{sT3}, {54*2048}\ns_add_u32 s{sT}, s{sT}, {WS_H}")
    for j, (base, add) in enumerate(((sPd, 0), (sPd, 1), (sPs, 0), (sPs, 1))):
        p(f"s_add_u32 s{sT2}, s{base}, {add}\ns_min_u32 s{sT2}, s{sT2}, 53\ns_lshl_b32 s{sT2}, s{sT2}, 11\ns_add_u32 s{sHoff[j]}, s{sT2}, s{sT}")
    p(f"s_lshl_b32 s{sT}, s{sT3}, 8\ns_add_u32 s{sT}, s{sT}, {WS_QKV}")
    for j, (base, add) in enumerate(((sQd1, 0), (sQd1, 1), (sQd2, 0), (sQd2, 1), (sQs, 0))):
        p(f"s_add_u32 s{sT2}, s{base}, {add}\ns_lshl_b32 s{sT2}, s{sT2}, 17\ns_add_u32 s{sQoff[j]}, s{sT2}, s{sT}")
    sSp = 71
    p(f"""
    s_and_b32 s{sT}, s{sW}, 1
    s_and_b32 s{sSp}, s{sT}, s{sVar}
    s_cmp_eq_u32 s{sT}, 0
    s_cselect_b32 s{sT2}, s{sPd}, s{sPs}
    s_lshl_b32 s{sT2}, s{sT2}, 6
    s_lshr_b32 s{sT3}, s{sW}, 1
    s_mul_i32 s{sT}, s{sT3}, {16*S_G}
    s_add_u32 s{sT2}, s{sT2}, s{sT}
    s_mov_b32 s{sB[0]}, s{sT2}
    s_add_u32 s{sB[1]}, s{sT2}, {8*S_G}
    s_mov_b32 s{sB[2]}, s{sT2}
    s_add_u32 s{sB[3]}, s{sT2}, {8*S_G}
    s_lshl_b32 s{sT}, s{sQd1}, 6
    s_mul_i32 s{sT3}, s{sT3}, {16*S_Q}
    s_add_u32 s{sT}, s{sT}, s{sT3}
    s_add_u32 s{sT3}, s{sT}, {8*S_Q}
    s_cmp_eq_u32 s{sSp}, 1
    s_cselect_b32 s{sB[1]}, s{sT2}, s{sB[1]}
    s_cselect_b32 s{sB[2]}, s{sT}, s{sB[2]}
    s_cselect_b32 s{sB[3]}, s{sT3}, s{sB[3]}
    s_cselect_b32 s{S1}, s{SU}, s{SG}
    s_cselect_b32 s{S1+1}, s{SU+1}, s{SG+1}
    s_mov_b32 s{S1+2}, {640*S_G}
    s_mov_b32 s{S1+3}, 0x20000
    s_cselect_b32 s{S2}, s{SQ}, s{SU}
    s_cselect_b32 s{S2+1}, s{SQ+1}, s{SU+1}
    s_cselect_b32 s{S2+2}, s{SQ+2}, s{SU+2}
    s_mov_b32 s{S2+3}, 0x20000
    s_mov_b32 s{sK23}, {32*S_G}
    s_cselect_b32 s{sK23}, {32*S_Q}, s{sK23}
    s_mul_i32 s{sRG}, s{sRot}, {64*S_G}
    s_mul_i32 s{sRX}, s{sRot}, s{sK23}
    s_lshl_b32 s{sRX}, s{sRX}, 1
    """)
    for pr in range(cfg.get('wpf', 0)):
        t = vT
        p(f"""
        v_and_b32 v{t[0]}, 15, v{vLane}
        v_bfe_u32 v{t[1]}, v{vLane}, 4, 1
        v_lshl_add_u32 v{t[0]}, v{t[1]}, 5, v{t[0]}
        v_lshrrev_b32 v{t[1]}, 5, v{vLane}
        s_add_u32 s{sT}, s{sRot}, {2*pr}
        v_add_u32 v{t[1]}, s{sT}, v{t[1]}
        v_subrev_u32 v{t[2]}, 10, v{t[1]}
        v_min_u32 v{t[1]}, v{t[1]}, v{t[2]}
        v_lshl_add_u32 v{t[0]}, v{t[1]}, 6, v{t[0]}
        s_lshr_b32 s{sT}, s{sK23}, 5
        v_mul_u32_u24 v{t[1]}, {S_G}, v{t[0]}
        v_mul_u32_u24 v{t[2]}, s{sT}, v{t[0]}
        buffer_load_dword v27, v{t[1]}, s[{SG}:{SG+3}], s{sB[0]} offen
        buffer_load_dword v27, v{t[2]}, s[{S2}:{S2+3}], s{sB[2]} offen
        """, tag='pf')
    p(f"""
    s_and_b32 s{sT}, s{sW}, 1
    s_mul_i32 s{sT}, s{sT}, {32*S_Q}
    s_lshl_b32 s{sB2[0]}, s{sQd2}, 6
    s_add_u32 s{sB2[0]}, s{sB2[0]}, s{sT}
    s_lshl_b32 s{sB2[1]}, s{sQs}, 6
    s_add_u32 s{sB2[1]}, s{sB2[1]}, s{sT}
    s_lshr_b32 s{sT}, s{sW}, 1
    s_add_u32 s{sT}, s{sT}, s{sRot}
    s_cmp_ge_u32 s{sT}, 10
    s_cselect_b32 s{sT2}, 10, 0
    s_sub_u32 s{sT}, s{sT}, s{sT2}
    s_mul_i32 s{sR2}, s{sT}, {64*S_Q}
    s_mul_i32 s{sW6}, s{sW}, 6144
    s_mov_b32 s{sMask}, 0xffff0000
    s_mov_b32 s{sNL2E}, 0xbfb8aa3b
    """)
    t = vT
    p(f"""
    v_lshrrev_b32 v{t[0]}, 3, v{vLane}
    v_bfe_u32 v{t[1]}, v{vLane}, 4, 1
    v_lshlrev_b32 v{t[1]}, 2, v{t[1]}
    v_and_b32 v{t[2]}, 7, v{vLane}
    v_xor_b32 v{t[1]}, v{t[1]}, v{t[2]}
    v_lshlrev_b32 v{t[1]}, 4, v{t[1]}
    v_mul_u32_u24 v{t[2]}, {S_G}, v{t[0]}
    v_add_u32 v{t[2]}, v{t[2]}, v{t[1]}
    v_mul_u32_u24 v{vPq2}, {S_Q}, v{t[0]}
    v_add_u32 v{vPq2}, v{vPq2}, v{t[1]}
    v_bfe_u32 v{t[3]}, v{vLane}, 2, 2
    v_lshrrev_b32 v{t[4]}, 5, v{vLane}
    v_lshl_add_u32 v{t[3]}, v{t[4]}, 2, v{t[3]}
    v_bfe_u32 v{t[4]}, v{vLane}, 4, 1
    v_lshl_add_u32 v{t[3]}, v{t[4]}, 3, v{t[3]}
    v_and_b32 v{t[4]}, 3, v{vLane}
    v_lshlrev_b32 v{t[4]}, 4, v{t[4]}
    v_mul_u32_u24 v{t[5]}, {S_G}, v{t[3]}
    v_add_u32 v{t[5]}, v{t[5]}, v{t[4]}
    v_mul_u32_u24 v{vPs2}, {S_Q}, v{t[3]}
    v_add_u32 v{vPs2}, v{vPs2}, v{t[4]}
    s_cmp_eq_u32 s{sSp}, 1
    s_cselect_b64 vcc, -1, 0
    v_cndmask_b32 v{vP01}, v{t[2]}, v{t[5]}, vcc
    v_cndmask_b32 v{vP23}, v{t[2]}, v{vPq2}, vcc
    """)
    p(f"""
    v_lshrrev_b32 v{t[0]}, 5, v{vLane}
    v_bfe_u32 v{t[1]}, v{vLane}, 2, 2
    v_bfe_u32 v{t[2]}, v{vLane}, 4, 1
    v_lshlrev_b32 v{t[2]}, 5, v{t[2]}
    v_and_b32 v{t[3]}, 3, v{vLane}
    v_lshl_add_u32 v{t[2]}, v{t[3]}, 3, v{t[2]}
    v_lshl_add_u32 v{t[3]}, v{t[0]}, 3, v{t[1]}
    v_lshlrev_b32 v{t[3]}, 7, v{t[3]}
    v_bfe_u32 v{t[4]}, v{vLane}, 3, 1
    v_lshl_add_u32 v{t[3]}, v{t[4]}, 6, v{t[3]}
    v_add_u32 v{vDe}, v{t[3]}, v{t[2]}
    v_xor_b32 v{vDo}, 64, v{vDe}
    v_lshl_add_u32 v{t[3]}, v{t[0]}, 2, v{t[1]}
    v_lshl_add_u32 v{t[5]}, v{t[3]}, 6, v{t[2]}
    v_add_u32 v{vS}, 2048, v{t[5]}
    s_cmp_eq_u32 s{sVar}, 0
    s_cselect_b64 vcc, -1, 0
    v_add_u32 v{t[6]}, 4096, v{t[5]}
    v_add_u32 v{t[7]}, 4096, v{vDe}
    v_cndmask_b32 v{vU[0]}, v{t[6]}, v{t[7]}, vcc
    v_add_u32 v{t[6]}, 5120, v{t[5]}
    v_add_u32 v{t[7]}, 6144, v{vDe}
    v_cndmask_b32 v{vU[1]}, v{t[6]}, v{t[7]}, vcc
    v_add_u32 v{t[6]}, 6144, v{vDe}
    v_add_u32 v{t[7]}, 4096, v{vDo}
    v_cndmask_b32 v{vU[2]}, v{t[6]}, v{t[7]}, vcc
    v_add_u32 v{vU[3]}, 6144, v{vDo}
    v_lshlrev_b32 v{vL16}, 4, v{vLane}
    v_and_b32 v{t[1]}, 31, v{vLane}
    v_lshlrev_b32 v{t[2]}, 3, v{t[1]}
    v_lshl_add_u32 v{vQst}, v{t[0]}, 14, v{t[2]}
    """)
    p(f"v_bfe_u32 v{t[2]}, v{vLane}, 1, 3\nv_lshlrev_b32 v{t[3]}, 7, v{t[1]}")
    for jj in range(4):
        p(f"""
        v_add_u32 v{t[4]}, {2*jj}, v{t[0]}
        v_xor_b32 v{t[4]}, v{t[4]}, v{t[2]}
        v_lshl_add_u32 v{t[4]}, v{t[4]}, 4, v{t[3]}
        v_add_u32 v{vXA[jj]}, s{sXl}, v{t[4]}
        v_add_u32 v{vXB[jj]}, s{sWm}, v{t[4]}
        """)
    p(f"""
    v_and_b32 v{t[4]}, 7, v{vLane}
    v_bfe_u32 v{t[5]}, v{vLane}, 4, 1
    v_lshlrev_b32 v{t[5]}, 2, v{t[5]}
    v_cmp_eq_u32 vcc, v{t[4]}, v{t[5]}
    v_mov_b32 v{t[6]}, 0x3f803f80
    v_cndmask_b32 v{vOne}, 0, v{t[6]}, vcc
    v_mov_b32 v{vOne+1}, v{vOne}
    v_mov_b32 v{vOne+2}, v{vOne}
    v_mov_b32 v{vOne+3}, v{vOne}
    """)
    p(f"""
    v_mov_b32 v{t[0]}, 0
    v_mov_b32 v{t[1]}, 0
    v_mov_b32 v{t[2]}, 0
    v_mov_b32 v{t[3]}, 0
    v_mov_b32 v{t[4]}, 0
    s_lshl_b32 s{sT}, s2, 4
    s_add_u32 s{sT}, s{sT}, {WS_FLAG}
    s_mov_b64 exec, 1
    buffer_store_dwordx4 v[{t[0]}:{t[3]}], v{t[4]}, s[{SW}:{SW+3}], s{sT} offen sc1
    s_mov_b64 exec, -1
    """, tag='flagz')
    frags = []; chunks = []
    for c in range(10):
        chunks.append(dict(first=len(frags), pas=1))
        for sl in range(4):
            for u in range(8):
                blk = (len(chunks) - 1) % NSLOT * SLOT + sl * 8192
                va, o = {0: (vDe, 0), 1: (vDe, 2048), 2: (vDo, 0), 3: (vDo, 2048)}.get(u, (vU[u-4] if u >= 4 else None, 0))
                frags.append((1, u, 4*c + sl, len(chunks) - 1, va, blk + o))
    for c in range(5):
        chunks.append(dict(first=len(frags), pas=2))
        for sl in range(8):
            for u in range(3):
                blk = (len(chunks) - 1) % NSLOT * SLOT + sl * 3072
                frags.append((2, 8 + u, 8*c + sl, len(chunks) - 1, (vDe, vDo, vS)[u], blk))
    NF = len(frags)
    FOLD = cfg.get('fold', 1)
    vF = [vP01, vP23, vXe, vXo]
    def fold1():
        return [f"v_add_u32 v{vXe}, s{sB[2]}, v{vP23}", f"s_sub_u32 s{sT3}, s{sB[3]}, 1024", f"v_add_u32 v{vXo}, s{sT3}, v{vP23}",
                f"s_sub_u32 s{sT3}, s{sB[1]}, 1024", f"v_add_u32 v{vP23}, s{sT3}, v{vP01}", f"v_add_u32 v{vP01}, s{sB[0]}, v{vP01}"]
    def fold2():
        return [f"v_add_u32 v{vF[0]}, s{sB2[0]}, v{vPq2}", f"s_add_u32 s{sT3}, s{sB2[0]}, {8*S_Q - 1024}", f"v_add_u32 v{vF[1]}, s{sT3}, v{vPq2}",
                f"v_add_u32 v{vF[2]}, s{sB2[1]}, v{vPs2}"]
    def wdma(c):
        ch = chunks[c]; base = (c % NSLOT) * SLOT
        out = []
        if ch['pas'] == 1:
            for i in range(2):
                for d in range(4):
                    S = (SG, S1, S2, S2)[d]; va = vP01 if d < 2 else vP23
                    if FOLD:
                        if d % 2 == 0: out.append(f"s_add_u32 m0, s{sWm}, {base + i*16384 + d*1024}")
                        out.append(f"buffer_load_dwordx4 v{vF[d]}, s[{S}:{S+3}], s{sRG if d < 2 else sRX} offen offset:{1024*(d%2)} lds")
                    else:
                        out.append(f"s_add_u32 m0, s{sWm}, {base + i*16384 + d*1024}")
                        out.append(f"s_add_u32 s{sT3}, s{sB[d]}, s{sRG if d < 2 else sRX}")
                        out.append(f"buffer_load_dwordx4 v{va}, s[{S}:{S+3}], s{sT3} offen lds")
                if i == 0:
                    out.append(f"s_add_u32 s{sRG}, s{sRG}, {32*S_G}")
                    out.append(f"s_add_u32 s{sRX}, s{sRX}, s{sK23}")
            out += [f"s_add_u32 s{sRG}, s{sRG}, {32*S_G}", f"s_add_u32 s{sRX}, s{sRX}, s{sK23}",
                    f"s_cmp_ge_u32 s{sRG}, {640*S_G}", f"s_cselect_b32 s{sRG}, 0, s{sRG}", f"s_cselect_b32 s{sRX}, 0, s{sRX}"]
        else:
            if FOLD and c == 10: out += fold2()
            for i in range(2):
                if FOLD:
                    out.append(f"s_add_u32 m0, s{sW6}, {base + i*3072}")
                    out.append(f"buffer_load_dwordx4 v{vF[0]}, s[{SQ}:{SQ+3}], s{sR2} offen lds")
                    out.append(f"buffer_load_dwordx4 v{vF[1]}, s[{SQ}:{SQ+3}], s{sR2} offen offset:1024 lds")
                    out.append(f"s_add_u32 m0, s{sW6}, {base + i*3072 + 2048}")
                    out.append(f"buffer_load_dwordx4 v{vF[2]}, s[{SQ}:{SQ+3}], s{sR2} offen lds")
                    if i == 0: out.append(f"s_add_u32 s{sR2}, s{sR2}, {16*S_Q}")
                    continue
                for (va, b, extra, pos) in ((vPq2, sB2[0], 0, 0), (vPq2, sB2[0], 8*S_Q, 1024), (vPs2, sB2[1], 0, 2048)):
                    out.append(f"s_add_u32 m0, s{sW6}, {base + i*3072 + pos}")
                    out.append(f"s_add_u32 s{sT3}, s{b}, s{sR2}")
                    if extra + i*16*S_Q: out.append(f"s_add_u32 s{sT3}, s{sT3}, {extra + i*16*S_Q}")
                    out.append(f"buffer_load_dwordx4 v{va}, s[{SQ}:{SQ+3}], s{sT3} offen lds")
            adv = (112 if FOLD else 128) * S_Q
            out += [f"s_add_u32 s{sR2}, s{sR2}, {adv}", f"s_cmp_ge_u32 s{sR2}, {640*S_Q}", f"s_cselect_b32 s{sT3}, {640*S_Q}, 0", f"s_sub_u32 s{sR2}, s{sR2}, s{sT3}"]
        return out
    def stats_mfma(s, first):
        c0 = "0" if first else f"v[{GR}:{GR+15}]"
        c1 = "0" if first else f"v[{vSum}:{vSum+3}]"
        p(f"v_mfma_f32_32x32x16_bf16 v[{GR}:{GR+15}], {xr(s)}, {xr(s)}, {c0}")
        p(f"v_mfma_f32_16x16x32_bf16 v[{vSum}:{vSum+3}], v[{vOne}:{vOne+3}], {xr(s)}, {c1}")
    for c in range(10):
        p.waitvm(f'x{c}')
        if c == 0: stamp('x0 arrived')
        if c == 4: stamp('x4 arrived')
        kind, off = xplace[c]
        for jj in range(4):
            if kind == 'X': p(f"ds_read_b128 {xr(4*c+jj)}, v{vXA[jj]} offset:{off}", tag=f'xr{c}')
            else:
                if off >= 65536 and xplace[c-1][1] < 65536: p(f"v_add_u32 v{vXB[jj]}, 0x10000, v{vXB[jj]}")
                p(f"ds_read_b128 {xr(4*c+jj)}, v{vXB[jj]} offset:{off % 65536}", tag=f'xr{c}')
        if c + NF0 < 10: emit_stream(xdma(c + NF0), tag=f'x{c+NF0}')
        if c > 0:
            for jj in range(4): stats_mfma(4*(c-1)+jj, c == 1 and jj == 0)
        if c + NF0 == 9 + cfg.get('wdel', 0):
            p.waitlg('xr0'); p.waitlg('xr1')
            if FOLD: emit_stream(fold1())
            emit_stream(wdma(0), tag='w0')
        if c + NF0 == 10 + cfg.get('wdel', 0):
            p.waitlg('xr2'); p.waitlg('xr3')
            emit_stream(wdma(1), tag='w1')
    for jj in range(4): stats_mfma(36 + jj, False)
    stamp('x+stats')
    for va, hi in vHi.items(): p(f"v_add_u32 v{hi}, 0x10000, v{va}")
    for b, bit in enumerate((0, 1, 3, 4, 2)):
        p(f"v_bfe_u32 v{t[0]}, v{vLane}, {bit}, 1\nv_cmp_eq_u32 s[{sM[b]}:{sM[b]+1}], 1, v{t[0]}")
    G = lambda r: f"v{GR+r}"
    for i in range(8): p(f"v_cndmask_b32 v{t[i]}, {G(2*i)}, {G(2*i+1)}, s[{sM[0]}:{sM[0]+1}]")
    for i in range(4): p(f"v_cndmask_b32 v{t[i]}, v{t[2*i]}, v{t[2*i+1]}, s[{sM[1]}:{sM[1]+1}]")
    for i in range(2): p(f"v_cndmask_b32 v{t[i]}, v{t[2*i]}, v{t[2*i+1]}, s[{sM[2]}:{sM[2]+1}]")
    p(f"v_cndmask_b32 v{t[0]}, v{t[0]}, v{t[1]}, s[{sM[3]}:{sM[3]+1}]")
    p(f"""
    v_mov_b32 v{t[1]}, v{t[0]}
    v_permlane32_swap_b32 v{t[0]}, v{t[1]}
    v_cndmask_b32 v{t[0]}, v{t[0]}, v{t[1]}, s[{sM[4]}:{sM[4]+1}]
    v_mul_f32 v{t[2]}, {1.0/640!r}, v{vSum}
    v_mul_f32 v{t[0]}, {1.0/640!r}, v{t[0]}
    v_fma_f32 v{t[0]}, -v{t[2]}, v{t[2]}, v{t[0]}
    v_max_f32 v{t[0]}, 0, v{t[0]}
    v_add_f32 v{t[0]}, 0x3727c5ac, v{t[0]}
    v_rsq_f32 v{vRstd}, v{t[0]}
    v_mul_f32 v{vNmr}, v{t[2]}, v{vRstd}
    v_mul_f32 v{vNmr}, -1.0, v{vNmr}
    """)
    def norm_stream(s):
        out = []
        regs = [X0 + 4*s + i for i in range(4)]
        for h in range(2):
            a, b = regs[2*h], regs[2*h+1]
            t0, t1, t2, t3 = vT[4*h:4*h+4]
            out += [f"v_lshlrev_b32 v{t0}, 16, v{a}", f"v_and_b32 v{t1}, s{sMask}, v{a}",
                    f"v_lshlrev_b32 v{t2}, 16, v{b}", f"v_and_b32 v{t3}, s{sMask}, v{b}",
                    f"v_fma_f32 v{t0}, v{t0}, v{vRstd}, v{vNmr}", f"v_fma_f32 v{t1}, v{t1}, v{vRstd}, v{vNmr}",
                    f"v_fma_f32 v{t2}, v{t2}, v{vRstd}, v{vNmr}", f"v_fma_f32 v{t3}, v{t3}, v{vRstd}, v{vNmr}",
                    f"v_cvt_pk_bf16_f32 v{a}, v{t0}, v{t1}", f"v_cvt_pk_bf16_f32 v{b}, v{t2}, v{t3}"]
        return out
    accA = lambda u: 16 * u
    def glu_stream(ug, uu, soff):
        out = []
        for j in range(2):
            pk = vT[8 + 4*j: 12 + 4*j]
            for q in range(2):
                r0 = 8*j + 4*q
                g = vT[0:4]; u = vT[4:8]
                out += [f"v_accvgpr_read_b32 v{g[i]}, a{accA(ug)+r0+i}" for i in range(4)]
                out += [f"v_mul_f32 v{g[i]}, s{sNL2E}, v{g[i]}" for i in range(4)]
                out += [f"v_exp_f32 v{g[i]}, v{g[i]}" for i in range(4)]
                out += [f"v_accvgpr_read_b32 v{u[i]}, a{accA(uu)+r0+i}" for i in range(4)]
                out += [f"v_add_f32 v{g[i]}, 1.0, v{g[i]}" for i in range(4)]
                out += [f"v_rcp_f32 v{g[i]}, v{g[i]}" for i in range(4)]
                out += [f"v_mul_f32 v{g[i]}, v{g[i]}, v{u[i]}" for i in range(4)]
                out += [f"v_cvt_pk_bf16_f32 v{pk[2*q]}, v{g[0]}, v{g[1]}", f"v_cvt_pk_bf16_f32 v{pk[2*q+1]}, v{g[2]}, v{g[3]}"]
            out.append(f"buffer_store_dwordx4 v[{pk[0]}:{pk[3]}], v{vL16}, s[{SW}:{SW+3}], s{soff} offen offset:{1024*j} sc1")
        return out
    def qkv_stream(accbase, isA, soff):
        out = []
        for a in range(4):
            if isA:
                g = vT[4*(a%2): 4 + 4*(a%2)]
                out += [f"v_accvgpr_read_b32 v{g[i]}, a{accbase+4*a+i}" for i in range(4)]
                src = g; pk = vT[8 + 2*a: 10 + 2*a]
            else:
                src = [accbase + 4*a + i for i in range(4)]; pk = [accbase + 4*a, accbase + 4*a + 1]
            out += [f"v_cvt_pk_bf16_f32 v{pk[0]}, v{src[0]}, v{src[1]}", f"v_cvt_pk_bf16_f32 v{pk[1]}, v{src[2]}, v{src[3]}"]
            out.append(f"s_add_u32 s{sT2}, s{soff}, {a*32768}")
            out.append(f"buffer_store_dwordx2 v[{pk[0]}:{pk[1]}], v{vQst}, s[{SW}:{SW+3}], s{sT2} offen sc1")
        return out
    if cfg.get('nofill'):
        norm_stream = lambda s: []
        glu_stream = lambda a, b, c: []
    cost = lambda l: 2 if l.startswith(('v_exp', 'v_rcp')) else 1
    def wreg(i): return f"a[{WR0+4*(i%RING)}:{WR0+4*(i%RING)+3}]"
    def tr_reads(i):
        (pas, u, s, c, va, off) = frags[i]
        b = WR0 + 4 * (i % RING)
        if off >= 65536: va = vHi[va]; off -= 65536
        return [f"ds_read_b64_tr_b16 a[{b}:{b+1}], v{va} offset:{off}", f"ds_read_b64_tr_b16 a[{b+2}:{b+3}], v{va} offset:{off+512}"]
    def acc(u): return f"a[{accA(u)}:{accA(u)+15}]" if u < 8 else f"v[{ACC3+16*(u-8)}:{ACC3+16*(u-8)+15}]"
    def last_m0():
        x = p.ins[-1]
        return (not isinstance(x, tuple)) and ('x', 'm0') in x.dst
    DBL = cfg.get('dbl', 1); PW = cfg.get('pw', 1)
    DGAP = cfg.get('dgap', 2 if DBL else 3)
    def main(i0, i1, q):
        for i in range(i0, i1):
            (pas, u, s, c, va, off) = frags[i]
            cin = "0" if s == 0 else acc(u)
            if pas == 1 and u == 0:
                while q['norm'] and q['norm'][0][0] <= s: p(q['norm'].pop(0)[1])
            if PW and i % 2 == 0 and i + 1 < NF: p.waitlg(f'f{i+1}')
            p(f"v_mfma_f32_32x32x16_bf16 {acc(u)}, {wreg(i)}, {xr(s)}, {cin}")
            j = i + D
            if j < NF:
                cj = frags[j][3]
                if j == chunks[cj]['first'] and DBL and cj == 1:
                    if not cfg.get('nowait'): p.waitvm('w1')
                    if not cfg.get('nobar'): p("s_barrier")
                elif j == chunks[cj]['first'] and not (DBL and cj % 2 == 1):
                    while q['dma']:
                        l, tg = q['dma'].pop(0); p(l, tag=tg)
                    last = min(cj + 1, len(chunks) - 1) if DBL else cj
                    if not cfg.get('nowait'): p.waitvm(f'w{last}')
                    if not cfg.get('nobar'): p("s_barrier")
                    for cn in ((cj + 2, cj + 3) if DBL else (cj + 2,)):
                        if cn < len(chunks) and not cfg.get('nodma'):
                            q['dma'] += [(l, f'w{cn}') for l in wdma(cn)]
                    q['next_dma'] = i
                emit_stream(tr_reads(j), tag=f'f{j}')
            bud = BUD
            if pas == 1 and u == 0 and s + 1 < 40:
                q['norm'] += [(s + 1, l) for l in norm_stream(s + 1)]
            if q['dma'] and i >= q['next_dma']:
                while q['dma']:
                    l, tg = q['dma'].pop(0); p(l, tag=tg); bud -= 1
                    if l.startswith('buffer'): break
                while q['dma'] and q['dma'][0][0].startswith('s_'):
                    l, tg = q['dma'].pop(0); p(l, tag=tg); bud -= 1
                q['next_dma'] = i + DGAP
            if q['extra'] and q['extra'][0][0] <= i:
                grp = q['extra'].pop(0)[1]
                for (l, tg) in grp:
                    if l == 'WAITVM': p.waitvm(tg)
                    elif l == 'WAITLG': p.waitlg(tg)
                    else: p(l, tag=tg); bud -= 1
            while bud > 0:
                if q['norm']: p(q['norm'].pop(0)[1]); bud -= 1
                elif q['epi'] and q['epi'][0][0] <= i:
                    l = q['epi'].pop(0)[1]; p(l); bud -= cost(l)
                else: break
    extra = []
    if cfg.get('repack', 1):
        SR = S1
        SRP = 76
        sJ, sJb, sJs, sJo = 80, 81, 82, 83
        vJ = [vT[12], vT[13], vT[14], vT[15], vT[16]]
        vJa = vT[17]
        setup = []
        A = setup.append
        for l in f"""s_lshl_b32 s{sJ}, s2, 2
        s_add_u32 s{sJ}, s{sJ}, s{sW}
        s_cmp_ge_u32 s{sJ}, 592
        s_cselect_b32 s3, 1, 0
        s_cselect_b32 s{sT}, 592, 0
        s_sub_u32 s{sJ}, s{sJ}, s{sT}
        s_lshr_b32 s{sT}, s{sJ}, 2
        s_and_b32 s{sJo}, s{sJ}, 3
        s_sub_u32 s{sT2}, s{sT}, 108
        s_mul_i32 s{sJb}, s{sT2}, 6554
        s_lshr_b32 s{sJb}, s{sJb}, 16
        s_mul_i32 s{sJs}, s{sJb}, 10
        s_sub_u32 s{sJs}, s{sT2}, s{sJs}
        s_mul_i32 s{sJb}, s{sJb}, 160
        s_cmp_lt_u32 s{sJs}, 8
        s_cselect_b32 s{sT2}, 20, 80
        s_cselect_b32 s{sT3}, 0, 624
        s_mul_i32 s{sT2}, s{sT2}, s{sJs}
        s_cselect_b32 s{sJs}, 4, 20
        s_add_u32 s{sJb}, s{sJb}, s{sT2}
        s_sub_u32 s{sJb}, s{sJb}, s{sT3}
        s_mov_b32 s{SRP+3}, {640*1280}
        s_lshl_b32 s{sT2}, s{sT}, 4
        s_cmp_lt_u32 s{sT}, 108
        s_cselect_b32 s{SRP}, s74, s{sWo}
        s_cselect_b32 s{SRP+1}, s75, s{sWo+1}
        s_cselect_b32 s{SRP+2}, {1728*1280}, s{SRP+3}
        s_cselect_b32 s{sJb}, s{sT2}, s{sJb}
        s_cselect_b32 s{sJs}, 4, s{sJs}
        s_and_b32 s{SRP+1}, s{SRP+1}, 0xffff
        s_mov_b32 s{SRP+3}, 0x20000
        s_mul_i32 s{sJb}, s{sJb}, 1280
        s_mul_i32 s{sT2}, s{sJo}, 320
        s_add_u32 s{sJb}, s{sJb}, s{sT2}
        s_mul_i32 s{sJo}, s{sJo}, {2*148*2560}
        s_mul_i32 s{sT}, s{sT}, 2560
        s_add_u32 s{sJo}, s{sJo}, s{sT}
        s_add_u32 s{sJo}, s{sJo}, {WS_WF}""".split('\n'): A(l.strip())
        for i in range(5):
            for l in f"""v_add_u32 v{t[0]}, {64*i}, v{vLane}
            v_mul_u32_u24 v{t[1]}, 3277, v{t[0]}
            v_lshrrev_b32 v{t[1]}, 16, v{t[1]}
            v_mul_u32_u24 v{t[2]}, 20, v{t[1]}
            v_sub_u32 v{t[0]}, v{t[0]}, v{t[2]}
            v_lshrrev_b32 v{t[2]}, 2, v{t[1]}
            v_mul_u32_u24 v{t[2]}, s{sJs}, v{t[2]}
            v_and_b32 v{t[1]}, 3, v{t[1]}
            v_add_u32 v{t[1]}, v{t[1]}, v{t[2]}
            v_mul_u32_u24 v{t[1]}, 1280, v{t[1]}
            v_lshl_add_u32 v{vJ[i]}, v{t[0]}, 4, v{t[1]}""".split('\n'): A(l.strip())
        for l in f"""v_lshrrev_b32 v{t[0]}, 5, v{vLane}
        v_bfe_u32 v{t[1]}, v{vLane}, 2, 2
        v_lshl_add_u32 v{t[1]}, v{t[0]}, 2, v{t[1]}
        v_mul_u32_u24 v{t[1]}, 320, v{t[1]}
        v_bfe_u32 v{t[2]}, v{vLane}, 4, 1
        v_lshl_add_u32 v{t[1]}, v{t[2]}, 5, v{t[1]}
        v_and_b32 v{t[2]}, 3, v{vLane}
        v_lshl_add_u32 v{t[1]}, v{t[2]}, 3, v{t[1]}
        v_add_u32 v{vJa}, s{sXl}, v{t[1]}""".split('\n'): A(l.strip())
        emit_stream(setup)
        for i in range(5):
            p(f"s_add_u32 m0, s{sXl}, {1024*i}\ns_nop 0")
            p(f"buffer_load_dwordx4 v{vJ[i]}, s[{SRP}:{SRP+3}], s{sJb} offen lds", tag='rp')
        RR = ACC3
        grp = [('WAITVM', 'rp')]
        n = 0
        for nt in range(2):
            for u in range(3):
                off = nt*160 + u*64
                grp += [(f"ds_read_b64_tr_b16 v[{RR+4*n}:{RR+4*n+1}], v{vJa} offset:{off}", 'rpr'), (f"ds_read_b64_tr_b16 v[{RR+4*n+2}:{RR+4*n+3}], v{vJa} offset:{off+2560}", 'rpr')]
                n += 1
        i_rp = cfg.get('rp_at', 40)
        extra.append((i_rp, grp[:7])); extra.append((i_rp + 2, grp[7:]))
        st = []
        n = 0
        for nt in range(2):
            for u in range(3):
                skip = [("s_cmp_eq_u32 s3, 1", None), (f"s_cbranch_scc1 RPS{n}", None)]
                if u < 2:
                    st.append(skip + [(f"s_add_u32 s{sJb}, s{sJo}, {nt*148*2560 + u*1024}", None), (f"buffer_store_dwordx4 v[{RR+4*n}:{RR+4*n+3}], v{vL16}, s[{SW}:{SW+3}], s{sJb} offen sc1", 'nc'), (f"RPS{n}:", None)])
                else:
                    st.append(skip + [(f"v_lshrrev_b32 v{vJ[0]}, 5, v{vLane}", None), (f"v_and_b32 v{vJ[1]}, 15, v{vLane}", None), (f"v_lshl_add_u32 v{vJ[0]}, v{vJ[0]}, 4, v{vJ[1]}", None),
                               (f"v_lshlrev_b32 v{vJ[0]}, 4, v{vJ[0]}", None), (f"s_add_u32 s{sJb}, s{sJo}, {nt*148*2560 + 2048}", None),
                               (f"s_mov_b32 exec_lo, 0xffff", None), (f"s_mov_b32 exec_hi, 0xffff", None),
                               (f"buffer_store_dwordx4 v[{RR+4*n}:{RR+4*n+3}], v{vJ[0]}, s[{SW}:{SW+3}], s{sJb} offen sc1", 'nc'), (f"s_mov_b64 exec, -1", None), (f"RPS{n}:", None)])
                n += 1
        st[0] = [('WAITLG', 'rpr')] + st[0]
        for k, g in enumerate(st): extra.append((i_rp + 8 + 2*k, g))
    emit_stream(norm_stream(0))
    p.waitvm('w0')
    p("s_barrier")
    q = dict(dma=[(l, 'w2') for l in wdma(2)] + ([(l, 'w3') for l in wdma(3)] if DBL else []), norm=[], epi=[], extra=extra, next_dma=0)
    if cfg.get('nodma'): q['dma'] = []
    for j in range(D): emit_stream(tr_reads(j), tag=f'f{j}')
    n1 = 320
    stamp('main start')
    main(0, n1, q)
    stamp('pass1 end')
    q['epi'] += [(n1 + 1, l) for l in glu_stream(0, 1, sHoff[0])]
    q['epi'] += [(n1 + 1, l) for l in glu_stream(2, 3, sHoff[1])]
    q['epi'] += [(n1 + 1, l) for l in glu_stream(4, 5, sHoff[2])]
    nsplit = cfg.get('nsplit', n1 + 90)
    main(n1, nsplit, q)
    import copy
    p(f"s_cmp_lg_u32 s{sVar}, 0\ns_cbranch_scc1 K1_VARB")
    p.save('fork')
    for var in (0, 1):
        qq = copy.deepcopy(q)
        if var == 1:
            p("K1_VARB:")
            p.restore('fork')
            qq['epi'] += [(nsplit, l) for l in qkv_stream(accA(6), True, sQoff[0])]
            qq['epi'] += [(nsplit, l) for l in qkv_stream(accA(7), True, sQoff[1])]
        else:
            qq['epi'] += [(nsplit, l) for l in glu_stream(6, 7, sHoff[3])]
        main(nsplit, NF, qq)
        assert not qq['dma'] and not qq['norm'] and not qq['extra']
        left = [l for (_, l) in qq['epi']]
        if cfg.get('verbose'): print(f"; variant {var}: {len(left)} epilogue instrs left after main loop")
        n0 = nst[0]
        stamp('mfma done' if var == 0 else None)
        emit_stream(left)
        for j in range(3): emit_stream(qkv_stream(ACC3 + 16*j, False, sQoff[2 + j]))
        if prof:
            stamp('issued' if var == 0 else None)
            p("s_waitcnt vmcnt(0) lgkmcnt(0)")
            stamp('drained' if var == 0 else None)
            p(f"s_memrealtime s[{SP[nst[0]]}:{SP[nst[0]]+1}]\ns_waitcnt lgkmcnt(0)")
            vals = [SP[nst[0]]] + SP[:nst[0]]
            for n in range(16): p(f"v_mov_b32 v{100+n}, s{vals[n]}" if n < len(vals) else f"v_mov_b32 v{100+n}, 0")
            p(f"s_lshl_b32 s{sT}, s2, 2\ns_add_u32 s{sT}, s{sT}, s{sW}\ns_lshl_b32 s{sT}, s{sT}, 6\ns_add_u32 s{sT}, s{sT}, {WS_PROF}\nv_mov_b32 v116, 0\ns_mov_b64 exec, 1")
            for n in range(4): p(f"buffer_store_dwordx4 v[{100+4*n}:{103+4*n}], v116, s[{SW}:{SW+3}], s{sT} offen offset:{16*n}")
        nst[0] = n0
        if cfg.get('dbgt'):
            p(f"""
            s_waitcnt vmcnt(0)
            s_memrealtime s[90:91]
            s_waitcnt lgkmcnt(0)
            s_lshr_b32 s96, s2, 3
            s_lshl_b32 s96, s96, 8
            s_add_u32 s96, s96, s{sW}
            s_and_b32 s96, s96, 0xffffff03
            s_cmp_lg_u32 s96, 0
            s_cbranch_scc1 DBG1_{var}
            s_lshl_b32 s96, s2, 3
            v_mov_b32 v12, s94
            v_mov_b32 v13, s90
            v_mov_b32 v14, s96
            s_mov_b64 exec, 1
            global_store_dwordx2 v14, v[12:13], s[92:93]
            DBG1_{var}:
            """)
        p("s_endpgm")
    p("K1_END:")
    return p
```

```python
from asmlib import Prog
from k1 import srd, WS_QKV, WS_H, WS_O, WS_OT, WS_FLAG, WS_SIZE, WS_PROF

G_WO = 10 * 2560
G_LDS = G_WO + 2560
T_BASE = 4 * G_LDS
WS_WF = 20 << 20; WS_SIZE2 = 24 << 20
PS = 4096 + 32
KP = T_BASE
VP = KP + 6 * PS
SYNC = VP + 6 * PS + 64
K2_LDS = SYNC + 64
WS_PROF2 = (19 << 20) + (640 << 10)
NEG = 0xc7000000
C_SC = 1.4426950408889634 / (20 ** 0.5)

def gen_k2(cfg):
    p = Prog()
    prof = cfg.get('prof', 0)
    SXS, SWD, SWO, SWS, SOUT = 4, 8, 12, 16, 20
    sW, sMt, sNt, sHd, sM = 32, 33, 34, 35, 36
    sT, sT2, sT3 = 37, 38, 39
    sRot = 31
    SP = [88, 90, 92, 94, 96, 98, 100, 74, 76, 78, 80, 82, 84, 86]
    nst = [0]
    names = cfg.setdefault('_names2', [])
    def stamp(name=None):
        if not prof: return
        i = nst[0]; nst[0] += 1
        p(f's_memtime s[{SP[i]}:{SP[i]+1}]' if i else 's_memrealtime s[88:89]')
        if name: names.append(name)
    def prof_end(role):
        if not prof: return
        p("s_waitcnt vmcnt(0) lgkmcnt(0)")
        stamp('drained' if role == 'G' else None)
        k = nst[0]
        p(f"s_memrealtime s[{SP[k]}:{SP[k]+1}]\ns_waitcnt lgkmcnt(0)")
        vals = [SP[k]] + SP[:k]
        for n in range(16): p(f"v_mov_b32 v{100+n}, s{vals[n]}" if n < len(vals) else f"v_mov_b32 v{100+n}, 0")
        off = WS_PROF2 + (65536 if role == 'T' else 0)
        p(f"s_lshl_b32 s{sT}, s2, 2\ns_and_b32 s{sT2}, s{sW}, 3\ns_add_u32 s{sT}, s{sT}, s{sT2}\ns_lshl_b32 s{sT}, s{sT}, 6\ns_add_u32 s{sT}, s{sT}, {off}\nv_mov_b32 v116, 0\ns_mov_b64 exec, 1")
        for n in range(4): p(f"buffer_store_dwordx4 v[{100+4*n}:{103+4*n}], v116, s[{SWS}:{SWS+3}], s{sT} offen offset:{16*n}")
    vLane = 1
    stamp(); stamp()
    p(f"""
    s_cmp_ge_u32 s2, 256
    s_cbranch_scc1 K2_END
    s_load_dwordx2 s[62:63], s[0:1], 0
    s_load_dwordx2 s[64:65], s[0:1], 16
    s_load_dwordx4 s[68:71], s[0:1], 48
    s_load_dwordx2 s[66:67], s[0:1], 72
    v_and_b32 v{vLane}, 63, v0
    v_lshrrev_b32 v2, 6, v0
    s_nop 0
    v_readfirstlane_b32 s{sW}, v2
    s_and_b32 s{sT}, s2, 7
    s_lshr_b32 s{sT2}, s2, 3
    """)
    if cfg.get('map', 0) == 0:
        p(f"""
        s_lshl_b32 s{sHd}, s{sT}, 2
        s_and_b32 s{sT3}, s{sT2}, 3
        s_add_u32 s{sHd}, s{sHd}, s{sT3}
        s_lshr_b32 s{sM}, s{sT2}, 2
        s_lshr_b32 s{sMt}, s{sT}, 1
        s_lshl_b32 s{sMt}, s{sMt}, 3
        s_and_b32 s{sT3}, s{sT2}, 7
        s_add_u32 s{sMt}, s{sMt}, s{sT3}
        s_and_b32 s{sNt}, s{sT}, 1
        s_lshl_b32 s{sNt}, s{sNt}, 2
        s_lshr_b32 s{sRot}, s{sT2}, 3
        s_add_u32 s{sNt}, s{sNt}, s{sRot}
        s_mul_i32 s{sRot}, s{sRot}, {cfg.get('rn', 7)}
        s_mul_i32 s{sT3}, s{sT3}, {cfg.get('rm', 3)}
        s_add_u32 s{sRot}, s{sRot}, s{sT3}
        """)
    else:
        p(f"""
        s_mov_b32 s{sHd}, s{sT2}
        s_mov_b32 s{sM}, s{sT}
        s_and_b32 s{sT3}, s{sT2}, 3
        s_lshl_b32 s{sMt}, s{sT}, 2
        s_add_u32 s{sMt}, s{sMt}, s{sT3}
        s_lshr_b32 s{sNt}, s{sT2}, 2
        s_mul_i32 s{sRot}, s{sNt}, {cfg.get('rn', 3)}
        s_mul_i32 s{sT3}, s{sT3}, {cfg.get('rm', 7)}
        s_add_u32 s{sRot}, s{sRot}, s{sT3}
        """)
    p(f"""
    s_cmp_ge_u32 s{sRot}, 27
    s_cselect_b32 s{sT3}, 27, 0
    s_sub_u32 s{sRot}, s{sRot}, s{sT3}
    s_cmp_ge_u32 s{sRot}, 27
    s_cselect_b32 s{sT3}, 27, 0
    s_sub_u32 s{sRot}, s{sRot}, s{sT3}
    s_waitcnt lgkmcnt(0)
    """)
    srd(p, SWS, 66, 67, WS_SIZE2)
    if cfg.get('dbgt'):
        p(f"""
        s_load_dwordx2 s[92:93], s[0:1], 64
        s_memrealtime s[94:95]
        s_waitcnt lgkmcnt(0)
        """)
    if cfg.get('pf2', 1):
        p(f"""
        s_getpc_b64 s[86:87]
        K2_PFB:
        s_lshr_b32 s{sT}, s2, 3
        s_lshl_b32 s{sT}, s{sT}, 3
        s_add_u32 s{sT}, s{sT}, s{sW}
        s_lshl_b32 s{sT}, s{sT}, 7
        s_min_u32 s{sT}, s{sT}, TEXT_END-K2_PFB-4
        v_mov_b32 v3, s{sT}
        s_mov_b64 exec, 1
        global_load_dword v0, v3, s[86:87]
        s_mov_b64 exec, -1
        """, tag='pf')
    p(f"s_cmp_ge_u32 s{sW}, 4\ns_cbranch_scc1 K2_T")
    p.save('fork')
    vL16, vL16b, vU2, vOT = 2, 3, 4, 5
    vRow = [6, 7, 8]
    vSt, vLin, vLu2 = 9, 10, 11
    vT = list(range(12, 28)); vX = 28
    LA = 3; NS = 4
    U2R = 38
    ACT0 = 52; XR = 84; ACC = 96
    sLds, sWo, sAo, sFlag, sXo, sA1, sWb = 40, 41, 42, 46, 47, 48, 43
    sMlo, sMhi = 50, 52
    p(f"""
    s_mul_i32 s{sT}, s{sNt}, 148
    s_mul_i32 s{sT2}, s{sW}, 27
    s_add_u32 s{sT}, s{sT}, s{sT2}
    s_mul_i32 s{sWo}, s{sT}, 2560
    s_add_u32 s{sWo}, s{sWo}, {WS_WF}
    s_mul_i32 s{sAo}, s{sMt}, {2*108*1024}
    s_lshl_b32 s{sT2}, s{sT2}, 10
    s_add_u32 s{sAo}, s{sAo}, s{sT2}
    s_add_u32 s{sAo}, s{sAo}, {WS_H}
    v_lshlrev_b32 v{vL16}, 4, v{vLane}
    v_add_u32 v{vL16b}, {108*1024}, v{vL16}
    v_lshrrev_b32 v{vT[0]}, 5, v{vLane}
    v_and_b32 v{vT[1]}, 15, v{vLane}
    v_lshl_add_u32 v{vT[2]}, v{vT[0]}, 4, v{vT[1]}
    v_lshlrev_b32 v{vT[2]}, 4, v{vT[2]}
    v_bfe_u32 v{vT[3]}, v{vLane}, 4, 1
    v_mul_u32_u24 v{vT[3]}, 2560, v{vT[3]}
    v_add_u32 v{vU2}, v{vT[2]}, v{vT[3]}
    """)
    sw = f"s[{SWS}:{SWS+3}]"
    def h_loads(ki):
        if cfg.get('noact') and ki >= LA: return []
        b = 8 * (ki % NS); r = ACT0 + 8 * (ki % NS); tg = f'k{ki}'
        L = [(f"buffer_load_dwordx4 a[{b}:{b+3}], v{vL16}, {sw}, s{sWo} offen", tg),
             (f"buffer_load_dwordx4 v[{r}:{r+3}], v{vL16}, {sw}, s{sAo} offen", tg),
             (f"buffer_load_dwordx4 v[{r+4}:{r+7}], v{vL16b}, {sw}, s{sAo} offen", tg),
             (f"buffer_load_dwordx4 a[{b+4}:{b+7}], v{vL16}, {sw}, s{sWo} offen offset:1024", tg)]
        if ki % 2 == 0:
            u = U2R + 4 * ((ki // 2) % 3)
            L.append((f"buffer_load_dwordx4 v[{u}:{u+3}], v{vU2}, {sw}, s{sWo} offen offset:2048", tg))
        L.append((f"s_add_u32 s{sWo}, s{sWo}, 2560\ns_add_u32 s{sAo}, s{sAo}, 1024", None))
        return L
    def g_tables():
        srd(p, SXS, 62, 63, 2048 * 1280)
        srd(p, SOUT, 70, 71, 2048 * 1280)
        p(f"""
        s_mul_i32 s{sLds}, s{sW}, {G_LDS}
        v_add_u32 v{vLin}, s{sLds}, v{vL16}
        v_add_u32 v{vLu2}, s{sLds}, v{vT[2]}
        v_and_b32 v{vT[1]}, 31, v{vLane}
        v_mul_u32_u24 v{vT[2]}, 80, v{vT[1]}
        v_lshl_add_u32 v{vT[2]}, v{vT[0]}, 3, v{vT[2]}
        s_add_u32 s{sT}, s{sLds}, {G_WO}
        v_add_u32 v{vSt}, s{sT}, v{vT[2]}
        v_lshlrev_b32 v{vT[3]}, 3, v{vT[1]}
        v_lshl_add_u32 v{vOT}, v{vT[0]}, 8, v{vT[3]}
        s_mov_b32 s{sMlo}, 0x0000ffff
        s_mov_b32 s{sMlo+1}, 0x0000ffff
        s_mov_b32 s{sMhi}, 0xffff0000
        s_mov_b32 s{sMhi+1}, 0xffff0000
        """)
        for i in range(3):
            p(f"""
            v_add_u32 v{vT[0]}, {64*i}, v{vLane}
            v_min_u32 v{vT[0]}, 159, v{vT[0]}
            v_mul_u32_u24 v{vT[1]}, 13108, v{vT[0]}
            v_lshrrev_b32 v{vT[1]}, 16, v{vT[1]}
            v_mul_u32_u24 v{vT[2]}, 5, v{vT[1]}
            v_sub_u32 v{vT[2]}, v{vT[0]}, v{vT[2]}
            v_mul_u32_u24 v{vT[1]}, 1280, v{vT[1]}
            v_lshl_add_u32 v{vRow[i]}, v{vT[2]}, 4, v{vT[1]}
            """)
        p(f"""
        s_lshr_b32 s{sT}, s{sW}, 1
        s_lshl_b32 s{sT2}, s{sMt}, 1
        s_add_u32 s{sT}, s{sT}, s{sT2}
        s_mul_i32 s{sXo}, s{sT}, {32*1280}
        s_mul_i32 s{sT}, s{sNt}, 160
        s_add_u32 s{sXo}, s{sXo}, s{sT}
        s_and_b32 s{sT}, s{sW}, 1
        s_mul_i32 s{sT}, s{sT}, 80
        s_add_u32 s{sXo}, s{sXo}, s{sT}
        s_mul_i32 s{sT}, s{sNt}, 148
        s_mul_i32 s{sT2}, s{sW}, 10
        s_add_u32 s{sT}, s{sT}, s{sT2}
        s_add_u32 s{sT}, s{sT}, 108
        s_mul_i32 s{sOo}, s{sT}, 2560
        s_add_u32 s{sOo}, s{sOo}, {WS_WF}
        """)
    sOo = 49
    if cfg.get('tfirst', 1): g_tables()
    if cfg.get('tsync', 1): p("s_barrier")
    for ki in range(LA):
        for (l, tg) in h_loads(ki): p(l, tag=tg)
    stamp('G loads issued')
    if not cfg.get('tfirst', 1): g_tables()
    def wo_dma(n):
        L = []
        if n % 4 == 0:
            L.append((f"s_add_u32 m0, s{sLds}, {n*1024}", None))
            if n: L.append((f"s_add_u32 s{sOo}, s{sOo}, 4096", None))
        L.append((f"buffer_load_dwordx4 v{vL16}, {sw}, s{sOo} offen offset:{(n%4)*1024} lds", 'wo'))
        return L
    acc = lambda tb, u: f"v[{ACC+16*(3*tb+u)}:{ACC+16*(3*tb+u)+15}]"
    barrier_at = cfg.get('gbar', 1)
    WO0 = cfg.get('wo0', 1)
    nwo = 0
    osc = ' sc1' if cfg.get('osc1', 1) else ''
    OH = ['a56', 'v84', 'v76', 'a24', 'v52', 'a0', 'v60', 'a8', 'v68', 'a16']
    def oreg(j, i, n): return f"{OH[j][0]}[{int(OH[j][1:])+i}:{int(OH[j][1:])+i+n-1}]"
    sOa = [54, 55]; sOt = [56, 57]
    def o_loads(j):
        L = []
        if j < 8:
            for tb in range(2):
                L.append((f"buffer_load_dwordx4 {oreg(j, 4*tb, 4)}, v{vL16}, {sw}, s{sOa[tb]} offen offset:{(j % 4)*1024}{osc}", f'o{j}'))
            if j == 3: L.append((f"s_add_u32 s{sOa[0]}, s{sOa[0]}, 4096\ns_add_u32 s{sOa[1]}, s{sOa[1]}, 4096", None))
        else:
            g = j - 8
            for tb in range(2):
                for e in range(2):
                    L.append((f"buffer_load_dwordx2 {oreg(j, 4*tb + 2*e, 2)}, v{vOT}, {sw}, s{sOt[tb]} offen offset:{(4*g + 2*e)*256}{osc}", f'o{j}'))
        return L
    WR = 32
    def wo_reads(j):
        b = WR + 12 * (j % 2)
        return [(f"ds_read_b128 a[{b}:{b+3}], v{vLin} offset:{j*2560}", f'wr{j}'),
                (f"ds_read_b128 a[{b+4}:{b+7}], v{vLin} offset:{j*2560 + 1024}", f'wr{j}'),
                (f"ds_read_b128 a[{b+8}:{b+11}], v{vLu2} offset:{j*2560 + 2048}", f'wr{j}')]
    PK = cfg.get('PK', 24); assert PK == 24
    vFl = vT[9]; vFa = vT[8]
    def poll_setup():
        p(f"""
        s_lshl_b32 s{sT}, s{sMt}, 6
        s_lshl_b32 s{sT2}, s{sW}, 3
        s_add_u32 s{sT}, s{sT}, s{sT2}
        s_lshl_b32 s{sOa[0]}, s{sT}, 10
        s_add_u32 s{sOa[0]}, s{sOa[0]}, {WS_O}
        s_add_u32 s{sOa[1]}, s{sOa[0]}, {32*1024}
        s_lshl_b32 s{sOt[0]}, s{sT}, 8
        s_add_u32 s{sOt[0]}, s{sOt[0]}, {WS_OT}
        s_add_u32 s{sOt[1]}, s{sOt[0]}, {32*256}
        s_lshl_b32 s{sFlag}, s{sMt}, 7
        s_lshl_b32 s{sT}, s{sW}, 5
        s_add_u32 s{sFlag}, s{sFlag}, s{sT}
        s_add_u32 s{sFlag}, s{sFlag}, {WS_FLAG}
        v_and_b32 v{vFa}, 7, v{vLane}
        v_lshlrev_b32 v{vFa}, 2, v{vFa}
        s_mov_b32 s{sT3}, 200000
        """)
    for ki in range(27):
        b = 8 * (ki % NS); r = ACT0 + 8 * (ki % NS)
        if ki == barrier_at and not cfg.get('tsync', 1): p("s_barrier")
        if cfg.get('kst') and ki in (2, 8, 14, 20): stamp(f'k{ki}')
        q = h_loads(ki + LA) if ki + LA < 27 else []
        ex = []
        if ki >= WO0:
            for _ in range(cfg.get('wor', 2)):
                if nwo < 25: ex += wo_dma(nwo); nwo += 1
        if ki == 6:
            ex += [(f"buffer_load_dwordx4 v[{XR+4*i}:{XR+4*i+3}], v{vRow[i]}, s[{SXS}:{SXS+3}], s{sXo} offen", 'xr') for i in range(3)]
        if ki == 12:
            ex += [(f"ds_write_b128 v{vLin}, v[{XR+4*i}:{XR+4*i+3}] offset:{G_WO + 1024*i}", 'xw') for i in range(2)]
            ex += [(f"s_mov_b32 exec_hi, 0\nds_write_b128 v{vLin}, v[{XR+8}:{XR+11}] offset:{G_WO + 2048}\ns_mov_b64 exec, -1", 'xw')]
        if ki == 13:
            ex += [(f"ds_read_b64 v[{vX+2*i}:{vX+2*i+1}], v{vSt} offset:{16*i}", 'xd') for i in range(5)]
        if ki == PK - cfg.get('early', 0):
            poll_setup()
            if not cfg.get('noT') and cfg.get('early', 0):
                ex += [(f"buffer_load_dword v{vFl}, v{vFa}, {sw}, s{sFlag} offen sc1", 'fl')]
        if ki == PK:
            stamp('G before poll')
            if not cfg.get('noT'):
                if cfg.get('early', 0):
                    p(f"v_cmp_ne_u32 vcc, 1, v{vFl}\ns_cbranch_vccz G_POLLED")
                p.save('poll')
                p("G_POLL:")
                p(f"""
                buffer_load_dword v{vFl}, v{vFa}, {sw}, s{sFlag} offen sc1
                s_sub_u32 s{sT3}, s{sT3}, 1
                s_waitcnt vmcnt(0)
                v_cmp_ne_u32 vcc, 1, v{vFl}
                s_cmp_eq_u32 s{sT3}, 0
                s_cbranch_scc1 G_POLLED
                s_cbranch_vccnz G_POLL
                """)
                p("G_POLLED:")
                p.restore('poll')
            stamp('G polled')
            p.waitvm('wo')
            ex += o_loads(0) + o_loads(1) + o_loads(2) + o_loads(3) + wo_reads(0) + wo_reads(1)
        if ki == PK + 1: ex += o_loads(4) + o_loads(5)
        if ki == PK + 2: ex += o_loads(6) + o_loads(7)
        q = q + ex
        p.waitvm(f'k{ki}')
        u2 = U2R + 4 * ((ki // 2) % 3); tq = vT[4 * (ki % 2): 4 * (ki % 2) + 4]
        m = sMlo if ki % 2 == 0 else sMhi
        if cfg.get('lfirst', 1):
            while q:
                l, tg = q.pop(0); p(l, tag=tg)
        for i in range(4): p(f"v_cndmask_b32 v{tq[i]}, 0, v{u2+i}, s[{m}:{m+1}]")
        for u in range(3):
            for tb in range(2):
                cin = "0" if ki == 0 else acc(tb, u)
                wsrc = f"a[{b+4*u}:{b+4*u+3}]" if u < 2 else f"v[{tq[0]}:{tq[3]}]"
                p(f"v_mfma_f32_32x32x16_bf16 {acc(tb,u)}, {wsrc}, v[{r+4*tb}:{r+4*tb+3}], {cin}")
                nq = 2 if (u, tb) != (2, 1) else 99
                while q and nq > 0:
                    l, tg = q.pop(0); p(l, tag=tg); nq -= 1 if ('buffer' in l or 'ds_' in l) else 0
    assert nwo == 25
    for (l, tg) in o_loads(8) + o_loads(9): p(l, tag=tg)
    stamp('G h done')
    for tb in range(2):
        c = ACC + 16 * (3*tb + 2)
        for i in range(8): p(f"v_add_f32 v{c+i}, v{c+i}, v{c+8+i}")
    for j in range(10):
        b = WR + 12 * (j % 2)
        p.waitvm(f'o{j}')
        for u in range(3):
            for tb in range(2):
                p(f"v_mfma_f32_32x32x16_bf16 {acc(tb,u)}, a[{b+4*u}:{b+4*u+3}], {oreg(j, 4*tb, 4)}, {acc(tb,u)}")
        if j + 2 < 10:
            for (l, tg) in wo_reads(j + 2): p(l, tag=tg)
    stamp('G main done')
    def greg(tb, a): return ACC + 16*(3*tb + a//4) + 4*(a % 4)
    for wv in range(4):
        if wv < 3: p(f"s_cmp_lg_u32 s{sW}, {wv}\ns_cbranch_scc1 G_RED{wv+1}")
        if wv == 0: p.save('red')
        for tb in range(2):
            for a in range(10):
                own = 2*tb + (1 if a >= 5 else 0)
                if own == wv: continue
                slot = ((own - wv) % 4 - 1) * 5 + a % 5
                r = greg(tb, a)
                p(f"ds_write_b128 v{vLin}, v[{r}:{r+3}] offset:{slot*1024}")
        p("s_waitcnt lgkmcnt(0)\ns_barrier")
        tbo, a0 = wv >> 1, 5 * (wv & 1)
        R = 12
        stg = [38 + 4*n for n in range(14)] + [12]
        n = 0
        for src in range(1, 4):
            sw_ = (wv + src) % 4
            rel = (wv - sw_) % 4
            p(f"v_add_u32 v{vT[4+src]}, {sw_*G_LDS}, v{vL16}")
            for i in range(5):
                p(f"ds_read_b128 v[{stg[n]}:{stg[n]+3}], v{vT[4+src]} offset:{((rel-1)*5 + i)*1024}"); n += 1
        for i in range(5):
            r = greg(tbo, a0 + i)
            x0, x1 = vX + 2*i, vX + 2*i + 1
            t = vT[8:12]
            p(f"""
            v_lshlrev_b32 v{t[0]}, 16, v{x0}
            v_and_b32 v{t[1]}, 0xffff0000, v{x0}
            v_lshlrev_b32 v{t[2]}, 16, v{x1}
            v_and_b32 v{t[3]}, 0xffff0000, v{x1}
            """)
            for e in range(4): p(f"v_add_f32 v{r+e}, v{r+e}, v{t[e]}")
        for src in range(3):
            for i in range(5):
                r = greg(tbo, a0 + i)
                for e in range(4): p(f"v_add_f32 v{r+e}, v{r+e}, v{stg[5*src+i]+e}")
                if src == 2:
                    p(f"""
                    v_cvt_pk_bf16_f32 v{r}, v{r}, v{r+1}
                    v_cvt_pk_bf16_f32 v{r+1}, v{r+2}, v{r+3}
                    ds_write_b64 v{vSt}, v[{r}:{r+1}] offset:{16*i}
                    """, tag='ow')
        p.waitlg('ow')
        for i in range(3): p(f"ds_read_b128 v[{48+4*i}:{51+4*i}], v{vLin} offset:{G_WO + 1024*i}")
        om = cfg.get('outmod', '')
        for i in range(2): p(f"buffer_store_dwordx4 v[{48+4*i}:{51+4*i}], v{vRow[i]}, s[{SOUT}:{SOUT+3}], s{sXo} offen {om}")
        p(f"s_mov_b32 exec_hi, 0\nbuffer_store_dwordx4 v[56:59], v{vRow[2]}, s[{SOUT}:{SOUT+3}], s{sXo} offen {om}")
        n0 = nst[0]
        if cfg.get('dbgt'):
            p(f"""
            s_waitcnt vmcnt(0)
            s_memrealtime s[90:91]
            s_waitcnt lgkmcnt(0)
            s_lshr_b32 s96, s2, 3
            s_lshl_b32 s96, s96, 8
            s_add_u32 s96, s96, s{sW}
            s_and_b32 s96, s96, 0xffffff03
            s_cmp_lg_u32 s96, 0
            s_cbranch_scc1 DBG2_{wv}
            s_lshl_b32 s96, s2, 3
            v_mov_b32 v12, s94
            v_mov_b32 v13, s90
            v_mov_b32 v14, s96
            s_mov_b64 exec, 1
            global_store_dwordx2 v14, v[12:13], s[92:93]
            DBG2_{wv}:
            """)
        if prof:
            p("s_mov_b64 exec, -1")
            stamp('G out issued' if wv == 0 else None)
            prof_end('G' if wv == 0 else 'G2')
            nst[0] = n0
        p("s_endpgm")
        if wv < 3:
            p(f"G_RED{wv+1}:")
            p.restore('red')
    p("K2_T:")
    p.restore('fork')
    nst[0] = 2
    tnames = []
    vKa, vVa, vQo, vHH = 2, 3, 4, 5
    vT = list(range(6, 16)); vQ = 16
    vMx, vMc, vDen = 28, 29, 30
    S0 = 48
    sTw, sKo, sMk = 40, 41, 42
    p(f"""
    s_sub_u32 s{sTw}, s{sW}, 4
    s_lshl_b32 s{sT}, s{sM}, 8
    s_sub_u32 s{sT}, s{sT}, 256
    s_lshl_b32 s{sT}, s{sT}, 3
    s_mul_i32 s{sT2}, s{sHd}, {5*16384}
    s_add_u32 s{sKo}, s{sT}, s{sT2}
    s_add_u32 s{sKo}, s{sKo}, {160*16384 + WS_QKV}
    v_lshlrev_b32 v{vT[0]}, 4, v{vLane}
    """)
    if cfg.get('noT') == 1:
        p("s_barrier\ns_endpgm")
    assert not (cfg.get('noT') == 2 and cfg.get('tsync', 1))
    p(f"s_lshl_b32 s{sT2}, s{sTw}, 10\ns_add_u32 s{sKo}, s{sKo}, s{sT2}")
    for kv in range(2):
        for G in range(5):
            base = (KP if kv == 0 else VP) + G * PS
            p(f"s_add_u32 m0, s{sT2}, {base}\ns_add_u32 s{sT}, s{sKo}, {kv*160*16384 + G*16384}")
            p(f"buffer_load_dwordx4 v{vT[0]}, s[{SWS}:{SWS+3}], s{sT} offen lds", tag='kv')
    vSy = 47
    if cfg.get('tsync', 1):
        p(f"""
        s_lshl_b32 s{sT}, s{sTw}, 2
        s_add_u32 s{sT}, s{sT}, {SYNC}
        v_mov_b32 v{vSy}, s{sT}
        v_mov_b32 v{vT[1]}, 0
        ds_write_b32 v{vSy}, v{vT[1]}
        s_waitcnt lgkmcnt(0)
        s_barrier
        """)
    if cfg.get('tprio', 2): p(f"s_setprio {cfg.get('tprio', 2)}")
    p(f"""
    v_lshrrev_b32 v{vHH}, 5, v{vLane}
    v_and_b32 v{vT[1]}, 31, v{vLane}
    v_lshlrev_b32 v{vT[2]}, 3, v{vT[1]}
    v_lshl_add_u32 v{vQo}, v{vHH}, 15, v{vT[2]}
    s_lshl_b32 s{sT}, s{sM}, 3
    s_lshl_b32 s{sT3}, s{sTw}, 1
    s_add_u32 s{sT}, s{sT}, s{sT3}
    s_lshl_b32 s{sT}, s{sT}, 8
    s_mul_i32 s{sT3}, s{sHd}, {5*16384}
    s_add_u32 s{sT}, s{sT}, s{sT3}
    s_add_u32 s{sT}, s{sT}, {WS_QKV}
    """)
    for qb in range(2):
        q = vQ + 6*qb
        p(f"""
        s_add_u32 s{sT3}, s{sT}, {qb*256}
        buffer_load_dwordx2 v[{q}:{q+1}], v{vQo}, s[{SWS}:{SWS+3}], s{sT3} offen
        s_add_u32 s{sT3}, s{sT}, {qb*256 + 16384}
        buffer_load_dwordx2 v[{q+2}:{q+3}], v{vQo}, s[{SWS}:{SWS+3}], s{sT3} offen
        s_add_u32 s{sT3}, s{sT}, {qb*256 + 4*16384}
        buffer_load_dwordx2 v[{q+4}:{q+5}], v{vT[2]}, s[{SWS}:{SWS+3}], s{sT3} offen
        """)
    vPa, vPi, vPd = 44, 45, 46
    P = cfg.get('P', 4); nW = (20 * P + 7) // 8; nA = 4 * P; NPF = (27 + P - 1) // P
    assert nW + nA <= 64
    t = vT[3:8]
    if cfg.get('pft', 0):
        p(f"""
        s_and_b32 s{sT}, s{sMt}, 7
        s_mul_i32 s{sT}, s{sT}, {nW}
        v_add_u32 v{t[0]}, s{sT}, v{vLane}
        v_min_u32 v{t[0]}, {20*P - 1}, v{t[0]}
        v_lshlrev_b32 v{t[0]}, 7, v{t[0]}
        s_mul_i32 s{sT}, s{sNt}, 148
        s_mul_i32 s{sT3}, s{sTw}, 27
        s_add_u32 s{sT}, s{sT}, s{sT3}
        s_mul_i32 s{sT}, s{sT}, 2560
        s_add_u32 s{sT}, s{sT}, {WS_WF}
        v_add_u32 v{t[0]}, s{sT}, v{t[0]}
        v_subrev_u32 v{t[1]}, {nW}, v{vLane}
        v_cmp_le_i32 vcc, {2*P}, v{t[1]}
        v_cndmask_b32 v{t[2]}, 0, 1, vcc
        v_mul_u32_u24 v{t[3]}, {2*P}, v{t[2]}
        v_sub_u32 v{t[1]}, v{t[1]}, v{t[3]}
        s_and_b32 s{sT}, s{sNt}, 3
        s_mul_i32 s{sT}, s{sT}, {2*P}
        v_add_u32 v{t[1]}, s{sT}, v{t[1]}
        v_lshlrev_b32 v{t[1]}, 7, v{t[1]}
        v_mul_u32_u24 v{t[2]}, {108*1024}, v{t[2]}
        v_add_u32 v{t[1]}, v{t[1]}, v{t[2]}
        s_mul_i32 s{sT}, s{sMt}, {2*108*1024}
        s_lshl_b32 s{sT3}, s{sT3}, 10
        s_add_u32 s{sT}, s{sT}, s{sT3}
        s_add_u32 s{sT}, s{sT}, {WS_H}
        v_add_u32 v{t[1]}, s{sT}, v{t[1]}
        v_cmp_gt_u32 vcc, {nW}, v{vLane}
        v_cndmask_b32 v{vPa}, v{t[1]}, v{t[0]}, vcc
        v_mov_b32 v{t[0]}, {P*2560}
        v_mov_b32 v{t[1]}, {P*1024}
        v_cndmask_b32 v{vPi}, v{t[1]}, v{t[0]}, vcc
        s_bfm_b64 s[24:25], {nW + nA}, 0
        """)
    npf = [0]
    def pf(n=1):
        if not cfg.get('pft', 0): return
        for _ in range(n):
            j = npf[0]
            if j < NPF:
                if j >= cfg.get('pf0', 1):
                    p(f"s_mov_b64 exec, s[24:25]\nbuffer_load_dword v{vPd}, v{vPa}, s[{SWS}:{SWS+3}], 0 offen\ns_mov_b64 exec, -1", tag='pf')
                p(f"v_add_u32 v{vPa}, v{vPa}, v{vPi}")
            elif j == NPF and cfg.get('pfo', 1):
                p(f"""
                s_and_b32 s26, s{sMt}, 7
                s_mul_i32 s26, s26, 25
                v_add_u32 v{vPa}, s26, v{vLane}
                v_lshlrev_b32 v{vPa}, 7, v{vPa}
                s_mul_i32 s26, s{sNt}, 148
                s_mul_i32 s27, s{sTw}, 10
                s_add_u32 s26, s26, s27
                s_add_u32 s26, s26, 108
                s_mul_i32 s26, s26, 2560
                s_add_u32 s26, s26, {WS_WF}
                s_mov_b64 exec, 0x1ffffff
                buffer_load_dword v{vPd}, v{vPa}, s[{SWS}:{SWS+3}], s26 offen
                s_mov_b64 exec, -1
                """, tag='pf')
            npf[0] += 1
    pf(cfg.get('pfa', 3))
    if cfg.get('noT') == 2:
        pf(12)
        p("s_barrier\ns_waitcnt vmcnt(0)\ns_endpgm")
    p(f"""
    s_cmp_eq_u32 s{sM}, 0
    s_cselect_b32 s{sT}, 0xc700, 0
    s_cmp_lt_u32 s{sTw}, 2
    s_cselect_b32 s{sT}, s{sT}, 0
    v_mov_b32 v{vT[4]}, s{sT}
    v_mov_b32 v{vT[5]}, 0
    v_mov_b32 v{vT[6]}, s{sT}
    v_mov_b32 v{vT[7]}, 0
    v_add_u32 v{vT[3]}, s{sT2}, v{vT[0]}
    v_add_u32 v{vT[3]}, {KP + 5*PS}, v{vT[3]}
    ds_write_b128 v{vT[3]}, v[{vT[4]}:{vT[7]}]
    """)
    assert vT[4] % 2 == 0
    p(f"""
    v_mov_b32 v{vT[4]}, 0x3f80
    v_mov_b32 v{vT[6]}, 0x3f80
    ds_write_b128 v{vT[3]}, v[{vT[4]}:{vT[7]}] offset:{VP - KP}
    """)
    p(f"""
    v_mul_u32_u24 v{vT[3]}, {2*PS}, v{vHH}
    v_lshl_add_u32 v{vT[3]}, v{vT[1]}, 3, v{vT[3]}
    s_lshl_b32 s{sT}, s{sTw}, 9
    s_add_u32 s{sT}, s{sT}, {KP}
    v_add_u32 v{vKa}, s{sT}, v{vT[3]}
    v_mul_u32_u24 v{vT[3]}, {PS}, v{vHH}
    v_lshl_add_u32 v{vT[3]}, v{vT[1]}, 3, v{vT[3]}
    s_add_u32 s{sT3}, s{sT}, {4*PS}
    v_add_u32 v{vT[8]}, s{sT3}, v{vT[3]}
    """)
    vKt = vT[8]
    p(f"""
    v_bfe_u32 v{vT[3]}, v{vLane}, 4, 1
    v_and_b32 v{vT[4]}, 3, v{vLane}
    v_lshl_add_u32 v{vT[3]}, v{vT[3]}, 2, v{vT[4]}
    v_min_u32 v{vT[3]}, 5, v{vT[3]}
    v_mul_u32_u24 v{vT[3]}, {PS}, v{vT[3]}
    v_bfe_u32 v{vT[4]}, v{vLane}, 2, 2
    v_lshl_add_u32 v{vT[4]}, v{vHH}, 2, v{vT[4]}
    v_lshl_add_u32 v{vT[3]}, v{vT[4]}, 3, v{vT[3]}
    s_add_u32 s{sT3}, s{sT}, {VP - KP}
    v_add_u32 v{vVa}, s{sT3}, v{vT[3]}
    """)
    p(f"v_lshlrev_b32 v{vT[3]}, 2, v{vHH}\nv_sub_u32 v{vT[3]}, v{vT[1]}, v{vT[3]}")
    for r in range(16):
        p(f"v_cmp_le_i32 s[{sMk+2*r}:{sMk+2*r+1}], {8*(r>>2) + (r&3)}, v{vT[3]}")
    p(f"v_cmp_eq_u32 vcc, 1, v{vHH}")
    for qb in range(2):
        q = vQ + 6*qb
        p(f"v_mov_b32 v{vT[4]}, 0x3f80\nv_cndmask_b32 v{q+4}, v{q+4}, v{vT[4]}, vcc\nv_cndmask_b32 v{q+5}, v{q+5}, 0, vcc".replace(f"v_cndmask_b32 v{q+5}, v{q+5}, 0, vcc", f"v_mov_b32 v{vT[5]}, 0\nv_cndmask_b32 v{q+5}, v{q+5}, v{vT[5]}, vcc"))
    p(f"v_mov_b32 v{vT[9]}, {NEG}")
    vNeg = vT[9]
    p.waitvm('kv')
    if cfg.get('tsync', 1):
        p(f"""
        s_waitcnt lgkmcnt(0)
        v_mov_b32 v{vT[4]}, 1
        ds_write_b32 v{vSy}, v{vT[4]}
        v_mov_b32 v{vSy}, {SYNC}
        s_mov_b32 s{sT3}, 1000000
        """)
        p("T_SYNC:")
        p(f"""
        ds_read_b128 v[32:35], v{vSy}
        s_sub_u32 s{sT3}, s{sT3}, 1
        s_waitcnt lgkmcnt(0)
        v_and_b32 v32, v32, v33
        v_and_b32 v34, v34, v35
        v_and_b32 v32, v32, v34
        v_cmp_ne_u32 vcc, 1, v32
        s_cmp_eq_u32 s{sT3}, 0
        s_cbranch_scc1 T_SYNCED
        s_cbranch_vccnz T_SYNC
        """)
        p("T_SYNCED:")
    else:
        p("s_waitcnt lgkmcnt(0)\ns_barrier")
    stamp()
    if cfg.get('noT') == 3: p("s_endpgm")
    KF = 16
    VF = 40
    OA = 0
    St = lambda n: S0 + 16*n
    def kread(qb, n):
        b = KF + 8 * (n % 3)
        off = (qb + n) * 256
        p(f"ds_read_b64 a[{b}:{b+1}], v{vKa} offset:{off}\nds_read_b64 a[{b+2}:{b+3}], v{vKa} offset:{off+PS}\nds_read_b64 a[{b+4}:{b+5}], v{vKt} offset:{off}")
    def smfma(qb, n):
        b = KF + 8 * (n % 3); q = vQ + 6*qb; s = St(n)
        cin = "0"
        if n == 0 or n == 8:
            for r in range(16):
                m = f"s[{sMk+2*r}:{sMk+2*r+1}]"
                if n == 8: p(f"v_cndmask_b32 v{s+r}, v{vNeg}, 0, {m}")
                else: p(f"v_cndmask_b32 v{s+r}, 0, v{vNeg}, {m}")
            cin = f"v[{s}:{s+15}]"
        if cfg.get('nosm'): return
        p(f"v_mfma_f32_32x32x16_bf16 v[{s}:{s+15}], a[{b}:{b+3}], v[{q}:{q+3}], {cin}")
        p(f"v_mfma_f32_32x32x8_bf16 v[{s}:{s+15}], a[{b+4}:{b+5}], v[{q+4}:{q+5}], v[{s}:{s+15}]")
    def vread(qb, n):
        for j in range(2):
            b = VF + 4 * ((2*n + j) % 6)
            off = (qb + n) * 256 + j * 128
            p(f"ds_read_b64_tr_b16 a[{b}:{b+1}], v{vVa} offset:{off}\nds_read_b64_tr_b16 a[{b+2}:{b+3}], v{vVa} offset:{off+64}")
    sC = 39
    p(f"s_mov_b32 s{sC}, {C_SC!r}")
    for qb in range(2):
        kread(qb, 0); kread(qb, 1)
        for n in range(9):
            if n + 2 < 9: kread(qb, n + 2)
            smfma(qb, n)
            if qb == 0 and n % cfg.get('pfs', 2) == 0: pf(1)
        for n in range(9):
            s = St(n)
            for r in range(0, 16, 2):
                if n == 0 and r == 0: p(f"v_max_f32 v{vMx}, v{s}, v{s+1}")
                else: p(f"v_max3_f32 v{vMx}, v{vMx}, v{s+r}, v{s+r+1}")
        p(f"""
        v_mov_b32 v{vMc}, v{vMx}
        v_permlane32_swap_b32 v{vMx}, v{vMc}
        v_max_f32 v{vMx}, v{vMx}, v{vMc}
        v_mul_f32 v{vMc}, s{sC}, v{vMx}
        """)
        vread(qb, 0); vread(qb, 1)
        for n in range(9):
            s = St(n)
            if n + 2 < 9: vread(qb, n + 2)
            for r in range(16): p(f"v_fma_f32 v{s+r}, v{s+r}, s{sC}, -v{vMc}")
            for r in range(16 if not cfg.get('noexp') else 0): p(f"v_exp_f32 v{s+r}, v{s+r}")
            for r in range(8): p(f"v_cvt_pk_bf16_f32 v{s+r}, v{s+2*r}, v{s+2*r+1}")
            for j in range(2):
                b = VF + 4 * ((2*n + j) % 6)
                cin = "0" if (n == 0 and j == 0) else f"a[{OA}:{OA+15}]"
                p(f"v_mfma_f32_32x32x16_bf16 a[{OA}:{OA+15}], a[{b}:{b+3}], v[{s+4*j}:{s+4*j+3}], {cin}")
        o = list(range(32, 44))
        p(f"v_accvgpr_read_b32 v{vDen}, a{OA+12}")
        for r in range(12): p(f"v_accvgpr_read_b32 v{o[r]}, a{OA+r}")
        p(f"v_rcp_f32 v{vDen}, v{vDen}")
        for r in range(12): p(f"v_mul_f32 v{o[r]}, v{o[r]}, v{vDen}")
        for r in range(6): p(f"v_cvt_pk_bf16_f32 v{o[r]}, v{o[2*r]}, v{o[2*r+1]}")
        p(f"""
        s_lshl_b32 s{sT}, s{sM}, 3
        s_lshl_b32 s{sT2}, s{sTw}, 1
        s_add_u32 s{sT}, s{sT}, s{sT2}
        s_add_u32 s{sT}, s{sT}, {qb}
        s_lshl_b32 s{sT}, s{sT}, 5
        s_add_u32 s{sT}, s{sT}, s{sHd}
        s_lshl_b32 s{sT2}, s{sT}, 10
        s_add_u32 s{sT2}, s{sT2}, {WS_O}
        s_lshl_b32 s{sT}, s{sT}, 8
        s_add_u32 s{sT}, s{sT}, {WS_OT}
        v_lshlrev_b32 v{vT[0]}, 4, v{vLane}
        v_lshlrev_b32 v{vT[2]}, 3, v{vLane}
        buffer_store_dwordx4 v[{o[0]}:{o[3]}], v{vT[0]}, s[{SWS}:{SWS+3}], s{sT2} offen sc1
        s_mov_b32 exec_hi, 0
        buffer_store_dwordx2 v[{o[4]}:{o[5]}], v{vT[2]}, s[{SWS}:{SWS+3}], s{sT} offen sc1
        s_mov_b64 exec, -1
        """)
        stamp()
    p(f"""
    s_lshl_b32 s{sT}, s{sM}, 2
    s_add_u32 s{sT}, s{sT}, s{sTw}
    s_lshl_b32 s{sT}, s{sT}, 5
    s_add_u32 s{sT}, s{sT}, s{sHd}
    s_lshl_b32 s{sT}, s{sT}, 2
    s_add_u32 s{sT}, s{sT}, {WS_FLAG}
    v_mov_b32 v{vT[4]}, 1
    v_mov_b32 v{vT[5]}, 0
    s_waitcnt vmcnt(0)
    s_mov_b64 exec, 1
    buffer_store_dword v{vT[4]}, v{vT[5]}, s[{SWS}:{SWS+3}], s{sT} offen sc1
    """)
    if prof:
        p("s_mov_b64 exec, -1")
        while nst[0] < 2 + len(names) - 1: stamp()
        prof_end('T')
    p("s_endpgm")
    p("K2_END:")
    return p
```
